```python
import torch

def _softmax(x, axis=-1):
    return torch.softmax(x, dim=axis)
def _gelu(x):
    return torch.nn.functional.gelu(x, approximate="tanh")
def _silu(x):
    return torch.nn.functional.silu(x)
def _sigmoid(x):
    return torch.sigmoid(x)
def _layernorm(x, axis=-1, eps=1e-5):
    m = x.mean(dim=axis, keepdim=True)
    v = x.var(dim=axis, keepdim=True, unbiased=False)
    return (x - m) / torch.sqrt(v + eps)
def _scatter_add(tgt, idx, src, axis=0):
    return tgt.clone().index_add_(axis, idx, src)
def _segment_sum(src, seg, n):
    out = torch.zeros((n,) + src.shape[1:], dtype=src.dtype)
    return out.index_add_(0, seg, src)
def _pad(x, pw):
    flat = tuple(v for pair in reversed(pw) for v in pair)
    return torch.nn.functional.pad(x, flat)

kernel_name = 'recurrent_scan__sliding_block_cached__glu_gated_reglu__decode'

def setup_inputs():

    _w = (lambda a: (lambda t: t.to(torch.bfloat16) if t.is_floating_point() else t)(torch.as_tensor(a)))
    def _A_setup():
        B, Sq, D = 8, 1, 512
        Hq, Hkv, Sk, Dh = 32, 8, 4096, 128
        assert Hq % Hkv == 0, (Hq, Hkv)
        return {
            "x": _w((lambda *s: torch.randn(*s, dtype=torch.bfloat16) * 0.05)(B, Sq, D)),
            "k_cache": _w((lambda *s: torch.randn(*s, dtype=torch.bfloat16) * 1.6)(B, Hkv, Sk, Dh)),
            "v_cache": _w((lambda *s: torch.randn(*s, dtype=torch.bfloat16) * 1.6)(B, Hkv, Sk, Dh)),
            "wq": _w((lambda *s: torch.randn(*s, dtype=torch.bfloat16) * 1.6)(D, Hq * Dh) * (D ** -0.5)),
            "wo": _w((lambda *s: torch.randn(*s, dtype=torch.bfloat16) * 1.6)(Hq * Dh, D) * ((Hq * Dh) ** -0.5)),
        }
    _A_in = _A_setup()

    def _B_setup():
        B, S, D, F = 8, 1, 512, 1792
        return {
            "x": _w((lambda *s: torch.randn(*s, dtype=torch.bfloat16) * 0.05)(B, S, D)),
            "W_gate": _w((lambda *s: torch.randn(*s, dtype=torch.bfloat16) * 0.2)(D, F) * (2.0 / D) ** 0.5),
            "W_up": _w((lambda *s: torch.randn(*s, dtype=torch.bfloat16) * 0.2)(D, F) * (2.0 / D) ** 0.5),
            "W_down": _w((lambda *s: torch.randn(*s, dtype=torch.bfloat16) * 0.2)(F, D) * (1.0 / F) ** 0.5),
        }
    _B_in = _B_setup()

    return {
        "A_x": _A_in["x"],
        "A_k_cache": _A_in["k_cache"],
        "A_v_cache": _A_in["v_cache"],
        "A_wq": _A_in["wq"],
        "A_wo": _A_in["wo"],
        "B_x": _B_in["x"],
        "B_W_gate": _B_in["W_gate"],
        "B_W_up": _B_in["W_up"],
        "B_W_down": _B_in["W_down"],
    }

def reference(A_x, A_k_cache, A_v_cache, A_wq, A_wo, B_x, B_W_gate, B_W_up, B_W_down):
    def _A_ref(x, k_cache, v_cache, wq, wo):
        B, Sq, D = x.shape
        Hq, Dh = 32, 128
        Hkv, Sk = k_cache.shape[1], k_cache.shape[2]
        W = min(4096, max(256, Sk // 4))
        rep = Hq // Hkv
        q = (lambda x, *d: x.permute(*d))((x @ wq).reshape(B, Sq, Hq, Dh), 0, 2, 1, 3)
        k = (lambda x, n, axis: torch.repeat_interleave(x, n, dim=axis))(k_cache[:, :, Sk - W:, :], rep, axis=1)
        v = (lambda x, n, axis: torch.repeat_interleave(x, n, dim=axis))(v_cache[:, :, Sk - W:, :], rep, axis=1)
        scores = torch.einsum("bhqd,bhkd->bhqk", q, k) * (Dh ** -0.5)
        p = _softmax(scores, axis=-1)
        o = torch.einsum("bhqk,bhkd->bhqd", p, v)
        return (lambda x, *d: x.permute(*d))(o, 0, 2, 1, 3).reshape(B, Sq, Hq * Dh) @ wo

    def _B_ref(x, W_gate, W_up, W_down):
        gate = torch.einsum("bsd,df->bsf", x, W_gate)
        up = torch.einsum("bsd,df->bsf", x, W_up)
        gate = gate * (lambda x, dt: x.to(dt))(gate > 0, gate.dtype)
        h = gate * up
        return torch.einsum("bsf,fd->bsd", h, W_down)

    x = A_x
    xn = _layernorm(x, axis=-1)
    s = _A_ref(xn, A_k_cache, A_v_cache, A_wq, A_wo)
    g = _silu(_B_ref(xn, B_W_gate, B_W_up, B_W_down))
    return x + s * g
```

```python
import sys
NAME = "recurrent_scan__sliding_block_cached__glu_gated_reglu__decode"
opt = dict(diag=0, nt=1, spin=20000, sleep=1, prio=0, vlate=0)
for a in sys.argv[2:]:
    k, v = a.split("="); opt[k] = int(v)
DIAG = opt["diag"]; NT = " nt" if opt["nt"] else ""
L = []
def e(s): L.append("    " + s)
def lab(s): L.append(s + ":")
def c(s): L.append("    ; " + s)
WS_Y, WS_LSE, WS_OP, WS_SP, WS_DP, WS_DIAG = 0x1000, 0x40000, 0x50000, 0x100000, 0x200000, 0x400000
YROW = 30720
SLAB = 65536; SLAB2 = SLAB + 16384; XN = SLAB + 34816; QB = XN + 8320; HB = QB + 1088; OB = HB + 2176
MB = OB + 2176; LB = MB + 128; ZB = LB + 128; LDS = ZB + 64
sX, sK, sV, sWQ, sWO, sG, sU, sD, sOUT, sWS = 4, 6, 8, 10, 12, 16, 18, 20, 22, 26
sID, sW, sTAG, sROLE = 28, 29, 30, 31
sB = 32
sB2 = 34
sSTR, sT0, sT1, sT2, sCNT = 36, 37, 38, 39, 40
sPL, sPH = 41, 42
sM = 44
sM2 = 46
sU_ = 48
sTS = 64
vL, vG, vI = 1, 2, 3
WR, VR, TT, DD = 32, 64, 96, 128
nts = [0]
def ts(k):
    if DIAG: e(f"s_memrealtime s[{sTS+2*k}:{sTS+2*k+1}]")
def dump_ts(slot, n):
    if not DIAG: return
    e("s_waitcnt lgkmcnt(0)")
    e(f"s_lshl_b32 s{sT0}, s{sID}, 8")
    e(f"s_add_u32 s{sT0}, s{sT0}, {WS_DIAG + slot*64}")
    e(f"v_mov_b32 v4, s{sT0}")
    e("s_mov_b64 exec, 1")
    for k in range(n):
        e(f"v_mov_b32 v5, s{sTS+2*k}")
        e(f"global_store_dword v4, v5, s[{sWS}:{sWS+1}] offset:{4*k}")
    e("s_getreg_b32 s37, hwreg(HW_REG_XCC_ID)")
    e("v_mov_b32 v5, s37")
    e(f"global_store_dword v4, v5, s[{sWS}:{sWS+1}] offset:60")
    e("s_getreg_b32 s37, hwreg(HW_REG_HW_ID)")
    e("v_mov_b32 v5, s37")
    e(f"global_store_dword v4, v5, s[{sWS}:{sWS+1}] offset:56")
def base(dst, src, off):
    e(f"s_add_u32 s{dst}, s{src}, {off}")
    e(f"s_addc_u32 s{dst+1}, s{src+1}, 0")
def transpose(src, dst):
    for q in range(4):
        for j in range(4):
            a, b = src + 8*j + q, src + 8*j + 4 + q
            e(f"v_perm_b32 v{dst+8*q+j}, v{b}, v{a}, s{sPL}")
            e(f"v_perm_b32 v{dst+8*q+4+j}, v{b}, v{a}, s{sPH}")
def mfma(d, a, b, cc):
    cs = "0" if cc is None else f"v[{cc}:{cc+3}]"
    e(f"v_mfma_f32_16x16x32_bf16 v[{d}:{d+3}], v[{a}:{a+3}], v[{b}:{b+3}], {cs}")
def xlane(op, v, t, full=False):
    if full:
        for m in ["quad_perm:[1,0,3,2]", "quad_perm:[2,3,0,1]", "row_half_mirror", "row_mirror"]:
            e("s_nop 1")
            e(f"{op}_dpp v{v}, v{v}, v{v} {m} row_mask:0xf bank_mask:0xf")
    for sw in ["v_permlane16_swap_b32", "v_permlane32_swap_b32"]:
        e(f"v_mov_b32 v{t}, v{v}")
        e("s_nop 1")
        e(f"{sw} v{v}, v{t}")
        e("s_nop 0")
        e(f"{op} v{v}, v{v}, v{t}")
def rbf(v):
    e(f"v_cvt_pk_bf16_f32 v{v}, v{v}, v{v}")
    e(f"v_and_b32 v{v}, 0xffff0000, v{v}")
def tagcheck(regs, t0, t1, lfail_loop, name):
    e(f"v_min3_u32 v{t0}, v{regs[0]}, v{regs[1]}, v{regs[1]}")
    e(f"v_max3_u32 v{t1}, v{regs[0]}, v{regs[1]}, v{regs[1]}")
    for k in range(2, len(regs), 2):
        e(f"v_min3_u32 v{t0}, v{t0}, v{regs[k]}, v{regs[k+1]}")
        e(f"v_max3_u32 v{t1}, v{t1}, v{regs[k]}, v{regs[k+1]}")
    e(f"v_cmp_ne_u32 vcc, s{sTAG}, v{t0}")
    e(f"v_cmp_ne_u32 s[{sM}:{sM+1}], s{sTAG}, v{t1}")
    e(f"s_or_b64 vcc, vcc, s[{sM}:{sM+1}]")
    e(f"s_cbranch_scc0 {name}_ok")
    e(f"s_sub_u32 s{sCNT}, s{sCNT}, 1")
    if opt["sleep"]: e(f"s_sleep {opt['sleep']}")
    e(f"s_cmp_gt_i32 s{sCNT}, 0")
    e(f"s_cbranch_scc1 {lfail_loop}")
    lab(f"{name}_ok")
def unit3(buf, slab, kqreg):
    e(f"v_and_b32 v4, 7, v{vI}")
    e(f"v_mul_u32_u24 v4, 272, v4")
    e(f"v_lshl_add_u32 v4, v{vG}, 4, v4")
    e(f"s_lshl_b32 s{sT0}, s{kqreg}, 6")
    e(f"s_add_u32 s{sT0}, s{sT0}, {buf}")
    e(f"v_add_u32 v4, s{sT0}, v4")
    e(f"v_mov_b32 v5, {ZB}")
    e(f"v_cmp_gt_u32 vcc, 8, v{vI}")
    e("s_nop 1")
    e("v_cndmask_b32 v6, v5, v4, vcc")
    e("v_cndmask_b32 v7, v4, v5, vcc")
    e(f"s_lshl_b32 s{sT0}, s{kqreg}, 12")
    e(f"s_add_u32 s{sT0}, s{sT0}, {slab}")
    e(f"v_lshl_add_u32 v21, v{vL}, 4, s{sT0}")
def unit3b():
    e("ds_read_b128 v[8:11], v6")
    e("ds_read_b128 v[12:15], v7")
    e("s_waitcnt lgkmcnt(0)")
    for a in range(4): mfma(DD+4*a, TT+8*a, 8, None)
    for a in range(4): mfma(DD+4*a, TT+8*a+4, 12, DD+4*a)
    e("s_nop 4")
    for a in range(4): e(f"ds_write_b128 v21, v[{DD+4*a}:{DD+4*a+3}] offset:{a*1024}")
    e("s_waitcnt lgkmcnt(0)")
def pub3_addr(va, vo):
    e(f"v_lshlrev_b32 v{va}, 3, v0")
    e("v_bfe_u32 v4, v0, 1, 3")
    e("v_bfe_u32 v5, v0, 5, 2")
    e(f"s_and_b32 s{sT0}, s{sU_}, 3")
    e(f"s_lshl_b32 s{sT0}, s{sT0}, 2")
    e(f"v_lshl_add_u32 v4, v4, 4, v5")
    e(f"v_add_u32 v4, s{sT0}, v4")
    e(f"v_lshlrev_b32 v{vo}, 13, v4")
    e("v_lshrrev_b32 v4, 7, v0")
    e(f"v_lshl_add_u32 v{vo}, v4, 6, v{vo}")
    e("v_bfe_u32 v4, v0, 4, 1")
    e(f"v_lshl_add_u32 v{vo}, v4, 5, v{vo}")
    e("v_and_b32 v4, 1, v0")
    e(f"v_lshl_add_u32 v{vo}, v4, 4, v{vo}")
    e(f"s_lshr_b32 s{sT0}, s{sU_}, 2")
    e(f"s_lshl_b32 s{sT0}, s{sT0}, 8")
    e(f"v_add_u32 v{vo}, s{sT0}, v{vo}")
def pub3(np_, va, vo, wsoff):
    for k in range(np_): e(f"ds_read_b64 v[{8+2*k}:{9+2*k}], v{va} offset:{SLAB2 - 65536 + k*4096}")
    base(sB, sWS, wsoff)
    e(f"v_mov_b32 v17, s{sTAG}")
    e(f"v_mov_b32 v19, s{sTAG}")
    e("s_waitcnt lgkmcnt(0)")
    if np_ == 4:
        e("v_pk_add_f32 v[8:9], v[8:9], v[12:13]")
        e("v_pk_add_f32 v[10:11], v[10:11], v[14:15]")
    e("v_add_f32 v16, v8, v10")
    e("v_add_f32 v18, v9, v11")
    e(f"global_store_dwordx4 v{vo}, v[16:19], s[{sB}:{sB+1}] sc1")
def loadV():
    for j in range(8):
        e(f"global_load_dwordx4 v[{VR+4*j}:{VR+4*j+3}], v20, s[{sV}:{sV+1}] offset:{(j&3)*256 + (j>>2)*4096 - 4096}{NT}")
def load3():
    e(f"v_lshlrev_b32 v4, 13, v{vG}")
    e(f"v_lshl_add_u32 v4, v{vI}, 4, v4")
    for r in range(8):
        e(f"global_load_dwordx4 v[{WR+4*r}:{WR+4*r+3}], v4, s[{sB}:{sB+1}] offset:{r*1024-4096}{NT}")

e("s_load_dwordx16 s[4:19], s[0:1], 0")
e("s_load_dwordx8 s[20:27], s[0:1], 64")
ts(0)
e("s_cmp_ge_u32 s2, 256")
e("s_cbranch_scc1 L_end")
e(f"s_mov_b32 s{sID}, s2")
e("v_lshrrev_b32 v4, 6, v0")
e(f"v_and_b32 v{vL}, 63, v0")
e(f"v_readfirstlane_b32 s{sW}, v4")
e(f"v_bfe_u32 v{vG}, v0, 4, 2")
e(f"v_and_b32 v{vI}, 15, v0")
e(f"s_mov_b32 s{sPL}, 0x05040100")
e(f"s_mov_b32 s{sPH}, 0x07060302")
e(f"s_mov_b32 s{sCNT}, {opt['spin']}")
e(f"s_sub_u32 s{sU_}, s{sID}, 128")
c("KV slice offset: (id>>2)<<20 + 786432 + (id&3)<<16 + wave<<13")
e(f"s_lshr_b32 s{sT0}, s{sID}, 2")
e(f"s_lshl_b32 s{sT0}, s{sT0}, 20")
e(f"s_and_b32 s{sT1}, s{sID}, 3")
e(f"s_lshl_b32 s{sT1}, s{sT1}, 16")
e(f"s_add_u32 s{sT0}, s{sT0}, s{sT1}")
e(f"s_lshl_b32 s{sT2}, s{sW}, 13")
e(f"s_add_u32 s{sT0}, s{sT0}, s{sT2}")
e(f"s_add_u32 s{sT0}, s{sT0}, 786432")
e(f"v_xor_b32 v16, v{vI}, v{vG}")
e("v_lshlrev_b32 v16, 4, v16")
e(f"v_lshl_add_u32 v16, v{vG}, 8, v16")
e("v_xor_b32 v17, 64, v16")
e("v_xor_b32 v18, 0x80, v16")
e("v_xor_b32 v19, 0xc0, v16")
e(f"v_lshlrev_b32 v20, 10, v{vG}")
e(f"v_lshl_add_u32 v20, v{vI}, 4, v20")
e(f"s_mov_b32 m0, s{sT2}")
e(f"s_mov_b32 s{sROLE}, 0")
e("s_waitcnt lgkmcnt(0)")
ts(1)
e(f"s_load_dword s{sTAG}, s[{sWS}:{sWS+1}], 0")
e(f"s_cmp_eq_u32 s{sW}, 8")
e("s_cbranch_scc1 L_service")
base(sK, sK, f"s{sT0}")
e(f"s_add_u32 s{sT0}, s{sT0}, 4096")
base(sV, sV, f"s{sT0}")
e(f"s_cmp_ge_u32 s{sID}, 120")
e("s_cbranch_scc1 L_not1")
c("phase-1 role: x row + weight unit")
e(f"s_mov_b32 s{sROLE}, 1")
e(f"s_lshl_b32 s{sT0}, s{sW}, 10")
e(f"v_lshl_add_u32 v4, v{vL}, 4, s{sT0}")
e(f"global_load_dwordx4 v[8:11], v4, s[{sX}:{sX+1}]")
e(f"s_cmp_lt_u32 s{sID}, 92")
e(f"s_cselect_b64 s[{sB}:{sB+1}], s[{sG}:{sG+1}], s[{sU}:{sU+1}]")
e(f"s_cselect_b32 s{sT0}, 64, 92")
e(f"s_cmp_lt_u32 s{sID}, 64")
e(f"s_cselect_b64 s[{sB}:{sB+1}], s[{sWQ}:{sWQ+1}], s[{sB}:{sB+1}]")
e(f"s_cselect_b32 s{sT0}, 0, s{sT0}")
e(f"s_movk_i32 s{sSTR}, 3584")
e(f"s_cselect_b32 s{sSTR}, 8192, s{sSTR}")
e(f"s_sub_u32 s{sT0}, s{sID}, s{sT0}")
e(f"s_lshl_b32 s{sT0}, s{sT0}, 7")
e(f"s_lshl_b32 s{sT1}, s{sW}, 6")
e(f"s_mul_i32 s{sT1}, s{sT1}, s{sSTR}")
e(f"s_add_u32 s{sT0}, s{sT0}, s{sT1}")
base(sB, sB, f"s{sT0}")
e(f"v_lshrrev_b32 v4, 3, v{vI}")
e("v_lshlrev_b32 v4, 2, v4")
e(f"v_add_lshl_u32 v4, v4, v{vG}, 3")
e(f"v_mul_u32_u24 v4, s{sSTR}, v4")
e(f"v_and_b32 v5, 7, v{vI}")
e("v_lshl_add_u32 v4, v5, 4, v4")
for r in range(8):
    e(f"global_load_dwordx4 v[{WR+4*r}:{WR+4*r+3}], v4, s[{sB}:{sB+1}]{NT}")
    if r < 7: e(f"v_add_u32 v4, s{sSTR}, v4")
e("s_branch L_kv")
lab("L_not1")
e(f"s_cmp_lt_u32 s{sID}, 128")
e("s_cbranch_scc1 L_kv")
e(f"s_cmp_lt_u32 s{sW}, 4")
e(f"s_cselect_b32 s{sROLE}, 3, 0")
e("s_cbranch_scc1 L_kv")
e(f"s_cmp_ge_u32 s{sW}, 6")
e("s_cbranch_scc1 L_kv")
e(f"s_cmp_ge_u32 s{sU_}, 112")
e("s_cbranch_scc1 L_kv")
c("down role: rows 64*fblk+32*(w-4), cols 128*nq")
e(f"s_mov_b32 s{sROLE}, 2")
e(f"s_lshr_b32 s{sT0}, s{sU_}, 2")
e(f"s_lshl_b32 s{sT0}, s{sT0}, 16")
e(f"s_sub_u32 s{sT1}, s{sW}, 4")
e(f"s_lshl_b32 s{sT1}, s{sT1}, 15")
e(f"s_add_u32 s{sT0}, s{sT0}, s{sT1}")
e(f"s_and_b32 s{sT1}, s{sU_}, 3")
e(f"s_lshl_b32 s{sT1}, s{sT1}, 8")
e(f"s_add_u32 s{sT0}, s{sT0}, s{sT1}")
e(f"s_add_u32 s{sT0}, s{sT0}, 4096")
base(sB, sD, f"s{sT0}")
load3()
lab("L_kv")
for jj in range(4): e(f"global_load_lds_dwordx4 v{16+jj}, s[{sK}:{sK+1}] offset:{jj*1024}{NT}")
e(f"s_add_u32 s{sT2}, s{sT2}, 4096")
e(f"s_mov_b32 m0, s{sT2}")
base(sK, sK, 4096)
for jj in range(4): e(f"global_load_lds_dwordx4 v{16+jj}, s[{sK}:{sK+1}] offset:{jj*1024}{NT}")
def vwo():
    loadV()
    e(f"s_cmp_lg_u32 s{sROLE}, 3")
    e("s_cbranch_scc1 L_nowo")
    c("wo role: rows 128*head+32*w, cols 128*nq")
    e(f"s_lshr_b32 s{sT0}, s{sU_}, 2")
    e(f"s_lshl_b32 s{sT0}, s{sT0}, 17")
    e(f"s_lshl_b32 s{sT1}, s{sW}, 15")
    e(f"s_add_u32 s{sT0}, s{sT0}, s{sT1}")
    e(f"s_and_b32 s{sT1}, s{sU_}, 3")
    e(f"s_lshl_b32 s{sT1}, s{sT1}, 8")
    e(f"s_add_u32 s{sT0}, s{sT0}, s{sT1}")
    e(f"s_add_u32 s{sT0}, s{sT0}, 4096")
    base(sB, sWO, f"s{sT0}")
    load3()
    lab("L_nowo")
VL = opt["vlate"]
if not VL: vwo()
NV = 0 if VL else 8
ts(2)
e("s_waitcnt lgkmcnt(0)")
e(f"s_mul_i32 s{sTAG}, s{sTAG}, 0x9E3779B1")
e(f"s_add_u32 s{sTAG}, s{sTAG}, 0x7F4A7C15")
e(f"s_cmp_lg_u32 s{sROLE}, 1")
e("s_cbranch_scc1 L_p1done")
c("layernorm of row w")
e(f"s_waitcnt vmcnt({16+NV})")
ts(3)
for k in range(4):
    e(f"v_lshlrev_b32 v{TT+2*k}, 16, v{8+k}")
    e(f"v_and_b32 v{TT+2*k+1}, 0xffff0000, v{8+k}")
e(f"v_add_f32 v4, v{TT}, v{TT+1}")
for k in range(2, 8): e(f"v_add_f32 v4, v4, v{TT+k}")
xlane("v_add_f32", 4, 5, full=True)
e("v_mul_f32 v4, 0x3b000000, v4")
e(f"v_sub_f32 v5, v{TT}, v4")
e("v_mul_f32 v6, v5, v5")
for k in range(1, 8):
    e(f"v_sub_f32 v5, v{TT+k}, v4")
    e("v_fmac_f32 v6, v5, v5")
xlane("v_add_f32", 6, 5, full=True)
e("v_mul_f32 v6, 0x3b000000, v6")
rbf(4); rbf(6)
e("v_add_f32 v6, 0x3727c5ac, v6")
rbf(6)
e("v_sqrt_f32 v6, v6")
e("s_nop 0")
rbf(6)
e("v_rcp_f32 v6, v6")
for k in range(8): e(f"v_sub_f32 v{TT+k}, v{TT+k}, v4")
for k in range(4):
    e(f"v_cvt_pk_bf16_f32 v{8+k}, v{TT+2*k}, v{TT+2*k+1}")
    e(f"v_lshlrev_b32 v{TT+2*k}, 16, v{8+k}")
    e(f"v_and_b32 v{TT+2*k+1}, 0xffff0000, v{8+k}")
    e(f"v_mul_f32 v{TT+2*k}, v{TT+2*k}, v6")
    e(f"v_mul_f32 v{TT+2*k+1}, v{TT+2*k+1}, v6")
    e(f"v_cvt_pk_bf16_f32 v{8+k}, v{TT+2*k}, v{TT+2*k+1}")
e(f"s_mul_i32 s{sT0}, s{sW}, 1040")
e(f"s_add_u32 s{sT0}, s{sT0}, {XN}")
e(f"v_lshl_add_u32 v4, v{vL}, 4, s{sT0}")
e("ds_write_b128 v4, v[8:11]")
c("xn operand address, slab write address")
e(f"v_and_b32 v5, 7, v{vI}")
e(f"v_lshrrev_b32 v6, 3, v{vI}")
e("v_mul_u32_u24 v4, 1040, v5")
e("v_lshl_add_u32 v4, v6, 6, v4")
e(f"v_lshl_add_u32 v4, v{vG}, 4, v4")
e(f"s_lshl_b32 s{sT0}, s{sW}, 7")
e(f"s_add_u32 s{sT0}, s{sT0}, {XN}")
e(f"v_add_u32 v4, s{sT0}, v4")
e("v_mul_u32_u24 v5, 272, v5")
e("v_mul_u32_u24 v6, 2176, v6")
e(f"v_and_b32 v7, 1, v{vG}")
e("v_lshl_add_u32 v5, v7, 4, v5")
e(f"s_mul_i32 s{sT0}, s{sW}, 4352")
e(f"s_add_u32 s{sT0}, s{sT0}, {SLAB}")
e(f"v_add3_u32 v5, v5, v6, s{sT0}")
e("s_waitcnt lgkmcnt(0)")
e("s_barrier")
e("ds_read_b128 v[8:11], v4")
e(f"s_waitcnt vmcnt({8+NV})")
ts(4)
transpose(WR, TT)
e("s_waitcnt lgkmcnt(0)")
for cc in range(8): mfma(DD+4*cc, TT+4*cc, 8, None)
e(f"s_mov_b32 exec_lo, 0x00FF00FF")
e(f"s_mov_b32 exec_hi, 0xFF00FF00")
e("s_nop 0")
for cc in range(8): e(f"ds_write_b128 v5, v[{DD+4*cc}:{DD+4*cc+3}] offset:{cc*32}")
e("s_mov_b64 exec, -1")
e(f"s_mul_i32 s{sT0}, s{sW}, 272")
e(f"s_add_u32 s{sT0}, s{sT0}, {SLAB}")
e(f"v_lshl_add_u32 v4, v{vL}, 2, s{sT0}")
e(f"v_and_b32 v5, 7, v{vL}")
e(f"v_lshl_add_u32 v5, v5, 2, v{vG}")
e(f"s_mul_i32 s{sT0}, s{sW}, {YROW}")
e(f"s_lshl_b32 s{sT1}, s{sID}, 8")
e(f"s_add_u32 s{sT0}, s{sT0}, s{sT1}")
e(f"s_add_u32 s{sT0}, s{sT0}, {WS_Y}")
e(f"v_lshl_add_u32 v5, v5, 3, s{sT0}")
e("s_waitcnt lgkmcnt(0)")
e("s_barrier")
for p in range(16): e(f"ds_read_b32 v{TT+p}, v4 offset:{p*2176}")
e(f"v_mov_b32 v7, s{sTAG}")
e("s_waitcnt lgkmcnt(0)")
for st in (8, 4, 2):
    for p in range(0, st, 2): e(f"v_pk_add_f32 v[{TT+p}:{TT+p+1}], v[{TT+p}:{TT+p+1}], v[{TT+st+p}:{TT+st+p+1}]")
e(f"v_add_f32 v6, v{TT}, v{TT+1}")
e("s_nop 1")
e("v_mov_b32_dpp v8, v6 row_ror:8 row_mask:0xf bank_mask:0xf")
e("v_cvt_pk_bf16_f32 v6, v6, v8")
e("s_mov_b32 exec_lo, 0x00FF00FF")
e("s_mov_b32 exec_hi, 0x00FF00FF")
e(f"global_store_dwordx2 v5, v[6:7], s[{sWS}:{sWS+1}] sc1")
e("s_mov_b64 exec, -1")
ts(5)
lab("L_p1done")
c("K fragment addresses, q fragment address")
e(f"v_xor_b32 v16, v{vI}, v{vG}")
e("v_lshlrev_b32 v16, 4, v16")
e(f"v_lshl_add_u32 v16, v{vI}, 8, v16")
e(f"s_lshl_b32 s{sT0}, s{sW}, 13")
e(f"v_add_u32 v16, s{sT0}, v16")
e("v_xor_b32 v17, 64, v16")
e("v_xor_b32 v18, 0x80, v16")
e("v_xor_b32 v19, 0xc0, v16")
e(f"v_and_b32 v22, 3, v{vI}")
e("v_mul_u32_u24 v4, 272, v22")
e(f"v_lshl_add_u32 v4, v{vG}, 4, v4")
e(f"v_add_u32 v4, {QB}, v4")
c("wait own K dma")
if VL:
    e("s_waitcnt vmcnt(0)")
else:
    e(f"s_cmp_eq_u32 s{sROLE}, 3")
    e("s_cbranch_scc1 L_kw3")
    e("s_waitcnt vmcnt(8)") if not opt.get("k9") else e("s_waitcnt vmcnt(9)")
    lab("L_kw3")
    e("s_waitcnt vmcnt(16)")
ts(6)
for t in range(2):
    for cc in range(4): e(f"ds_read_b128 v[{TT+16*t+4*cc}:{TT+16*t+4*cc+3}], v{16+cc} offset:{t*4096}")
e("s_barrier")
ts(7)
for cc in range(4): e(f"ds_read_b128 v[{DD+4*cc}:{DD+4*cc+3}], v4 offset:{cc*64}")
if VL: vwo()
e("s_waitcnt lgkmcnt(0)")
S = DD + 16
for cc in range(4):
    for t in range(2): mfma(S+4*t, TT+16*t+4*cc, DD+4*cc, None if cc == 0 else S+4*t)
e(f"s_mov_b32 s{sT0}, 0x3db504f3")
e(f"s_mov_b32 s{sT1}, 0x3fb8aa3b")
e(f"v_lshlrev_b32 v4, 5, v22")
e(f"s_lshl_b32 s{sT2}, s{sW}, 2")
e(f"s_add_u32 s{sT2}, s{sT2}, {MB}")
e(f"v_add_u32 v5, s{sT2}, v4")
e(f"v_add_u32 v4, {MB}, v4")
e("s_nop 2")
for k in range(4):
    e(f"v_cvt_pk_bf16_f32 v8, v{S+2*k}, v{S+2*k+1}")
    e(f"v_lshlrev_b32 v{S+2*k}, 16, v8")
    e(f"v_and_b32 v{S+2*k+1}, 0xffff0000, v8")
    e(f"v_mul_f32 v{S+2*k}, s{sT0}, v{S+2*k}")
    e(f"v_mul_f32 v{S+2*k+1}, s{sT0}, v{S+2*k+1}")
    e(f"v_cvt_pk_bf16_f32 v8, v{S+2*k}, v{S+2*k+1}")
    e(f"v_lshlrev_b32 v{S+2*k}, 16, v8")
    e(f"v_and_b32 v{S+2*k+1}, 0xffff0000, v8")
e(f"v_max3_f32 v6, v{S}, v{S+1}, v{S+2}")
e(f"v_max3_f32 v6, v6, v{S+3}, v{S+4}")
e(f"v_max3_f32 v6, v6, v{S+5}, v{S+6}")
e(f"v_max_f32 v6, v6, v{S+7}")
xlane("v_max_f32", 6, 7)
for k in range(8): e(f"v_sub_f32 v{S+k}, v{S+k}, v6")
for k in range(8): e(f"v_mul_f32 v{S+k}, s{sT1}, v{S+k}")
for k in range(8): e(f"v_exp_f32 v{S+k}, v{S+k}")
e(f"v_mul_f32 v23, s{sT1}, v6")
e(f"v_add_f32 v7, v{S}, v{S+1}")
for k in range(2, 8): e(f"v_add_f32 v7, v7, v{S+k}")
xlane("v_add_f32", 7, 8)
e("s_mov_b64 exec, 15")
e("ds_write2_b32 v5, v23, v7 offset0:0 offset1:32")
e("s_mov_b64 exec, -1")
e(f"v_mov_b32 v24, v4")
c("down role")
e(f"s_cmp_lg_u32 s{sROLE}, 2")
e("s_cbranch_scc1 L_nodown")
transpose(WR, TT)
e(f"s_sub_u32 s{sT1}, s{sW}, 4")
unit3(HB, SLAB2, sT1)
unit3b()
lab("L_nodown")
e("s_waitcnt lgkmcnt(0)")
e("s_barrier")
e("ds_read_b128 v[8:11], v24")
e("ds_read_b128 v[12:15], v24 offset:16")
e(f"ds_read_b128 v[{DD}:{DD+3}], v24 offset:128")
e(f"ds_read_b128 v[{DD+4}:{DD+7}], v24 offset:144")
e("s_waitcnt lgkmcnt(0)")
e("v_max3_f32 v6, v8, v9, v10")
e("v_max3_f32 v6, v6, v11, v12")
e("v_max3_f32 v6, v6, v13, v14")
e("v_max_f32 v6, v6, v15")
for k in range(8): e(f"v_sub_f32 v{8+k}, v{8+k}, v6")
e("v_sub_f32 v23, v23, v6")
for k in range(8): e(f"v_exp_f32 v{8+k}, v{8+k}")
e("v_exp_f32 v23, v23")
e(f"v_mul_f32 v7, v8, v{DD}")
for k in range(1, 8): e(f"v_fmac_f32 v7, v{8+k}, v{DD+k}")
e("v_rcp_f32 v8, v7")
e("v_log_f32 v7, v7")
e("v_mul_f32 v23, v23, v8")
e("v_add_f32 v6, v6, v7")
for k in range(8): e(f"v_mul_f32 v{S+k}, v23, v{S+k}")
for k in range(4): e(f"v_cvt_pk_bf16_f32 v{S+k}, v{S+2*k}, v{S+2*k+1}")
c("masked P variants -> v[DD+24 .. DD+39] (cq = i>>2)")
PM = DD + 20
e(f"v_lshrrev_b32 v4, 2, v{vI}")
for cq in (3, 2, 1, 0):
    e(f"v_cmp_eq_u32 vcc, {cq}, v4")
    e("s_nop 1")
    for k in range(4): e(f"v_cndmask_b32 v{PM+4*cq+k}, 0, v{S+k}, vcc")
c("lse publish (wave 7): LSE[(hkv*4+head)][b][split]")
e(f"s_cmp_lg_u32 s{sW}, 7")
e("s_cbranch_scc1 L_nolse")
e(f"s_bfe_u32 s{sT0}, s{sID}, 0x30002")
e(f"s_lshl_b32 s{sT0}, s{sT0}, 10")
e(f"s_lshr_b32 s{sT1}, s{sID}, 5")
e(f"s_lshl_b32 s{sT1}, s{sT1}, 5")
e(f"s_add_u32 s{sT0}, s{sT0}, s{sT1}")
e(f"s_and_b32 s{sT1}, s{sID}, 3")
e(f"s_lshl_b32 s{sT1}, s{sT1}, 3")
e(f"s_add_u32 s{sT0}, s{sT0}, s{sT1}")
e(f"s_add_u32 s{sT0}, s{sT0}, {WS_LSE}")
e(f"v_lshl_add_u32 v4, v22, 8, s{sT0}")
e(f"v_mov_b32 v7, s{sTAG}")
e("s_mov_b64 exec, 15")
e(f"global_store_dwordx2 v4, v[6:7], s[{sWS}:{sWS+1}] sc1")
e("s_mov_b64 exec, -1")
lab("L_nolse")
e(f"s_cmp_lt_u32 s{sID}, 128")
e("s_cbranch_scc1 L_nodp")
pub3_addr(25, 26)
e(f"v_add_u32 v25, 65536, v25")
e(f"s_cmp_ge_u32 s{sU_}, 112")
e("s_cbranch_scc1 L_nodp")
pub3(2, 25, 26, WS_DP)
lab("L_nodp")
c("PV slab addresses and o publish address")
e(f"s_lshl_b32 s{sT0}, s{sW}, 11")
e(f"s_add_u32 s{sT0}, s{sT0}, {SLAB}")
e(f"v_lshl_add_u32 v16, v{vL}, 4, s{sT0}")
e(f"v_lshlrev_b32 v17, 2, v0")
e(f"v_add_u32 v17, {SLAB}, v17")
e(f"v_bfe_u32 v4, v{vL}, 2, 2")
e("v_lshlrev_b32 v18, 14, v4")
e(f"v_lshrrev_b32 v4, 5, v{vL}")
e("v_lshl_add_u32 v18, v4, 5, v18")
e(f"v_and_b32 v4, 3, v{vL}")
e("v_lshl_add_u32 v18, v4, 3, v18")
e(f"s_bfe_u32 s{sT0}, s{sID}, 0x30002")
e(f"s_lshl_b32 s{sT0}, s{sT0}, 16")
e(f"s_lshr_b32 s{sT1}, s{sID}, 5")
e(f"s_lshl_b32 s{sT1}, s{sT1}, 11")
e(f"s_add_u32 s{sT0}, s{sT0}, s{sT1}")
e(f"s_and_b32 s{sT1}, s{sID}, 3")
e(f"s_lshl_b32 s{sT1}, s{sT1}, 9")
e(f"s_add_u32 s{sT0}, s{sT0}, s{sT1}")
e(f"s_lshl_b32 s{sT1}, s{sW}, 6")
e(f"s_add_u32 s{sT0}, s{sT0}, s{sT1}")
e(f"s_add_u32 s{sT0}, s{sT0}, {WS_OP}")
e(f"v_add_u32 v18, s{sT0}, v18")
ts(8)
c("wait V")
e(f"s_cmp_eq_u32 s{sROLE}, 3")
e("s_cbranch_scc1 L_vw3")
e("s_waitcnt vmcnt(0)")
lab("L_vw3")
e("s_waitcnt vmcnt(8)")
ts(9)
for q in range(4):
    for j in range(4):
        a, b = VR + 8*j + q, VR + 8*j + 4 + q
        e(f"v_perm_b32 v{TT+8*q+j}, v{b}, v{a}, s{sPL}")
        e(f"v_perm_b32 v{TT+8*q+4+j}, v{b}, v{a}, s{sPH}")
    if q >= 1:
        for cc in (2*q-2, 2*q-1): mfma(DD+4*(cc>>2), TT+4*cc, PM+4*(cc&3), None if (cc&3) == 0 else DD+4*(cc>>2))
e("s_nop 1")
for cc in (6, 7): mfma(DD+4*(cc>>2), TT+4*cc, PM+4*(cc&3), DD+4*(cc>>2))
e(f"ds_write_b128 v16, v[{DD}:{DD+3}]")
e("s_nop 6")
e(f"ds_write_b128 v16, v[{DD+4}:{DD+7}] offset:1024")
e("s_waitcnt lgkmcnt(0)")
e("s_barrier")
for k in range(4): e(f"ds_read2st64_b32 v[{8+2*k}:{9+2*k}], v17 offset0:{16*k} offset1:{16*k+8}")
e(f"v_mov_b32 v7, s{sTAG}")
e("s_waitcnt lgkmcnt(0)")
e("v_pk_add_f32 v[8:9], v[8:9], v[10:11]")
e("v_pk_add_f32 v[12:13], v[12:13], v[14:15]")
e("v_pk_add_f32 v[8:9], v[8:9], v[12:13]")
e("v_add_f32 v8, v8, v9")
e("v_mov_b32 v9, v8")
e("s_nop 1")
e("v_permlane16_swap_b32 v8, v9")
e("s_mov_b32 exec_lo, 0x0000FFFF")
e("s_mov_b32 exec_hi, 0x0000FFFF")
e("v_cvt_pk_bf16_f32 v6, v8, v9")
e(f"global_store_dwordx2 v18, v[6:7], s[{sWS}:{sWS+1}] sc1")
e("s_mov_b64 exec, -1")
ts(10)
e(f"s_cmp_lt_u32 s{sID}, 128")
e("s_cbranch_scc1 L_final")
e(f"s_lshr_b32 s{sT0}, s{sU_}, 2")
e(f"s_lshl_b32 s{sT0}, s{sT0}, 3")
e(f"s_add_u32 s{sT0}, s{sT0}, s{sW}")
e(f"s_lshl_b32 s{sT1}, s{sT0}, 11")
e(f"s_add_u32 s{sT1}, s{sT1}, {WS_OP}")
e(f"v_lshl_add_u32 v16, v{vL}, 3, s{sT1}")
e(f"s_lshl_b32 s{sT1}, s{sT0}, 5")
e(f"s_add_u32 s{sT1}, s{sT1}, {WS_LSE}")
e(f"v_mov_b32 v17, s{sT1}")
e(f"s_cmp_lg_u32 s{sROLE}, 3")
e("s_cbranch_scc1 L_opoll")
e("s_waitcnt vmcnt(1)")
transpose(WR, TT)
unit3(OB, SLAB2, sW)
lab("L_opoll")
O = WR
for s_ in range(4): e(f"global_load_dwordx2 v[{O+2*s_}:{O+2*s_+1}], v16, s[{sWS}:{sWS+1}] offset:{s_*512} sc1")
for s_ in range(2): e(f"global_load_dwordx4 v[{O+8+4*s_}:{O+11+4*s_}], v17, s[{sWS}:{sWS+1}] offset:{s_*16} sc1")
c("obuf write address: b*272 + (16g+4r+2a+e2)*4, lane=(a,g,e2,r)")
e(f"v_bfe_u32 v4, v{vL}, 3, 2")
e("v_lshlrev_b32 v18, 6, v4")
e(f"v_and_b32 v4, 3, v{vL}")
e("v_lshl_add_u32 v18, v4, 4, v18")
e(f"v_lshrrev_b32 v4, 5, v{vL}")
e("v_lshl_add_u32 v18, v4, 3, v18")
e(f"v_and_b32 v4, 4, v{vL}")
e(f"s_mul_i32 s{sT0}, s{sW}, 272")
e(f"s_add_u32 s{sT0}, s{sT0}, {OB}")
e(f"v_add3_u32 v18, v18, v4, s{sT0}")
e("s_waitcnt vmcnt(0)")
tagcheck([O+1+2*k for k in range(8)], 4, 5, "L_opoll", "L_op")
ts(11)
e(f"v_max3_f32 v4, v{O+8}, v{O+10}, v{O+12}")
e(f"v_max_f32 v4, v4, v{O+14}")
for k in range(4): e(f"v_sub_f32 v{8+k}, v{O+8+2*k}, v4")
for k in range(4): e(f"v_exp_f32 v{8+k}, v{8+k}")
for k in range(4):
    e(f"v_and_b32 v{O+2*k+1}, 0xffff0000, v{O+2*k}")
    e(f"v_lshlrev_b32 v{O+2*k}, 16, v{O+2*k}")
e("v_add_f32 v4, v8, v9")
e("v_add_f32 v5, v10, v11")
e("v_add_f32 v4, v4, v5")
e("v_rcp_f32 v4, v4")
e(f"v_mul_f32 v12, v8, v{O}")
e(f"v_mul_f32 v13, v8, v{O+1}")
for k in range(1, 4):
    e(f"v_fmac_f32 v12, v{8+k}, v{O+2*k}")
    e(f"v_fmac_f32 v13, v{8+k}, v{O+2*k+1}")
e("v_mul_f32 v12, v12, v4")
e("v_mul_f32 v13, v13, v4")
e("v_cvt_pk_bf16_f32 v12, v12, v13")
e("ds_write_b32 v18, v12")
e("s_waitcnt lgkmcnt(0)")
e("s_barrier")
e(f"s_cmp_lg_u32 s{sROLE}, 3")
e("s_cbranch_scc1 L_nomf")
unit3b()
lab("L_nomf")
e("s_barrier")
pub3(4, 25, 26, WS_SP)
ts(12)
if DIAG:
    e(f"s_cmp_lg_u32 s{sW}, 0")
    e("s_cbranch_scc1 L_end")
    dump_ts(0, 13)
e("s_endpgm")
lab("L_final")
e(f"s_cmp_lg_u32 s{sW}, 0")
e("s_cbranch_scc1 L_end")
e(f"s_lshl_b32 s{sT0}, s{sID}, 13")
e(f"s_add_u32 s{sT0}, s{sT0}, 4096")
e(f"v_lshl_add_u32 v16, v{vL}, 4, s{sT0}")
base(sB, sWS, WS_DP)
base(sB2, sWS, WS_SP)
c("x / out byte offset: id*64 + 2*(8*r0+2a+hi), second +16")
e(f"v_and_b32 v4, 1, v{vI}")
e("v_lshlrev_b32 v17, 5, v4")
e(f"v_lshrrev_b32 v4, 1, v{vI}")
e("v_lshl_add_u32 v17, v4, 1, v17")
e(f"s_lshl_b32 s{sT0}, s{sID}, 6")
e(f"v_add_u32 v17, s{sT0}, v17")
e(f"global_load_ushort v18, v17, s[{sX}:{sX+1}]")
e(f"global_load_ushort v19, v17, s[{sX}:{sX+1}] offset:16")
def fin_poll(n, sb, name):
    lab(name)
    for j in range(n): e(f"global_load_dwordx4 v[{WR+4*j}:{WR+4*j+3}], v16, s[{sb}:{sb+1}] offset:{j*1024-4096} sc1")
    e("s_waitcnt vmcnt(0)")
    tagcheck([WR+1+2*k for k in range(2*n)], 4, 5, name, name)
    e(f"v_add_f32 v8, v{WR}, v{WR+4}")
    e(f"v_add_f32 v9, v{WR+2}, v{WR+6}")
    for j in range(2, n):
        e(f"v_add_f32 v8, v8, v{WR+4*j}")
        e(f"v_add_f32 v9, v9, v{WR+4*j+2}")
    for sw in ["v_permlane16_swap_b32", "v_permlane32_swap_b32"]:
        e("v_mov_b32 v10, v8")
        e("v_mov_b32 v11, v9")
        e("s_nop 1")
        e(f"{sw} v8, v10")
        e(f"{sw} v9, v11")
        e("s_nop 0")
        e("v_pk_add_f32 v[8:9], v[8:9], v[10:11]")
    e("v_cvt_pk_bf16_f32 v8, v8, v9")
    e("v_and_b32 v9, 0xffff0000, v8")
    e("v_lshlrev_b32 v8, 16, v8")
fin_poll(7, sB, "L_dpoll")
ts(11)
c("g = bf16(silu(d))")
e("v_mul_f32 v10, 0xbfb8aa3b, v8")
e("v_mul_f32 v11, 0xbfb8aa3b, v9")
e("v_exp_f32 v10, v10")
e("v_exp_f32 v11, v11")
e("s_nop 0")
e("v_add_f32 v10, 1.0, v10")
e("v_add_f32 v11, 1.0, v11")
e("v_rcp_f32 v10, v10")
e("v_rcp_f32 v11, v11")
e("s_nop 0")
e("v_mul_f32 v20, v8, v10")
e("v_mul_f32 v21, v9, v11")
e("v_cvt_pk_bf16_f32 v20, v20, v21")
e("v_and_b32 v21, 0xffff0000, v20")
e("v_lshlrev_b32 v20, 16, v20")
e("v_lshlrev_b32 v18, 16, v18")
e("v_lshlrev_b32 v19, 16, v19")
fin_poll(8, sB2, "L_spoll")
e("v_pk_mul_f32 v[8:9], v[8:9], v[20:21]")
e("v_cvt_pk_bf16_f32 v8, v8, v9")
e("v_and_b32 v9, 0xffff0000, v8")
e("v_lshlrev_b32 v8, 16, v8")
e("v_pk_add_f32 v[8:9], v[8:9], v[18:19]")
e("v_cvt_pk_bf16_f32 v8, v8, v9")
e("s_mov_b64 exec, 0xffff")
e(f"global_store_short v17, v8, s[{sOUT}:{sOUT+1}]")
e(f"global_store_short_d16_hi v17, v8, s[{sOUT}:{sOUT+1}] offset:16")
ts(12)
e(f"s_cmp_lg_u32 s{sID}, 0")
e("s_cbranch_scc1 L_fin2")
e("s_mov_b64 exec, 1")
e("v_mov_b32 v4, 0")
e(f"v_mov_b32 v5, s{sTAG}")
e(f"global_store_dword v4, v5, s[{sWS}:{sWS+1}]")
lab("L_fin2")
dump_ts(0, 13)
lab("L_end")
e("s_endpgm")
lab("L_service")
if opt["prio"]: e(f"s_setprio {opt['prio']}")
e("v_mov_b32 v8, 0")
e(f"v_lshlrev_b32 v4, 2, v{vI}")
e(f"v_add_u32 v4, {ZB}, v4")
e("ds_write_b32 v4, v8")
c("q source: Y + b*YROW + hkv*2048 + lane*16 (+1024)")
e(f"s_lshr_b32 s{sT0}, s{sID}, 5")
e(f"s_mul_i32 s{sT0}, s{sT0}, {YROW}")
e(f"s_bfe_u32 s{sT1}, s{sID}, 0x30002")
e(f"s_lshl_b32 s{sT1}, s{sT1}, 11")
e(f"s_add_u32 s{sT0}, s{sT0}, s{sT1}")
e(f"s_add_u32 s{sT0}, s{sT0}, {WS_Y}")
e(f"v_lshl_add_u32 v16, v{vL}, 4, s{sT0}")
e(f"v_lshrrev_b32 v4, 5, v{vL}")
e("v_mul_u32_u24 v17, 272, v4")
e(f"v_and_b32 v4, 31, v{vL}")
e("v_lshl_add_u32 v17, v4, 3, v17")
e(f"v_add_u32 v17, {QB}, v17")
e("s_waitcnt lgkmcnt(0)")
e(f"s_mul_i32 s{sTAG}, s{sTAG}, 0x9E3779B1")
e(f"s_add_u32 s{sTAG}, s{sTAG}, 0x7F4A7C15")
e(f"s_cmp_ge_u32 s{sID}, 120")
e("s_cbranch_scc1 L_sv1")
e("s_barrier")
e("s_barrier")
lab("L_sv1")
ts(2)
lab("L_qpoll")
for u in range(2): e(f"global_load_dwordx4 v[{WR+4*u}:{WR+4*u+3}], v16, s[{sWS}:{sWS+1}] offset:{u*1024} sc1")
e("s_waitcnt vmcnt(0)")
if DIAG:
    e(f"s_cmp_lg_u32 s{sCNT}, {opt['spin']}")
    e("s_cbranch_scc1 L_q2")
    ts(3)
    lab("L_q2")
tagcheck([WR+1+2*k for k in range(4)], 4, 5, "L_qpoll", "L_qp")
ts(4)
e(f"ds_write2_b32 v17, v{WR}, v{WR+2} offset0:0 offset1:1")
e(f"ds_write2_b32 v17, v{WR+4}, v{WR+6} offset0:136 offset1:137")
e(f"s_cmp_ge_u32 s{sU_}, 112")
e("s_cbranch_scc1 L_sv2")
e(f"s_lshr_b32 s{sT0}, s{sU_}, 2")
e(f"s_lshl_b32 s{sT0}, s{sT0}, 8")
e(f"s_add_u32 s{sT0}, s{sT0}, {WS_Y + 16384 + 3584}")
e(f"v_mul_u32_u24 v16, {YROW}, v{vG}")
e(f"v_lshl_add_u32 v16, v{vI}, 4, v16")
e(f"v_add_u32 v16, s{sT0}, v16")
e(f"v_add_u32 v18, {4*YROW}, v16")
e(f"v_mul_u32_u24 v17, 272, v{vG}")
e(f"v_lshl_add_u32 v17, v{vI}, 3, v17")
e(f"v_add_u32 v17, {HB}, v17")
lab("L_hpoll")
for u in range(2):
    e(f"global_load_dwordx4 v[{WR+8*u}:{WR+8*u+3}], v{16+2*u}, s[{sWS}:{sWS+1}] offset:-3584 sc1")
    e(f"global_load_dwordx4 v[{WR+8*u+4}:{WR+8*u+7}], v{16+2*u}, s[{sWS}:{sWS+1}] offset:3584 sc1")
e("s_waitcnt vmcnt(0)")
tagcheck([WR+1+2*k for k in range(8)], 4, 5, "L_hpoll", "L_hp")
for u in range(2):
    for k in range(2):
        g_, u_ = WR+8*u+2*k, WR+8*u+4+2*k
        e(f"v_lshlrev_b32 v4, 16, v{g_}")
        e(f"v_and_b32 v5, 0xffff0000, v{g_}")
        e(f"v_lshlrev_b32 v6, 16, v{u_}")
        e(f"v_and_b32 v7, 0xffff0000, v{u_}")
        e("v_max_f32 v4, 0, v4")
        e("v_max_f32 v5, 0, v5")
        e("v_mul_f32 v4, v4, v6")
        e("v_mul_f32 v5, v5, v7")
        e(f"v_cvt_pk_bf16_f32 v{8+2*u+k}, v4, v5")
e("ds_write_b64 v17, v[8:9]")
e(f"ds_write_b64 v17, v[10:11] offset:{4*272}")
lab("L_sv2")
ts(5)
e("s_waitcnt lgkmcnt(0)")
e("s_barrier")
if DIAG:
    e(f"s_mov_b32 s{sTS+12}, s{sCNT}")
    dump_ts(1, 7)
e("s_endpgm")

hdr = open("cdna_kernels/%s.s.ref" % NAME).read().split("; Override launch")[0]
out = hdr + f"; @launch grid=(256,1,1) block=(576,1,1) lds={LDS}\n"
out += f""".amdgcn_target "amdgcn-amd-amdhsa--gfx950"
.text
.globl {NAME}_kernel
.p2align 8
.type {NAME}_kernel,@function
{NAME}_kernel:
""" + "\n".join(L) + f"""
.section .rodata,"a"
.p2align 6
.amdhsa_kernel {NAME}_kernel
  .amdhsa_next_free_vgpr 164
  .amdhsa_next_free_sgpr 96
  .amdhsa_accum_offset 164
  .amdhsa_group_segment_fixed_size 0
  .amdhsa_kernarg_size 96
  .amdhsa_user_sgpr_count 2
  .amdhsa_user_sgpr_kernarg_segment_ptr 1
  .amdhsa_system_sgpr_workgroup_id_x 1
.end_amdhsa_kernel
"""
open(sys.argv[1], "w").write(out)
```

```python
import sys
NAME = "recurrent_scan__sliding_block_cached__glu_gated_reglu__decode"
opt = dict(diag=0, nt=1, spin=5000, sleep=4, prio=3, th=63, qpipe=1, qsleep=4, k1=4, b2b=1, opipe=1, osleep=4, spipe=1, ssleep=4, kprio=2, vs=4, va=8, vb=8, vc=8, wa=0, wb=0, wc=0, rot=3, opre=0, fpre=1, fsleep=8, lsleep=4, sq=0, qdelay=40, e3=0)
for a in sys.argv[2:]:
    k, v = a.split("="); opt[k] = int(v)
DIAG = opt["diag"]; NT = " nt" if opt["nt"] else ""
L = []
def e(s): L.append("    " + s)
def lab(s): L.append(s + ":")
def c(s): L.append("    ; " + s)
WS_Y, WS_LSE, WS_OP, WS_SP, WS_DP, WS_DIAG = 0x1000, 0x40000, 0x50000, 0x100000, 0x200000, 0x400000
YROW = 30720
W1 = 65536; SLAB = W1; SLAB2 = W1 + 16384; P1S = W1 + 32768; XN = P1S + 8192; QB = XN + 8320; HB = QB + 1088; OB = HB + 2176
MB = OB + 2176; LB = MB + 128; ZB = LB + 128; W3 = (ZB + 128 + 1023) & ~1023; LDS = W3 + 32768
sX, sK, sV, sWQ, sWO, sG, sU, sD, sOUT, sWS = 4, 6, 8, 10, 12, 16, 18, 20, 22, 26
sID, sW, sTAG, sROLE = 28, 29, 30, 31
sB = 32
sB2 = 34
sSTR, sT0, sT1, sT2, sCNT = 36, 37, 38, 39, 40
sPL, sPH = 41, 42
sM = 44
sM2 = 46
sU_ = 48
sTS = 64
vL, vG, vI = 1, 2, 3
WR, VR, TT, DD = 32, 64, 96, 128
nts = [0]
def ts(k):
    if DIAG: e(f"s_memrealtime s[{sTS+2*k}:{sTS+2*k+1}]")
def dump_ts(slot, n):
    if not DIAG: return
    e("s_waitcnt lgkmcnt(0)")
    e(f"s_lshl_b32 s{sT0}, s{sID}, 8")
    e(f"s_add_u32 s{sT0}, s{sT0}, {WS_DIAG + slot*64}")
    e(f"v_mov_b32 v4, s{sT0}")
    e("s_mov_b64 exec, 1")
    for k in range(n):
        e(f"v_mov_b32 v5, s{sTS+2*k}")
        e(f"global_store_dword v4, v5, s[{sWS}:{sWS+1}] offset:{4*k}")
    e("s_getreg_b32 s37, hwreg(HW_REG_XCC_ID)")
    e("v_mov_b32 v5, s37")
    e(f"global_store_dword v4, v5, s[{sWS}:{sWS+1}] offset:60")
    e("s_getreg_b32 s37, hwreg(HW_REG_HW_ID)")
    e("v_mov_b32 v5, s37")
    e(f"global_store_dword v4, v5, s[{sWS}:{sWS+1}] offset:56")
def base(dst, src, off):
    e(f"s_add_u32 s{dst}, s{src}, {off}")
    e(f"s_addc_u32 s{dst+1}, s{src+1}, 0")
def transpose(src, dst):
    for q in range(4):
        for j in range(4):
            a, b = src + 8*j + q, src + 8*j + 4 + q
            e(f"v_perm_b32 v{dst+8*q+j}, v{b}, v{a}, s{sPL}")
            e(f"v_perm_b32 v{dst+8*q+4+j}, v{b}, v{a}, s{sPH}")
def mfma(d, a, b, cc):
    cs = "0" if cc is None else f"v[{cc}:{cc+3}]"
    e(f"v_mfma_f32_16x16x32_bf16 v[{d}:{d+3}], v[{a}:{a+3}], v[{b}:{b+3}], {cs}")
def xlane(op, v, t, full=False):
    if full:
        for m in ["quad_perm:[1,0,3,2]", "quad_perm:[2,3,0,1]", "row_half_mirror", "row_mirror"]:
            e("s_nop 1")
            e(f"{op}_dpp v{v}, v{v}, v{v} {m} row_mask:0xf bank_mask:0xf")
    for sw in ["v_permlane16_swap_b32", "v_permlane32_swap_b32"]:
        e(f"v_mov_b32 v{t}, v{v}")
        e("s_nop 1")
        e(f"{sw} v{v}, v{t}")
        e("s_nop 0")
        e(f"{op} v{v}, v{v}, v{t}")
def rbf(v):
    e(f"v_cvt_pk_bf16_f32 v{v}, v{v}, v{v}")
    e(f"v_and_b32 v{v}, 0xffff0000, v{v}")
def tagcheck(regs, t0, t1, lfail_loop, name, sl=None):
    sl = opt["sleep"] if sl is None else sl
    e(f"v_min3_u32 v{t0}, v{regs[0]}, v{regs[1]}, v{regs[1]}")
    e(f"v_max3_u32 v{t1}, v{regs[0]}, v{regs[1]}, v{regs[1]}")
    for k in range(2, len(regs), 2):
        e(f"v_min3_u32 v{t0}, v{t0}, v{regs[k]}, v{regs[k+1]}")
        e(f"v_max3_u32 v{t1}, v{t1}, v{regs[k]}, v{regs[k+1]}")
    e(f"v_cmp_ne_u32 vcc, s{sTAG}, v{t0}")
    e(f"v_cmp_ne_u32 s[{sM}:{sM+1}], s{sTAG}, v{t1}")
    e(f"s_or_b64 vcc, vcc, s[{sM}:{sM+1}]")
    e(f"s_cbranch_scc0 {name}_ok")
    e(f"s_sub_u32 s{sCNT}, s{sCNT}, 1")
    if sl: e(f"s_sleep {sl}")
    e(f"s_cmp_gt_i32 s{sCNT}, 0")
    e(f"s_cbranch_scc1 {lfail_loop}")
    lab(f"{name}_ok")
def tagcmp(regs, okl):
    e(f"v_min_u32 v4, v{regs[0]}, v{regs[1]}")
    e(f"v_max_u32 v5, v{regs[0]}, v{regs[1]}")
    for k in range(2, len(regs), 2):
        e(f"v_min3_u32 v4, v4, v{regs[k]}, v{regs[k+1]}")
        e(f"v_max3_u32 v5, v5, v{regs[k]}, v{regs[k+1]}")
    e(f"v_cmp_ne_u32 vcc, s{sTAG}, v4")
    e(f"v_cmp_ne_u32 s[{sM}:{sM+1}], s{sTAG}, v5")
    e(f"s_or_b64 vcc, vcc, s[{sM}:{sM+1}]")
    e(f"s_cbranch_scc0 {okl}")
def ppoll(name, D, n, issue, tags, cont, sl, pre=0):
    if pre == D: e(f"s_branch {name}_in")
    for j in range(pre, D-1):
        issue(j)
        if sl: e(f"s_sleep {sl}")
    lab(name)
    for j in range(D):
        issue((j+D-1) % D)
        if j == 0 and pre == D: lab(f"{name}_in")
        e(f"s_waitcnt vmcnt({n*(D-1)})")
        tagcmp(tags(j), f"{name}_{j}")
        if sl: e(f"s_sleep {sl}")
    e(f"s_sub_u32 s{sCNT}, s{sCNT}, 1")
    e(f"s_cmp_gt_i32 s{sCNT}, 0")
    e(f"s_cbranch_scc1 {name}")
    for j in range(D-1, -1, -1):
        lab(f"{name}_{j}")
        cont(j)
        if j: e(f"s_branch {name}_done")
    lab(f"{name}_done")
TH = opt["th"]; K1 = opt["k1"]
def thr():
    if TH < 63: e(f"s_waitcnt vmcnt({TH-1})")
def tagfix():
    e(f"s_mul_i32 s{sTAG}, s{sTAG}, 0x9E3779B1")
    e(f"s_add_u32 s{sTAG}, s{sTAG}, 0x7F4A7C15")
def kdma(lo, hi):
    for jj in range(lo, hi):
        if jj == 4:
            e(f"s_add_u32 s{sT2}, s{sKM}, 4096")
            e(f"s_mov_b32 m0, s{sT2}")
            for q in range(4): e(f"v_xor_b32 v{16+q}, 0x1000, v{16+q}")
        if lo and opt.get("thk"): thr()
        e(f"global_load_lds_dwordx4 v{16+(jj&3)}, s[{sK}:{sK+1}] offset:{(jj&3)*1024}{NT}")
sKM, sTILE, sHB = 49, 50, 51
e("s_load_dwordx16 s[4:19], s[0:1], 0")
e("s_load_dwordx8 s[20:27], s[0:1], 64")
ts(0)
e("s_cmp_ge_u32 s2, 256")
e("s_cbranch_scc1 L_end")
e(f"s_mov_b32 s{sID}, s2")
e("v_lshrrev_b32 v4, 6, v0")
e(f"v_and_b32 v{vL}, 63, v0")
e(f"v_readfirstlane_b32 s{sW}, v4")
e(f"v_bfe_u32 v{vG}, v0, 4, 2")
e(f"v_and_b32 v{vI}, 15, v0")
e(f"s_mov_b32 s{sCNT}, {opt['spin']}")
e(f"s_and_b32 s{sU_}, s{sID}, 127")
c("phase-1 tile T = (id&~15) | (id&7)<<1 | (id>>3)&1")
e(f"s_and_b32 s{sT0}, s{sID}, 7")
e(f"s_lshl_b32 s{sT0}, s{sT0}, 1")
e(f"s_bfe_u32 s{sT1}, s{sID}, 0x10003")
e(f"s_or_b32 s{sT0}, s{sT0}, s{sT1}")
e(f"s_and_b32 s{sT1}, s{sID}, 0xf0")
e(f"s_or_b32 s{sTILE}, s{sT0}, s{sT1}")
e(f"s_movk_i32 s{sSTR}, 3584")
e(f"s_cmp_lt_u32 s{sID}, 128")
e(f"s_cselect_b32 s{sSTR}, 8192, s{sSTR}")
e(f"v_lshrrev_b32 v4, 2, v{vL}")
e(f"v_mul_u32_u24 v12, s{sSTR}, v4")
e(f"v_and_b32 v4, 3, v{vL}")
e("v_lshl_add_u32 v12, v4, 4, v12")
e(f"s_lshl_b32 s{sT0}, s{sW}, 10")
e(f"v_lshl_add_u32 v13, v{vL}, 4, s{sT0}")
e(f"s_lshl_b32 s{sKM}, s{sW}, 13")
e(f"s_lshl_b32 s{sT2}, s{sW}, 12")
e(f"s_add_u32 s{sT2}, s{sT2}, {W1}")
e(f"s_mov_b32 m0, s{sT2}")
e(f"s_lshl_b32 s{sT1}, s{sW}, 6")
e(f"s_mul_i32 s{sT1}, s{sT1}, s{sSTR}")
e(f"s_cmp_lt_u32 s{sTILE}, 184")
e(f"s_cselect_b32 s{sT0}, 0, 56")
e(f"s_and_b32 s{sT2}, s{sTILE}, 127")
e(f"s_sub_u32 s{sT0}, s{sT2}, s{sT0}")
e(f"s_lshl_b32 s{sT0}, s{sT0}, 6")
e(f"s_add_u32 s{sT1}, s{sT1}, s{sT0}")
e(f"s_lshl_b32 s{sT2}, s{sSTR}, 4")
e(f"s_sub_u32 s{sT2}, s{sT2}, 1024")
e("s_waitcnt lgkmcnt(0)")
ts(1)
e(f"s_load_dword s{sTAG}, s[{sWS}:{sWS+1}], 0")
e(f"s_cmp_eq_u32 s{sW}, 8")
e("s_cbranch_scc1 L_service")
e(f"s_cmp_ge_u32 s{sID}, 240")
e("s_cbranch_scc1 L_now1")
e(f"global_load_dwordx4 v[8:11], v13, s[{sX}:{sX+1}]")
e(f"s_cmp_lt_u32 s{sTILE}, 184")
e(f"s_cselect_b64 s[{sB}:{sB+1}], s[{sG}:{sG+1}], s[{sU}:{sU+1}]")
e(f"s_cmp_lt_u32 s{sID}, 128")
e(f"s_cselect_b64 s[{sB}:{sB+1}], s[{sWQ}:{sWQ+1}], s[{sB}:{sB+1}]")
base(sB, sB, f"s{sT1}")
for jj in range(4):
    e(f"global_load_lds_dwordx4 v12, s[{sB}:{sB+1}] offset:{jj*1024}{NT}")
    if jj < 3: e(f"v_add_u32 v12, s{sT2}, v12")
lab("L_now1")
c("KV slice offset: (id>>2)<<20 + 786432 + (id&3)<<16 + wave<<13")
e(f"s_lshr_b32 s{sT0}, s{sID}, 2")
e(f"s_lshl_b32 s{sT0}, s{sT0}, 20")
e(f"s_and_b32 s{sT1}, s{sID}, 3")
e(f"s_lshl_b32 s{sT1}, s{sT1}, 16")
e(f"s_add_u32 s{sT0}, s{sT0}, s{sT1}")
e(f"s_add_u32 s{sT0}, s{sT0}, 786432")
base(sK, sK, f"s{sT0}")
base(sV, sV, f"s{sT0}")
e(f"v_xor_b32 v16, v{vI}, v{vG}")
e("v_lshlrev_b32 v16, 4, v16")
e(f"v_lshl_add_u32 v16, v{vG}, 8, v16")
c("first 4 KB block of this wave: (2w + (w>>2)) ^ r ; the second one is ^1 (spreads the HBM stacks)")
e(f"s_lshr_b32 s{sHB}, s{sW}, 2")
e(f"s_lshl_b32 s{sT1}, s{sW}, 1")
e(f"s_or_b32 s{sHB}, s{sHB}, s{sT1}")
if opt["rot"]:
    e(f"s_bfe_u32 s{sT1}, s{sID}, {0x30000 + opt['rot']:#x}")
    e(f"s_xor_b32 s{sHB}, s{sHB}, s{sT1}")
e(f"s_lshl_b32 s{sHB}, s{sHB}, 12")
e(f"v_or_b32 v16, s{sHB}, v16")
e("v_xor_b32 v17, 64, v16")
e("v_xor_b32 v18, 0x80, v16")
e("v_xor_b32 v19, 0xc0, v16")
e(f"s_mov_b32 m0, s{sKM}")
ts(2)
e(f"s_cmp_ge_u32 s{sID}, 240")
e("s_cbranch_scc1 L_p1skip0")
c("layernorm of row w")
e(f"s_waitcnt vmcnt(4)")
ts(3)
for k in range(4):
    e(f"v_lshlrev_b32 v{TT+2*k}, 16, v{8+k}")
    e(f"v_and_b32 v{TT+2*k+1}, 0xffff0000, v{8+k}")
e(f"v_pk_add_f32 v[4:5], v[{TT}:{TT+1}], v[{TT+2}:{TT+3}]")
e(f"v_pk_add_f32 v[6:7], v[{TT+4}:{TT+5}], v[{TT+6}:{TT+7}]")
e("v_pk_add_f32 v[4:5], v[4:5], v[6:7]")
e("v_add_f32 v4, v4, v5")
xlane("v_add_f32", 4, 5, full=True)
e("v_mul_f32 v4, 0x3b000000, v4")
e(f"v_sub_f32 v5, v{TT}, v4")
e("v_mul_f32 v6, v5, v5")
for k in range(1, 8):
    e(f"v_sub_f32 v5, v{TT+k}, v4")
    e("v_fmac_f32 v6, v5, v5")
xlane("v_add_f32", 6, 5, full=True)
e("v_mul_f32 v6, 0x3b000000, v6")
rbf(4); rbf(6)
e("v_add_f32 v6, 0x3727c5ac, v6")
rbf(6)
e("v_sqrt_f32 v6, v6")
e("s_nop 0")
rbf(6)
e("v_rcp_f32 v6, v6")
for k in range(8): e(f"v_sub_f32 v{TT+k}, v{TT+k}, v4")
for k in range(4):
    e(f"v_cvt_pk_bf16_f32 v{8+k}, v{TT+2*k}, v{TT+2*k+1}")
    e(f"v_lshlrev_b32 v{TT+2*k}, 16, v{8+k}")
    e(f"v_and_b32 v{TT+2*k+1}, 0xffff0000, v{8+k}")
    e(f"v_mul_f32 v{TT+2*k}, v{TT+2*k}, v6")
    e(f"v_mul_f32 v{TT+2*k+1}, v{TT+2*k+1}, v6")
    e(f"v_cvt_pk_bf16_f32 v{8+k}, v{TT+2*k}, v{TT+2*k+1}")
e(f"s_mul_i32 s{sT0}, s{sW}, 1040")
e(f"s_add_u32 s{sT0}, s{sT0}, {XN}")
e(f"v_lshl_add_u32 v4, v{vL}, 4, s{sT0}")
e("ds_write_b128 v4, v[8:11]")
c("xn operand addresses (v6,v7), W tr-read address (v5), slab address (v4)")
e(f"v_and_b32 v5, 7, v{vI}")
e("v_mul_u32_u24 v4, 1040, v5")
e(f"v_lshl_add_u32 v4, v{vG}, 4, v4")
e(f"s_lshl_b32 s{sT0}, s{sW}, 7")
e(f"s_add_u32 s{sT0}, s{sT0}, {XN}")
e(f"v_add_u32 v4, s{sT0}, v4")
e(f"v_mov_b32 v5, {ZB}")
e(f"v_cmp_gt_u32 vcc, 8, v{vI}")
e(f"s_lshl_b32 s{sT0}, s{sW}, 12")
e(f"s_add_u32 s{sT0}, s{sT0}, {W1}")
e("v_cndmask_b32 v6, v5, v4, vcc")
e("v_cndmask_b32 v7, v4, v5, vcc")
e(f"v_lshrrev_b32 v4, 2, v{vI}")
e(f"v_lshl_add_u32 v4, v{vG}, 3, v4")
e(f"v_and_b32 v5, 3, v{vI}")
e("v_lshlrev_b32 v5, 3, v5")
e("v_lshl_add_u32 v5, v4, 6, v5")
e(f"v_add_u32 v5, s{sT0}, v5")
e(f"s_lshl_b32 s{sT0}, s{sW}, 10")
e(f"s_add_u32 s{sT0}, s{sT0}, {P1S}")
e(f"v_lshl_add_u32 v4, v{vL}, 4, s{sT0}")
e("s_waitcnt lgkmcnt(0)")
e("s_barrier")
for ks in range(2):
    for ct in range(2): e(f"ds_read_b128 v[{DD+8*ks+4*ct}:{DD+8*ks+4*ct+3}], v{6+ct} offset:{ks*64}")
kdma(0, K1)
e(f"s_waitcnt vmcnt({K1})")
ts(4)
for ks in range(2):
    for ct in range(2):
        for hh in range(2):
            r = TT+8*ks+4*ct+2*hh
            e(f"ds_read_b64_tr_b16 v[{r}:{r+1}], v5 offset:{ks*2048+hh*256+ct*32}")
e("s_waitcnt lgkmcnt(0)")
for n in range(4): mfma(8, TT+4*n, DD+4*n, None if n == 0 else 8)
e("s_nop 7")
e("ds_write_b128 v4, v[8:11]")
e("s_waitcnt lgkmcnt(0)")
e("s_barrier")
if opt.get("b2b"): e("s_barrier")
e("s_branch L_p1skip")
lab("L_p1skip0")
kdma(0, K1)
lab("L_p1skip")
ts(5)
if opt.get("kprio"): e(f"s_setprio {opt['kprio']}")
kdma(K1, 8) if K1 else (kdma(0, 1), kdma(1, 8))
if opt.get("kprio"): e("s_setprio 0")
e(f"v_lshlrev_b32 v59, 10, v{vG}")
e(f"v_lshl_add_u32 v59, v{vI}, 4, v59")
e(f"v_or_b32 v59, s{sHB}, v59")
e(f"v_xor_b32 v60, 0x1000, v59")
VS = opt["vs"]; VP = [opt["va"], opt["vb"], opt["vc"], 8]
def vload(lo, hi):
    for j in range(lo, hi):
        e(f"global_load_dwordx4 v[{VR+4*j}:{VR+4*j+3}], v{59+(j>>2)}, s[{sV}:{sV+1}] offset:{(j&3)*256}{NT}")
WP = [0, opt["wa"], opt["wb"], opt["wc"], 4]
def w3(p):
    if WP[p] == WP[p+1]: return
    e(f"s_cmp_lg_u32 s{sROLE}, 0")
    e(f"s_cbranch_scc0 L_now3{p}")
    for jj in range(WP[p], WP[p+1]):
        e(f"global_load_lds_dwordx4 v25, s[{sB2}:{sB2+1}] offset:{jj*1024}{NT}")
        if jj < 3: e(f"v_add_u32 v25, 3072, v25")
        if jj == 1: e("v_xor_b32 v25, 0x80, v25")
    lab(f"L_now3{p}")
c("phase-3 role: wo (id>=128) or down (id<56); W3 dma base sB2, voff v25; tr addr v27; operand addr v28; publish v26")
e(f"s_sub_u32 s{sT1}, s{sID}, 56")
e(f"s_cmp_lt_u32 s{sT1}, 72")
e(f"s_cselect_b32 s{sROLE}, 0, 1")
e(f"s_cmp_lt_u32 s{sID}, 128")
e(f"s_cselect_b64 s[{sB2}:{sB2+1}], s[{sD}:{sD+1}], s[{sWO}:{sWO+1}]")
e(f"s_mov_b32 s{sHB}, {WS_SP}")
e(f"s_cselect_b32 s{sHB}, {WS_DP}, s{sHB}")
e(f"s_lshr_b32 s{sT1}, s{sU_}, 2")
e(f"s_lshl_b32 s{sT0}, s{sT1}, 17")
e(f"s_lshl_b32 s{sT1}, s{sT1}, 8")
e(f"s_add_u32 s{sHB}, s{sHB}, s{sT1}")
e(f"s_lshl_b32 s{sT1}, s{sW}, 14")
e(f"s_add_u32 s{sT0}, s{sT0}, s{sT1}")
e(f"s_and_b32 s{sT1}, s{sU_}, 3")
e(f"s_lshl_b32 s{sT2}, s{sT1}, 8")
e(f"s_add_u32 s{sT0}, s{sT0}, s{sT2}")
base(sB2, sB2, f"s{sT0}")
e(f"v_lshlrev_b32 v4, 1, v{vG}")
e(f"v_xor_b32 v4, v4, v{vI}")
e("v_lshlrev_b32 v4, 4, v4")
e(f"v_lshl_add_u32 v25, v{vG}, 10, v4")
e(f"s_lshl_b32 s{sT2}, s{sW}, 12")
e(f"s_add_u32 s{sT2}, s{sT2}, {W3}")
e(f"s_mov_b32 m0, s{sT2}")
E3 = opt["e3"]
if E3: WP = [0, 4, 4, 4, 4]; w3(0); WP = [4]*5
vload(0, VS)
ts(6)
c("address precompute")
e(f"s_mov_b32 s{sPL}, 0x05040100")
e(f"s_mov_b32 s{sPH}, 0x07060302")
e("s_waitcnt lgkmcnt(0)")
tagfix()
e(f"s_and_b32 s{sT1}, s{sU_}, 3")
e(f"s_lshl_b32 s{sT1}, s{sT1}, 15")
e(f"s_add_u32 s{sHB}, s{sHB}, s{sT1}")
e(f"s_lshr_b32 s{sT1}, s{sW}, 1")
e(f"s_lshl_b32 s{sT1}, s{sT1}, 13")
e(f"s_add_u32 s{sHB}, s{sHB}, s{sT1}")
e(f"s_and_b32 s{sT1}, s{sW}, 1")
e(f"s_lshl_b32 s{sT1}, s{sT1}, 7")
e(f"s_add_u32 s{sHB}, s{sHB}, s{sT1}")
e(f"v_and_b32 v4, 7, v{vI}")
e(f"v_lshl_add_u32 v26, v4, 17, s{sHB}")
e(f"v_lshl_add_u32 v26, v{vG}, 5, v26")
e(f"v_lshrrev_b32 v5, 3, v{vI}")
e("v_lshl_add_u32 v26, v5, 4, v26")
e("v_mul_u32_u24 v28, 272, v4")
e(f"v_lshl_add_u32 v28, v{vG}, 4, v28")
e(f"v_add_u32 v28, {OB}, v28")
e(f"v_lshrrev_b32 v4, 2, v{vI}")
e(f"v_bfe_u32 v5, v{vI}, 1, 1")
e(f"s_lshl_b32 s{sT1}, s{sW}, 1")
e(f"v_or_b32 v5, s{sT1}, v5")
e("v_lshlrev_b32 v6, 1, v4")
e("v_xor_b32 v5, v5, v6")
e(f"v_and_b32 v6, 1, v{vG}")
e("v_lshlrev_b32 v6, 3, v6")
e("v_xor_b32 v5, v5, v6")
e(f"v_lshl_add_u32 v4, v{vG}, 3, v4")
e("v_lshlrev_b32 v4, 8, v4")
e("v_lshl_add_u32 v27, v5, 4, v4")
e(f"v_and_b32 v4, 1, v{vI}")
e("v_lshl_add_u32 v27, v4, 3, v27")
e(f"v_add_u32 v27, {W3}, v27")
e(f"v_cmp_lt_u32 s[{sM2}:{sM2+1}], 7, v{vI}")
e(f"v_xor_b32 v16, v{vI}, v{vG}")
e("v_lshlrev_b32 v16, 4, v16")
e(f"v_lshl_add_u32 v16, v{vI}, 8, v16")
e(f"v_add_u32 v16, s{sKM}, v16")
e("v_xor_b32 v17, 64, v16")
e("v_xor_b32 v18, 0x80, v16")
e("v_xor_b32 v19, 0xc0, v16")
e(f"v_and_b32 v22, 3, v{vI}")
e("v_mul_u32_u24 v23, 272, v22")
e(f"v_lshl_add_u32 v23, v{vG}, 4, v23")
e(f"v_add_u32 v23, {QB}, v23")
e(f"v_lshlrev_b32 v4, 5, v22")
e(f"s_lshl_b32 s{sT2}, s{sW}, 2")
e(f"v_add_u32 v24, {MB}, v4")
e(f"v_add_u32 v29, s{sT2}, v24")
e(f"s_lshr_b32 s{sT0}, s{sU_}, 2")
e(f"s_lshl_b32 s{sT0}, s{sT0}, 3")
e(f"s_add_u32 s{sT0}, s{sT0}, s{sW}")
e(f"s_lshl_b32 s{sT1}, s{sT0}, 5")
e(f"s_add_u32 s{sT1}, s{sT1}, {WS_LSE}")
e(f"v_mov_b32 v57, s{sT1}")
e(f"s_lshl_b32 s{sT1}, s{sT0}, 11")
e(f"s_add_u32 s{sT1}, s{sT1}, {WS_OP}")
e(f"v_lshl_add_u32 v56, v{vL}, 3, s{sT1}")
c("obuf write address: b*272 + (16g+4r+2a+e2)*4, lane=(a,g,e2,r)")
e(f"v_bfe_u32 v4, v{vL}, 3, 2")
e("v_lshlrev_b32 v58, 6, v4")
e(f"v_and_b32 v4, 3, v{vL}")
e("v_lshl_add_u32 v58, v4, 4, v58")
e(f"v_lshrrev_b32 v4, 5, v{vL}")
e("v_lshl_add_u32 v58, v4, 3, v58")
e(f"v_and_b32 v4, 4, v{vL}")
e(f"s_mul_i32 s{sT0}, s{sW}, 272")
e(f"s_add_u32 s{sT0}, s{sT0}, {OB}")
e(f"v_add3_u32 v58, v58, v4, s{sT0}")
c("PV slab write v30, read v31, o publish v20")
e(f"s_lshl_b32 s{sT0}, s{sW}, 11")
e(f"s_add_u32 s{sT0}, s{sT0}, {SLAB}")
e(f"v_lshl_add_u32 v30, v{vL}, 4, s{sT0}")
e(f"v_lshlrev_b32 v31, 2, v0")
e(f"v_add_u32 v31, {SLAB}, v31")
e(f"v_bfe_u32 v4, v{vL}, 2, 2")
e("v_lshlrev_b32 v20, 14, v4")
e(f"v_lshrrev_b32 v4, 5, v{vL}")
e("v_lshl_add_u32 v20, v4, 5, v20")
e(f"v_and_b32 v4, 3, v{vL}")
e("v_lshl_add_u32 v20, v4, 3, v20")
e(f"s_bfe_u32 s{sT0}, s{sID}, 0x30002")
e(f"s_lshl_b32 s{sT0}, s{sT0}, 16")
e(f"s_lshr_b32 s{sT1}, s{sID}, 5")
e(f"s_lshl_b32 s{sT1}, s{sT1}, 11")
e(f"s_add_u32 s{sT0}, s{sT0}, s{sT1}")
e(f"s_and_b32 s{sT1}, s{sID}, 3")
e(f"s_lshl_b32 s{sT1}, s{sT1}, 9")
e(f"s_add_u32 s{sT0}, s{sT0}, s{sT1}")
e(f"s_lshl_b32 s{sT1}, s{sW}, 6")
e(f"s_add_u32 s{sT0}, s{sT0}, s{sT1}")
e(f"s_add_u32 s{sT0}, s{sT0}, {WS_OP}")
e(f"v_add_u32 v20, s{sT0}, v20")
def vwait(n, nm):
    e(f"s_cbranch_scc1 {nm}")
    e(f"s_waitcnt vmcnt({n})")
    lab(nm)
    e(f"s_waitcnt vmcnt({n+4})")
if E3:
    e(f"s_cmp_lg_u32 s{sROLE}, 0")
    vwait(VS, "L_kw")
else: e(f"s_waitcnt vmcnt({VS})")
for t in range(2):
    for cc in range(4): e(f"ds_read_b128 v[{TT+16*t+4*cc}:{TT+16*t+4*cc+3}], v{16+cc} offset:{t*4096}")
e(f"s_mov_b32 s{sT0}, 0x3db504f3")
e(f"s_mov_b32 s{sT1}, 0x3fb8aa3b")
e("s_barrier")
ts(7)
for cc in range(4): e(f"ds_read_b128 v[{DD+4*cc}:{DD+4*cc+3}], v23 offset:{cc*64}")
e("s_waitcnt lgkmcnt(0)")
S = DD + 16
for cc in range(4):
    for t in range(2): mfma(S+4*t, TT+16*t+4*cc, DD+4*cc, None if cc == 0 else S+4*t)
vload(VS, VP[0])
w3(0)
e("s_nop 7")
for k in range(4): e(f"v_cvt_pk_bf16_f32 v{8+k}, v{S+2*k}, v{S+2*k+1}")
for k in range(4):
    e(f"v_lshlrev_b32 v{S+2*k}, 16, v{8+k}")
    e(f"v_and_b32 v{S+2*k+1}, 0xffff0000, v{8+k}")
for k in range(8): e(f"v_mul_f32 v{S+k}, s{sT0}, v{S+k}")
for k in range(4): e(f"v_cvt_pk_bf16_f32 v{8+k}, v{S+2*k}, v{S+2*k+1}")
for k in range(4):
    e(f"v_lshlrev_b32 v{S+2*k}, 16, v{8+k}")
    e(f"v_and_b32 v{S+2*k+1}, 0xffff0000, v{8+k}")
e(f"v_max3_f32 v6, v{S}, v{S+1}, v{S+2}")
e(f"v_max3_f32 v7, v{S+3}, v{S+4}, v{S+5}")
e(f"v_max3_f32 v6, v6, v{S+6}, v{S+7}")
e(f"v_max_f32 v6, v6, v7")
xlane("v_max_f32", 6, 7)
e(f"v_mul_f32 v23, s{sT1}, v6")
for k in range(8): e(f"v_fma_f32 v{S+k}, v{S+k}, s{sT1}, -v23")
for k in range(8): e(f"v_exp_f32 v{S+k}, v{S+k}")
e("s_nop 0")
e(f"v_pk_add_f32 v[4:5], v[{S}:{S+1}], v[{S+2}:{S+3}]")
e(f"v_pk_add_f32 v[6:7], v[{S+4}:{S+5}], v[{S+6}:{S+7}]")
e("v_pk_add_f32 v[4:5], v[4:5], v[6:7]")
e("v_add_f32 v7, v4, v5")
xlane("v_add_f32", 7, 8)
e("s_mov_b64 exec, 15")
e("ds_write2_b32 v29, v23, v7 offset0:0 offset1:32")
e("s_mov_b64 exec, -1")
vload(VP[0], VP[1])
w3(1)
e("s_waitcnt lgkmcnt(0)")
e("s_barrier")
vload(VP[1], VP[2])
w3(2)
def mlcomb():
    e("ds_read_b128 v[8:11], v24")
    e("ds_read_b128 v[12:15], v24 offset:16")
    e(f"ds_read_b128 v[{DD}:{DD+3}], v24 offset:128")
    e(f"ds_read_b128 v[{DD+4}:{DD+7}], v24 offset:144")
    e("s_waitcnt lgkmcnt(0)")
    e("v_max3_f32 v6, v8, v9, v10")
    e("v_max3_f32 v7, v11, v12, v13")
    e("v_max3_f32 v6, v6, v14, v15")
    e("v_max_f32 v6, v6, v7")
    for k in range(8): e(f"v_sub_f32 v{8+k}, v{8+k}, v6")
    for k in range(8): e(f"v_exp_f32 v{8+k}, v{8+k}")
    e(f"v_mul_f32 v7, v8, v{DD}")
    for k in range(1, 8): e(f"v_fmac_f32 v7, v{8+k}, v{DD+k}")
mlcomb()
e("v_sub_f32 v23, v23, v6")
e("v_rcp_f32 v8, v7")
e("v_exp_f32 v23, v23")
e(f"v_lshrrev_b32 v4, 2, v{vI}")
e("v_mul_f32 v23, v23, v8")
for k in range(8): e(f"v_mul_f32 v{S+k}, v23, v{S+k}")
for k in range(4): e(f"v_cvt_pk_bf16_f32 v{S+k}, v{S+2*k}, v{S+2*k+1}")
PM = DD + 20
for k in range(16): e(f"v_mov_b32 v{PM+k}, 0")
for cq in range(4):
    m = 0x000F000F << (4*cq)
    e(f"s_mov_b32 exec_lo, {m:#x}")
    e(f"s_mov_b32 exec_hi, {m:#x}")
    for k in range(0, 4, 2): e(f"v_pk_mov_b32 v[{PM+4*cq+k}:{PM+4*cq+k+1}], v[{S+k}:{S+k+1}], v[{S+k}:{S+k+1}] op_sel:[0,1]")
e("s_mov_b64 exec, -1")
e(f"v_mov_b32 v7, s{sTAG}")
ts(8)
vload(VP[2], 8)
w3(3)
e(f"s_cmp_lg_u32 s{sROLE}, 0")
for j in range(4):
    if E3: e(f"s_waitcnt vmcnt({6-2*j})")
    else: vwait(6-2*j, f"L_vw{j}")
    if j == 3: ts(9)
    for q in range(4):
        a, b = VR + 8*j + q, VR + 8*j + 4 + q
        e(f"v_perm_b32 v{TT+8*q+j}, v{b}, v{a}, s{sPL}")
        e(f"v_perm_b32 v{TT+8*q+4+j}, v{b}, v{a}, s{sPH}")
for cc in range(8): mfma(DD+4*(cc>>2), TT+4*cc, PM+4*(cc&3), None if (cc&3) == 0 else DD+4*(cc>>2))
e("s_nop 3")
e(f"ds_write_b128 v30, v[{DD}:{DD+3}]")
e("s_nop 2")
e(f"ds_write_b128 v30, v[{DD+4}:{DD+7}] offset:1024")
e("s_waitcnt lgkmcnt(0)")
e("s_barrier")
for k in range(4): e(f"ds_read2st64_b32 v[{8+2*k}:{9+2*k}], v31 offset0:{16*k} offset1:{16*k+8}")
e("s_waitcnt lgkmcnt(0)")
e("v_pk_add_f32 v[8:9], v[8:9], v[10:11]")
e("v_pk_add_f32 v[12:13], v[12:13], v[14:15]")
e("v_pk_add_f32 v[8:9], v[8:9], v[12:13]")
e("v_add_f32 v10, v8, v9")
e("v_add_f32 v11, v8, v9")
e("s_nop 1")
e("v_permlane16_swap_b32 v10, v11")
e("s_mov_b32 exec_lo, 0x0000FFFF")
e("s_mov_b32 exec_hi, 0x0000FFFF")
e("v_cvt_pk_bf16_f32 v6, v10, v11")
e(f"global_store_dwordx2 v20, v[6:7], s[{sWS}:{sWS+1}] sc1")
e("s_mov_b64 exec, -1")
ts(10)
def trread():
    for ks in range(4):
        for hh in range(2): e(f"ds_read_b64_tr_b16 v[{TT+4*ks+2*hh}:{TT+4*ks+2*hh+1}], v27 offset:{ks*8192+hh*1024}")
if E3: trread()
O = VR
e(f"s_cmp_lt_u32 s{sID}, 128")
e("s_cbranch_scc1 L_lo")
def lissue():
    for s_ in range(2): e(f"global_load_dwordx4 v[{O+4*s_}:{O+3+4*s_}], v57, s[{sWS}:{sWS+1}] offset:{s_*16} sc1")
def oissue(j):
    for s_ in range(4): e(f"global_load_dwordx2 v[{WR+8*j+2*s_}:{WR+8*j+2*s_+1}], v56, s[{sWS}:{sWS+1}] offset:{s_*512} sc1")
def ocont(j):
    R = WR+8*j
    for k in range(4):
        e(f"v_and_b32 v{R+2*k+1}, 0xffff0000, v{R+2*k}")
        e(f"v_lshlrev_b32 v{R+2*k}, 16, v{R+2*k}")
    e(f"v_pk_mul_f32 v[12:13], v[{R}:{R+1}], v[8:9] op_sel_hi:[1,0]")
    e(f"v_pk_mul_f32 v[14:15], v[{R+2}:{R+3}], v[8:9] op_sel:[0,1] op_sel_hi:[1,1]")
    e(f"v_pk_fma_f32 v[12:13], v[{R+4}:{R+5}], v[10:11], v[12:13] op_sel_hi:[1,0,1]")
    e(f"v_pk_fma_f32 v[14:15], v[{R+6}:{R+7}], v[10:11], v[14:15] op_sel:[0,1,0] op_sel_hi:[1,1,1]")
OD = opt["opipe"]
lab("L_lpoll")
lissue()
PRE = opt["opre"]
if PRE: oissue(0)
e(f"s_waitcnt vmcnt({4*PRE})")
tagcheck([O+1+2*k for k in range(4)], 4, 5, "L_lpoll", "L_lp", opt["lsleep"])
if not PRE: oissue(0); PRE = 1
e(f"v_max3_f32 v4, v{O}, v{O+2}, v{O+4}")
e(f"v_max_f32 v4, v4, v{O+6}")
for k in range(4): e(f"v_sub_f32 v{8+k}, v{O+2*k}, v4")
for k in range(4): e(f"v_exp_f32 v{8+k}, v{8+k}")
e("s_nop 0")
e("v_pk_add_f32 v[4:5], v[8:9], v[10:11]")
e("v_add_f32 v4, v4, v5")
e("v_rcp_f32 v4, v4")
e("s_nop 0")
for k in range(4): e(f"v_mul_f32 v{8+k}, v{8+k}, v4")
ppoll("L_op", OD, 4, oissue, lambda j: [WR+8*j+1+2*k for k in range(4)], ocont, opt["osleep"], PRE)
ts(11)
e("v_pk_add_f32 v[12:13], v[12:13], v[14:15]")
e("v_cvt_pk_bf16_f32 v12, v12, v13")
e("ds_write_b32 v58, v12")
e("s_waitcnt lgkmcnt(0)")
if not E3: lab("L_mf")
e("s_barrier")
if E3: lab("L_mf")
for ks in range(4): e(f"ds_read_b128 v[{DD+4*ks}:{DD+4*ks+3}], v28 offset:{ks*64}")
if not E3: trread()
e(f"v_mov_b32 v13, s{sTAG}")
e(f"v_mov_b32 v15, s{sTAG}")
for ks in range(4):
    e(f"s_waitcnt lgkmcnt({3-ks if E3 else 6-2*ks})")
    mfma(8, TT+4*ks, DD+4*ks, None if ks == 0 else 8)
e("s_nop 7")
e(f"v_cndmask_b32 v12, v8, v10, s[{sM2}:{sM2+1}]")
e(f"v_cndmask_b32 v14, v9, v11, s[{sM2}:{sM2+1}]")
e(f"global_store_dwordx4 v26, v[12:15], s[{sWS}:{sWS+1}] sc1")
e(f"s_cmp_lt_u32 s{sID}, 128")
e("s_cbranch_scc1 L_final")
ts(12)
if DIAG:
    e(f"s_cmp_lg_u32 s{sW}, 0")
    e("s_cbranch_scc1 L_end")
    dump_ts(0, 13)
e("s_endpgm")
lab("L_lo")
e(f"s_cmp_ge_u32 s{sID}, 56")
e("s_cbranch_scc1 L_final")
if not E3: e("s_waitcnt vmcnt(1)")
e("s_branch L_mf")
lab("L_final")
e(f"s_cmp_lg_u32 s{sW}, 0")
e("s_cbranch_scc1 L_end")
e(f"s_lshl_b32 s{sT0}, s{sID}, 13")
e(f"s_add_u32 s{sT0}, s{sT0}, 4096")
e(f"v_lshl_add_u32 v16, v{vL}, 4, s{sT0}")
base(sB, sWS, WS_DP)
base(sB2, sWS, WS_SP)
e(f"s_lshl_b32 s{sT0}, s{sID}, 6")
e(f"v_lshl_add_u32 v17, v{vI}, 2, s{sT0}")
e(f"global_load_dword v18, v17, s[{sX}:{sX+1}]")
def fsum(R, n):
    e(f"v_add_f32 v8, v{R}, v{R+4}")
    e(f"v_add_f32 v9, v{R+2}, v{R+6}")
    e(f"v_add_f32 v10, v{R+8}, v{R+12}")
    e(f"v_add_f32 v11, v{R+10}, v{R+14}")
    for j in range(4, n):
        e(f"v_add_f32 v{8+2*(j&1)}, v{8+2*(j&1)}, v{R+4*j}")
        e(f"v_add_f32 v{9+2*(j&1)}, v{9+2*(j&1)}, v{R+4*j+2}")
def fred():
    e("v_pk_add_f32 v[8:9], v[8:9], v[10:11]")
    e("s_nop 1")
    e("v_permlane32_swap_b32 v8, v9")
    e("s_nop 0")
    e("v_add_f32 v8, v8, v9")
    e("v_mov_b32 v9, v8")
    e("s_nop 1")
    e("v_permlane16_swap_b32 v8, v9")
    e("s_nop 0")
    e("v_add_f32 v8, v8, v9")
    rbf(8)
e(f"v_mov_b32 v{DD+12}, 0")
e(f"v_mov_b32 v{DD+13}, s{sTAG}")
e(f"v_mov_b32 v{DD+14}, 0")
e(f"v_mov_b32 v{DD+15}, s{sTAG}")
if opt["fpre"]:
    c("cheap pre-wait: every workgroup has published its lse")
    e(f"v_lshlrev_b32 v6, 10, v{vG}")
    e(f"v_lshl_add_u32 v6, v{vI}, 4, v6")
    e(f"v_add_u32 v6, {WS_LSE + 4096}, v6")
    lab("L_fpoll")
    for u in range(2): e(f"global_load_dwordx4 v[{WR+4*u}:{WR+4*u+3}], v6, s[{sWS}:{sWS+1}] offset:{u*4096-4096} sc1")
    e("s_waitcnt vmcnt(0)")
    tagcheck([WR+1+2*k for k in range(4)], 4, 5, "L_fpoll", "L_fp", opt["fsleep"])
lab("L_dpoll")
for j in range(4):
    if j == 3: e("s_mov_b32 exec_hi, 0")
    e(f"global_load_dwordx4 v[{DD+4*j}:{DD+4*j+3}], v16, s[{sB}:{sB+1}] offset:{j*1024-4096} sc1")
e("s_mov_b32 exec_hi, -1")
def sissue(j):
    for k in range(8): e(f"global_load_dwordx4 v[{WR+32*j+4*k}:{WR+32*j+4*k+3}], v16, s[{sB2}:{sB2+1}] offset:{k*1024-4096} sc1")
sissue(0)
e("s_waitcnt vmcnt(8)")
tagcheck([DD+1+2*k for k in range(8)], 4, 5, "L_dpoll", "L_dp")
SD = opt["spipe"]
fsum(DD, 4)
fred()
ts(11)
c("g = bf16(silu(d)); x half for this lane")
e("v_mul_f32 v10, 0xbfb8aa3b, v8")
e("v_exp_f32 v10, v10")
e("v_lshlrev_b32 v19, 16, v18")
e("v_add_f32 v10, 1.0, v10")
e("v_rcp_f32 v10, v10")
e("v_and_b32 v18, 0xffff0000, v18")
e("v_mul_f32 v20, v8, v10")
rbf(20)
e("s_mov_b32 exec_hi, 0")
e("v_mov_b32 v18, v19")
e("s_mov_b32 exec_hi, -1")
e(f"v_lshrrev_b32 v4, 5, v{vL}")
e("v_lshl_add_u32 v17, v4, 1, v17")
ppoll("L_sp", SD, 8, sissue, lambda j: [WR+32*j+1+2*k for k in range(16)], lambda j: fsum(WR+32*j, 8), opt["ssleep"], 1)
fred()
e("v_mul_f32 v8, v8, v20")
rbf(8)
e("v_add_f32 v8, v8, v18")
e("v_cvt_pk_bf16_f32 v8, v8, v8")
e("s_mov_b32 exec_lo, 0xffff")
e("s_mov_b32 exec_hi, 0xffff")
e(f"global_store_short v17, v8, s[{sOUT}:{sOUT+1}]")
ts(12)
e(f"s_cmp_lg_u32 s{sID}, 0")
e("s_cbranch_scc1 L_fin2")
e("s_mov_b64 exec, 1")
e("v_mov_b32 v4, 0")
e(f"v_mov_b32 v5, s{sTAG}")
e(f"global_store_dword v4, v5, s[{sWS}:{sWS+1}]")
lab("L_fin2")
dump_ts(0, 13)
lab("L_end")
e("s_endpgm")
lab("L_service")
if opt["prio"]: e(f"s_setprio {opt['prio']}")
e("v_mov_b32 v8, 0")
e(f"v_and_b32 v4, 31, v{vL}")
e("v_lshlrev_b32 v4, 2, v4")
e(f"v_add_u32 v4, {ZB}, v4")
e("ds_write_b32 v4, v8")
c("q source: Y + b*YROW + hkv*2048 + lane*16 (+1024)")
e(f"s_lshr_b32 s{sT0}, s{sID}, 5")
e(f"s_mul_i32 s{sT0}, s{sT0}, {YROW}")
e(f"s_bfe_u32 s{sT1}, s{sID}, 0x30002")
e(f"s_lshl_b32 s{sT1}, s{sT1}, 11")
e(f"s_add_u32 s{sT0}, s{sT0}, s{sT1}")
e(f"s_add_u32 s{sT0}, s{sT0}, {WS_Y}")
e(f"v_lshl_add_u32 v16, v{vL}, 4, s{sT0}")
base(sB, sWS, f"s{sT0}")
e(f"v_lshrrev_b32 v4, 5, v{vL}")
e("v_mul_u32_u24 v17, 272, v4")
e(f"v_and_b32 v4, 31, v{vL}")
e("v_lshl_add_u32 v17, v4, 3, v17")
e(f"v_add_u32 v17, {QB}, v17")
c("h source v26..v29, h dest v20")
e(f"s_lshr_b32 s{sT0}, s{sU_}, 2")
e(f"s_lshl_b32 s{sT0}, s{sT0}, 9")
e(f"s_add_u32 s{sT0}, s{sT0}, {WS_Y + 16384 + 3584}")
e(f"v_lshrrev_b32 v5, 5, v{vL}")
e(f"v_mul_u32_u24 v26, {YROW}, v5")
e(f"v_lshl_add_u32 v26, v4, 4, v26")
e(f"v_add_u32 v26, s{sT0}, v26")
for j in range(1, 4): e(f"v_add_u32 v{26+j}, {2*j*YROW}, v26")
e(f"v_add_u32 v20, {OB - QB}, v17")
c("slab read v21, Y publish v22, ml read v24, lse publish v25")
e(f"v_lshlrev_b32 v21, 4, v{vL}")
e(f"v_add_u32 v21, {P1S}, v21")
e(f"v_and_b32 v4, 7, v{vI}")
e(f"v_mul_u32_u24 v22, {YROW}, v4")
e(f"v_lshrrev_b32 v4, 3, v{vI}")
e("v_lshl_add_u32 v22, v4, 6, v22")
e(f"v_lshl_add_u32 v22, v{vG}, 4, v22")
e(f"s_lshl_b32 s{sT0}, s{sTILE}, 7")
e(f"s_add_u32 s{sT0}, s{sT0}, {WS_Y}")
e(f"v_add_u32 v22, s{sT0}, v22")
e(f"v_and_b32 v4, 3, v{vI}")
e("v_lshlrev_b32 v24, 5, v4")
e(f"v_add_u32 v24, {MB}, v24")
e(f"s_bfe_u32 s{sT0}, s{sID}, 0x30002")
e(f"s_lshl_b32 s{sT0}, s{sT0}, 10")
e(f"s_and_b32 s{sT1}, s{sID}, 0xe0")
e(f"s_add_u32 s{sT0}, s{sT0}, s{sT1}")
e(f"s_and_b32 s{sT1}, s{sID}, 3")
e(f"s_lshl_b32 s{sT1}, s{sT1}, 3")
e(f"s_add_u32 s{sT0}, s{sT0}, s{sT1}")
e(f"s_add_u32 s{sT0}, s{sT0}, {WS_LSE}")
e(f"v_lshl_add_u32 v25, v4, 8, s{sT0}")
e("s_waitcnt lgkmcnt(0)")
tagfix()
e(f"v_mov_b32 v13, s{sTAG}")
e(f"v_mov_b32 v15, s{sTAG}")
e(f"s_cmp_ge_u32 s{sID}, 240")
e("s_cbranch_scc1 L_sv1")
e("s_barrier")
e("s_barrier")
for p in range(8): e(f"ds_read_b128 v[{TT+4*p}:{TT+4*p+3}], v21 offset:{p*1024}")
for p in range(4):
    e(f"s_waitcnt lgkmcnt({3-p})")
    for k in (0, 2): e(f"v_pk_add_f32 v[{TT+4*p+k}:{TT+4*p+k+1}], v[{TT+4*p+k}:{TT+4*p+k+1}], v[{TT+16+4*p+k}:{TT+16+4*p+k+1}]")
for p in range(2):
    for k in (0, 2): e(f"v_pk_add_f32 v[{TT+4*p+k}:{TT+4*p+k+1}], v[{TT+4*p+k}:{TT+4*p+k+1}], v[{TT+8+4*p+k}:{TT+8+4*p+k+1}]")
for k in (0, 2): e(f"v_pk_add_f32 v[{TT+k}:{TT+k+1}], v[{TT+k}:{TT+k+1}], v[{TT+4+k}:{TT+4+k+1}]")
e(f"v_cvt_pk_bf16_f32 v12, v{TT}, v{TT+1}")
e(f"v_cvt_pk_bf16_f32 v14, v{TT+2}, v{TT+3}")
e(f"global_store_dwordx4 v22, v[12:15], s[{sWS}:{sWS+1}] sc1")
if opt.get("b2b"): e("s_barrier")
lab("L_sv1")
ts(2)
D = opt["qpipe"]
def qissue(j):
    for u in range(2): e(f"global_load_dwordx4 v[{WR+8*j+4*u}:{WR+8*j+4*u+3}], v16, s[{sWS}:{sWS+1}] offset:{u*1024} sc1")
def qwrite(j):
    e(f"ds_write2_b32 v17, v{WR+8*j}, v{WR+8*j+2} offset0:0 offset1:1")
    e(f"ds_write2_b32 v17, v{WR+8*j+4}, v{WR+8*j+6} offset0:136 offset1:137")
if opt["qdelay"]: e(f"s_sleep {opt['qdelay']}")
if opt["sq"]:
    c("scalar pre-wait: one tag of each of the 16 producers")
    lab("L_sq")
    for p in range(16): e(f"s_load_dword s{4+p}, s[{sB}:{sB+1}], {128*p+4} glc")
    e("s_waitcnt lgkmcnt(0)")
    e(f"s_xor_b32 s{sT0}, s4, s{sTAG}")
    for p in range(1, 16):
        e(f"s_xor_b32 s{sT1}, s{4+p}, s{sTAG}")
        e(f"s_or_b32 s{sT0}, s{sT0}, s{sT1}")
    e("s_cbranch_scc0 L_sqok")
    e(f"s_sub_u32 s{sCNT}, s{sCNT}, 1")
    if opt["sq"] > 1: e(f"s_sleep {opt['sq']}")
    e(f"s_cmp_gt_i32 s{sCNT}, 0")
    e("s_cbranch_scc1 L_sq")
    lab("L_sqok")
    ts(1)
ppoll("L_qp", D, 2, qissue, lambda j: [WR+8*j+1+2*k for k in range(4)], qwrite, opt["qsleep"])
ts(4)
def hissue():
    for u in range(4):
        e(f"global_load_dwordx4 v[{VR+8*u}:{VR+8*u+3}], v{26+u}, s[{sWS}:{sWS+1}] offset:-3584 sc1")
        e(f"global_load_dwordx4 v[{VR+8*u+4}:{VR+8*u+7}], v{26+u}, s[{sWS}:{sWS+1}] offset:3584 sc1")
e("s_waitcnt lgkmcnt(0)")
e("s_barrier")
e(f"s_cmp_ge_u32 s{sID}, 56")
e("s_cbranch_scc1 L_sv2")
hissue()
lab("L_sv2")
e("s_barrier")
mlcomb()
e("v_log_f32 v7, v7")
e(f"v_mov_b32 v9, s{sTAG}")
e("v_add_f32 v8, v6, v7")
e("s_mov_b64 exec, 15")
e(f"global_store_dwordx2 v25, v[8:9], s[{sWS}:{sWS+1}] sc1")
e("s_mov_b64 exec, -1")
ts(3)
e(f"s_cmp_ge_u32 s{sID}, 56")
e("s_cbranch_scc1 L_sv3")
e("s_waitcnt vmcnt(1)")
e("s_branch L_hchk")
lab("L_hpoll")
hissue()
e("s_waitcnt vmcnt(0)")
lab("L_hchk")
tagcheck([VR+1+2*k for k in range(16)], 4, 5, "L_hpoll", "L_hp")
for u in range(4):
    for k in range(2):
        g_, u_ = VR+8*u+2*k, VR+8*u+4+2*k
        e(f"v_lshlrev_b32 v4, 16, v{g_}")
        e(f"v_and_b32 v5, 0xffff0000, v{g_}")
        e(f"v_lshlrev_b32 v6, 16, v{u_}")
        e(f"v_and_b32 v7, 0xffff0000, v{u_}")
        e("v_max_f32 v4, 0, v4")
        e("v_max_f32 v5, 0, v5")
        e("v_mul_f32 v4, v4, v6")
        e("v_mul_f32 v5, v5, v7")
        e(f"v_cvt_pk_bf16_f32 v{8+2*u+k}, v4, v5")
for u in range(4): e(f"ds_write_b64 v20, v[{8+2*u}:{9+2*u}] offset:{u*544}")
ts(5)
e("s_waitcnt lgkmcnt(0)")
e("s_barrier")
lab("L_sv3")
if DIAG:
    e(f"s_mov_b32 s{sTS+12}, s{sCNT}")
    dump_ts(1, 7)
e("s_endpgm")

hdr = open("cdna_kernels/%s.s.ref" % NAME).read().split("; Override launch")[0]
out = hdr + f"; @launch grid=(256,1,1) block=(576,1,1) lds={LDS}\n"
out += f""".amdgcn_target "amdgcn-amd-amdhsa--gfx950"
.text
.globl {NAME}_kernel
.p2align 8
.type {NAME}_kernel,@function
{NAME}_kernel:
""" + "\n".join(L) + f"""
.section .rodata,"a"
.p2align 6
.amdhsa_kernel {NAME}_kernel
  .amdhsa_next_free_vgpr 164
  .amdhsa_next_free_sgpr 96
  .amdhsa_accum_offset 164
  .amdhsa_group_segment_fixed_size 0
  .amdhsa_kernarg_size 96
  .amdhsa_user_sgpr_count 2
  .amdhsa_user_sgpr_kernarg_segment_ptr 1
  .amdhsa_system_sgpr_workgroup_id_x 1
.end_amdhsa_kernel
"""
open(sys.argv[1], "w").write(out)
```

```python
import sys
NAME = "recurrent_scan__sliding_block_cached__glu_gated_reglu__decode"
opt = dict(diag=0, nt=1, spin=5000, sleep=4, prio=3, th=63, qpipe=1, qsleep=4, k1=4, b2b=1, opipe=1, osleep=4, spipe=1, ssleep=4, kprio=2, vs=4, va=8, vb=8, vc=8, wa=0, wb=0, wc=0, rot=3, opre=0, fpre=1, fsleep=8, lsleep=4, sq=0, qdelay=24, e3=0)
for a in sys.argv[2:]:
    k, v = a.split("="); opt[k] = int(v)
DIAG = opt["diag"]; NT = " nt" if opt["nt"] else ""
L = []
def e(s): L.append("    " + s)
def lab(s): L.append(s + ":")
def c(s): L.append("    ; " + s)
WS_Y, WS_LSE, WS_OP, WS_SP, WS_DP, WS_DIAG = 0x1000, 0x40000, 0x50000, 0x100000, 0x200000, 0x400000
YROW = 30720
W1 = 65536; SLAB = W1; SLAB2 = W1 + 16384; P1S = W1 + 32768; XN = P1S + 8192; QB = XN + 8320; HB = QB + 1088; OB = HB + 2176
MB = OB + 2176; LB = MB + 128; ZB = LB + 128; W3 = (ZB + 128 + 1023) & ~1023; LDS = W3 + 32768
sX, sK, sV, sWQ, sWO, sG, sU, sD, sOUT, sWS = 4, 6, 8, 10, 12, 16, 18, 20, 22, 26
sID, sW, sTAG, sROLE = 28, 29, 30, 31
sB = 32
sB2 = 34
sSTR, sT0, sT1, sT2, sCNT = 36, 37, 38, 39, 40
sPL, sPH = 41, 42
sM = 44
sM2 = 46
sU_ = 48
sTS = 64
vL, vG, vI = 1, 2, 3
WR, VR, TT, DD = 32, 64, 96, 128
nts = [0]
def ts(k):
    if DIAG: e(f"s_memrealtime s[{sTS+2*k}:{sTS+2*k+1}]")
def dump_ts(slot, n):
    if not DIAG: return
    e("s_waitcnt lgkmcnt(0)")
    if DIAG == 2:
        if slot: return
        e("s_mov_b64 exec, 1")
        e("v_mov_b32 v4, 0")
        e(f"s_not_b32 s{sT0}, s{sTS}")
        e(f"v_mov_b32 v5, s{sT0}")
        e("global_atomic_umax v4, v5, s[24:25] sc1")
        for k in range(n):
            e(f"v_mov_b32 v5, s{sTS+2*k}")
            e(f"s_cmp_lt_u32 s{sID}, 240")
            e(f"s_cbranch_scc0 L_dd{nts[0]}_{k}")
            e(f"global_atomic_umax v4, v5, s[24:25] offset:{4*k+4} sc1")
            lab(f"L_dd{nts[0]}_{k}")
        nts[0] += 1
        return
    e(f"s_lshl_b32 s{sT0}, s{sID}, 8")
    e(f"s_add_u32 s{sT0}, s{sT0}, {WS_DIAG + slot*64}")
    e(f"v_mov_b32 v4, s{sT0}")
    e("s_mov_b64 exec, 1")
    for k in range(n):
        e(f"v_mov_b32 v5, s{sTS+2*k}")
        e(f"global_store_dword v4, v5, s[{sWS}:{sWS+1}] offset:{4*k}")
    e("s_getreg_b32 s37, hwreg(HW_REG_XCC_ID)")
    e("v_mov_b32 v5, s37")
    e(f"global_store_dword v4, v5, s[{sWS}:{sWS+1}] offset:60")
    e("s_getreg_b32 s37, hwreg(HW_REG_HW_ID)")
    e("v_mov_b32 v5, s37")
    e(f"global_store_dword v4, v5, s[{sWS}:{sWS+1}] offset:56")
def base(dst, src, off):
    e(f"s_add_u32 s{dst}, s{src}, {off}")
    e(f"s_addc_u32 s{dst+1}, s{src+1}, 0")
def transpose(src, dst):
    for q in range(4):
        for j in range(4):
            a, b = src + 8*j + q, src + 8*j + 4 + q
            e(f"v_perm_b32 v{dst+8*q+j}, v{b}, v{a}, s{sPL}")
            e(f"v_perm_b32 v{dst+8*q+4+j}, v{b}, v{a}, s{sPH}")
def mfma(d, a, b, cc):
    cs = "0" if cc is None else f"v[{cc}:{cc+3}]"
    e(f"v_mfma_f32_16x16x32_bf16 v[{d}:{d+3}], v[{a}:{a+3}], v[{b}:{b+3}], {cs}")
def xlane(op, v, t, full=False):
    if full:
        for m in ["quad_perm:[1,0,3,2]", "quad_perm:[2,3,0,1]", "row_half_mirror", "row_mirror"]:
            e("s_nop 1")
            e(f"{op}_dpp v{v}, v{v}, v{v} {m} row_mask:0xf bank_mask:0xf")
    for sw in ["v_permlane16_swap_b32", "v_permlane32_swap_b32"]:
        e(f"v_mov_b32 v{t}, v{v}")
        e("s_nop 1")
        e(f"{sw} v{v}, v{t}")
        e("s_nop 0")
        e(f"{op} v{v}, v{v}, v{t}")
def rbf(v):
    e(f"v_cvt_pk_bf16_f32 v{v}, v{v}, v{v}")
    e(f"v_and_b32 v{v}, 0xffff0000, v{v}")
def tagcheck(regs, t0, t1, lfail_loop, name, sl=None):
    sl = opt["sleep"] if sl is None else sl
    e(f"v_min3_u32 v{t0}, v{regs[0]}, v{regs[1]}, v{regs[1]}")
    e(f"v_max3_u32 v{t1}, v{regs[0]}, v{regs[1]}, v{regs[1]}")
    for k in range(2, len(regs), 2):
        e(f"v_min3_u32 v{t0}, v{t0}, v{regs[k]}, v{regs[k+1]}")
        e(f"v_max3_u32 v{t1}, v{t1}, v{regs[k]}, v{regs[k+1]}")
    e(f"v_cmp_ne_u32 vcc, s{sTAG}, v{t0}")
    e(f"v_cmp_ne_u32 s[{sM}:{sM+1}], s{sTAG}, v{t1}")
    e(f"s_or_b64 vcc, vcc, s[{sM}:{sM+1}]")
    e(f"s_cbranch_scc0 {name}_ok")
    e(f"s_sub_u32 s{sCNT}, s{sCNT}, 1")
    if sl: e(f"s_sleep {sl}")
    e(f"s_cmp_gt_i32 s{sCNT}, 0")
    e(f"s_cbranch_scc1 {lfail_loop}")
    lab(f"{name}_ok")
def tagcmp(regs, okl):
    e(f"v_min_u32 v4, v{regs[0]}, v{regs[1]}")
    e(f"v_max_u32 v5, v{regs[0]}, v{regs[1]}")
    for k in range(2, len(regs), 2):
        e(f"v_min3_u32 v4, v4, v{regs[k]}, v{regs[k+1]}")
        e(f"v_max3_u32 v5, v5, v{regs[k]}, v{regs[k+1]}")
    e(f"v_cmp_ne_u32 vcc, s{sTAG}, v4")
    e(f"v_cmp_ne_u32 s[{sM}:{sM+1}], s{sTAG}, v5")
    e(f"s_or_b64 vcc, vcc, s[{sM}:{sM+1}]")
    e(f"s_cbranch_scc0 {okl}")
def ppoll(name, D, n, issue, tags, cont, sl, pre=0):
    if pre == D: e(f"s_branch {name}_in")
    for j in range(pre, D-1):
        issue(j)
        if sl: e(f"s_sleep {sl}")
    lab(name)
    for j in range(D):
        issue((j+D-1) % D)
        if j == 0 and pre == D: lab(f"{name}_in")
        e(f"s_waitcnt vmcnt({n*(D-1)})")
        tagcmp(tags(j), f"{name}_{j}")
        if sl: e(f"s_sleep {sl}")
    e(f"s_sub_u32 s{sCNT}, s{sCNT}, 1")
    e(f"s_cmp_gt_i32 s{sCNT}, 0")
    e(f"s_cbranch_scc1 {name}")
    for j in range(D-1, -1, -1):
        lab(f"{name}_{j}")
        cont(j)
        if j: e(f"s_branch {name}_done")
    lab(f"{name}_done")
TH = opt["th"]; K1 = opt["k1"]
def thr():
    if TH < 63: e(f"s_waitcnt vmcnt({TH-1})")
def tagfix():
    e(f"s_mul_i32 s{sTAG}, s{sTAG}, 0x9E3779B1")
    e(f"s_add_u32 s{sTAG}, s{sTAG}, 0x7F4A7C15")
def kdma(lo, hi):
    for jj in range(lo, hi):
        if jj == 4:
            e(f"s_add_u32 s{sT2}, s{sKM}, 4096")
            e(f"s_mov_b32 m0, s{sT2}")
            for q in range(4): e(f"v_xor_b32 v{16+q}, 0x1000, v{16+q}")
        if lo and opt.get("thk"): thr()
        e(f"global_load_lds_dwordx4 v{16+(jj&3)}, s[{sK}:{sK+1}] offset:{(jj&3)*1024}{NT}")
sKM, sTILE, sHB = 49, 50, 51
e("s_load_dwordx16 s[4:19], s[0:1], 0")
e("s_load_dwordx8 s[20:27], s[0:1], 64")
ts(0)
e("s_cmp_ge_u32 s2, 256")
e("s_cbranch_scc1 L_end")
e(f"s_mov_b32 s{sID}, s2")
e("v_lshrrev_b32 v4, 6, v0")
e(f"v_and_b32 v{vL}, 63, v0")
e(f"v_readfirstlane_b32 s{sW}, v4")
e(f"v_bfe_u32 v{vG}, v0, 4, 2")
e(f"v_and_b32 v{vI}, 15, v0")
e(f"s_mov_b32 s{sCNT}, {opt['spin']}")
e(f"s_and_b32 s{sU_}, s{sID}, 127")
c("phase-1 tile T = (id&~15) | (id&7)<<1 | (id>>3)&1")
e(f"s_and_b32 s{sT0}, s{sID}, 7")
e(f"s_lshl_b32 s{sT0}, s{sT0}, 1")
e(f"s_bfe_u32 s{sT1}, s{sID}, 0x10003")
e(f"s_or_b32 s{sT0}, s{sT0}, s{sT1}")
e(f"s_and_b32 s{sT1}, s{sID}, 0xf0")
e(f"s_or_b32 s{sTILE}, s{sT0}, s{sT1}")
e(f"s_movk_i32 s{sSTR}, 3584")
e(f"s_cmp_lt_u32 s{sID}, 128")
e(f"s_cselect_b32 s{sSTR}, 8192, s{sSTR}")
e(f"v_lshrrev_b32 v4, 2, v{vL}")
e(f"v_mul_u32_u24 v12, s{sSTR}, v4")
e(f"v_and_b32 v4, 3, v{vL}")
e("v_lshl_add_u32 v12, v4, 4, v12")
e(f"s_lshl_b32 s{sT0}, s{sW}, 10")
e(f"v_lshl_add_u32 v13, v{vL}, 4, s{sT0}")
e(f"s_lshl_b32 s{sKM}, s{sW}, 13")
e(f"s_lshl_b32 s{sT2}, s{sW}, 12")
e(f"s_add_u32 s{sT2}, s{sT2}, {W1}")
e(f"s_mov_b32 m0, s{sT2}")
e(f"s_lshl_b32 s{sT1}, s{sW}, 6")
e(f"s_mul_i32 s{sT1}, s{sT1}, s{sSTR}")
e(f"s_cmp_lt_u32 s{sTILE}, 184")
e(f"s_cselect_b32 s{sT0}, 0, 56")
e(f"s_and_b32 s{sT2}, s{sTILE}, 127")
e(f"s_sub_u32 s{sT0}, s{sT2}, s{sT0}")
e(f"s_lshl_b32 s{sT0}, s{sT0}, 6")
e(f"s_add_u32 s{sT1}, s{sT1}, s{sT0}")
e(f"s_lshl_b32 s{sT2}, s{sSTR}, 4")
e(f"s_sub_u32 s{sT2}, s{sT2}, 1024")
e("s_waitcnt lgkmcnt(0)")
ts(1)
e(f"s_load_dword s{sTAG}, s[{sWS}:{sWS+1}], 0")
e(f"s_cmp_eq_u32 s{sW}, 8")
e("s_cbranch_scc1 L_service")
e(f"s_cmp_ge_u32 s{sID}, 240")
e("s_cbranch_scc1 L_now1")
e(f"global_load_dwordx4 v[8:11], v13, s[{sX}:{sX+1}]")
e(f"s_cmp_lt_u32 s{sTILE}, 184")
e(f"s_cselect_b64 s[{sB}:{sB+1}], s[{sG}:{sG+1}], s[{sU}:{sU+1}]")
e(f"s_cmp_lt_u32 s{sID}, 128")
e(f"s_cselect_b64 s[{sB}:{sB+1}], s[{sWQ}:{sWQ+1}], s[{sB}:{sB+1}]")
base(sB, sB, f"s{sT1}")
for jj in range(4):
    e(f"global_load_lds_dwordx4 v12, s[{sB}:{sB+1}] offset:{jj*1024}{NT}")
    if jj < 3: e(f"v_add_u32 v12, s{sT2}, v12")
lab("L_now1")
c("KV slice offset: (id>>2)<<20 + 786432 + (id&3)<<16 + wave<<13")
e(f"s_lshr_b32 s{sT0}, s{sID}, 2")
e(f"s_lshl_b32 s{sT0}, s{sT0}, 20")
e(f"s_and_b32 s{sT1}, s{sID}, 3")
e(f"s_lshl_b32 s{sT1}, s{sT1}, 16")
e(f"s_add_u32 s{sT0}, s{sT0}, s{sT1}")
e(f"s_add_u32 s{sT0}, s{sT0}, 786432")
base(sK, sK, f"s{sT0}")
base(sV, sV, f"s{sT0}")
e(f"v_xor_b32 v16, v{vI}, v{vG}")
e("v_lshlrev_b32 v16, 4, v16")
e(f"v_lshl_add_u32 v16, v{vG}, 8, v16")
c("first 4 KB block of this wave: (2w + (w>>2)) ^ r ; the second one is ^1 (spreads the HBM stacks)")
e(f"s_lshr_b32 s{sHB}, s{sW}, 2")
e(f"s_lshl_b32 s{sT1}, s{sW}, 1")
e(f"s_or_b32 s{sHB}, s{sHB}, s{sT1}")
if opt["rot"]:
    e(f"s_bfe_u32 s{sT1}, s{sID}, {0x30000 + opt['rot']:#x}")
    e(f"s_xor_b32 s{sHB}, s{sHB}, s{sT1}")
e(f"s_lshl_b32 s{sHB}, s{sHB}, 12")
e(f"v_or_b32 v16, s{sHB}, v16")
e("v_xor_b32 v17, 64, v16")
e("v_xor_b32 v18, 0x80, v16")
e("v_xor_b32 v19, 0xc0, v16")
e(f"s_mov_b32 m0, s{sKM}")
ts(2)
e(f"s_cmp_ge_u32 s{sID}, 240")
e("s_cbranch_scc1 L_p1skip0")
c("layernorm of row w")
e(f"s_waitcnt vmcnt(4)")
ts(3)
for k in range(4):
    e(f"v_lshlrev_b32 v{TT+2*k}, 16, v{8+k}")
    e(f"v_and_b32 v{TT+2*k+1}, 0xffff0000, v{8+k}")
e(f"v_pk_add_f32 v[4:5], v[{TT}:{TT+1}], v[{TT+2}:{TT+3}]")
e(f"v_pk_add_f32 v[6:7], v[{TT+4}:{TT+5}], v[{TT+6}:{TT+7}]")
e("v_pk_add_f32 v[4:5], v[4:5], v[6:7]")
e("v_add_f32 v4, v4, v5")
xlane("v_add_f32", 4, 5, full=True)
e("v_mul_f32 v4, 0x3b000000, v4")
e(f"v_sub_f32 v5, v{TT}, v4")
e("v_mul_f32 v6, v5, v5")
for k in range(1, 8):
    e(f"v_sub_f32 v5, v{TT+k}, v4")
    e("v_fmac_f32 v6, v5, v5")
xlane("v_add_f32", 6, 5, full=True)
e("v_mul_f32 v6, 0x3b000000, v6")
rbf(4); rbf(6)
e("v_add_f32 v6, 0x3727c5ac, v6")
rbf(6)
e("v_sqrt_f32 v6, v6")
e("s_nop 0")
rbf(6)
e("v_rcp_f32 v6, v6")
for k in range(8): e(f"v_sub_f32 v{TT+k}, v{TT+k}, v4")
for k in range(4):
    e(f"v_cvt_pk_bf16_f32 v{8+k}, v{TT+2*k}, v{TT+2*k+1}")
    e(f"v_lshlrev_b32 v{TT+2*k}, 16, v{8+k}")
    e(f"v_and_b32 v{TT+2*k+1}, 0xffff0000, v{8+k}")
    e(f"v_mul_f32 v{TT+2*k}, v{TT+2*k}, v6")
    e(f"v_mul_f32 v{TT+2*k+1}, v{TT+2*k+1}, v6")
    e(f"v_cvt_pk_bf16_f32 v{8+k}, v{TT+2*k}, v{TT+2*k+1}")
e(f"s_mul_i32 s{sT0}, s{sW}, 1040")
e(f"s_add_u32 s{sT0}, s{sT0}, {XN}")
e(f"v_lshl_add_u32 v4, v{vL}, 4, s{sT0}")
e("ds_write_b128 v4, v[8:11]")
c("xn operand addresses (v6,v7), W tr-read address (v5), slab address (v4)")
e(f"v_and_b32 v5, 7, v{vI}")
e("v_mul_u32_u24 v4, 1040, v5")
e(f"v_lshl_add_u32 v4, v{vG}, 4, v4")
e(f"s_lshl_b32 s{sT0}, s{sW}, 7")
e(f"s_add_u32 s{sT0}, s{sT0}, {XN}")
e(f"v_add_u32 v4, s{sT0}, v4")
e(f"v_mov_b32 v5, {ZB}")
e(f"v_cmp_gt_u32 vcc, 8, v{vI}")
e(f"s_lshl_b32 s{sT0}, s{sW}, 12")
e(f"s_add_u32 s{sT0}, s{sT0}, {W1}")
e("v_cndmask_b32 v6, v5, v4, vcc")
e("v_cndmask_b32 v7, v4, v5, vcc")
e(f"v_lshrrev_b32 v4, 2, v{vI}")
e(f"v_lshl_add_u32 v4, v{vG}, 3, v4")
e(f"v_and_b32 v5, 3, v{vI}")
e("v_lshlrev_b32 v5, 3, v5")
e("v_lshl_add_u32 v5, v4, 6, v5")
e(f"v_add_u32 v5, s{sT0}, v5")
e(f"s_lshl_b32 s{sT0}, s{sW}, 10")
e(f"s_add_u32 s{sT0}, s{sT0}, {P1S}")
e(f"v_lshl_add_u32 v4, v{vL}, 4, s{sT0}")
e("s_waitcnt lgkmcnt(0)")
e("s_barrier")
for ks in range(2):
    for ct in range(2): e(f"ds_read_b128 v[{DD+8*ks+4*ct}:{DD+8*ks+4*ct+3}], v{6+ct} offset:{ks*64}")
kdma(0, K1)
e(f"s_waitcnt vmcnt({K1})")
ts(4)
for ks in range(2):
    for ct in range(2):
        for hh in range(2):
            r = TT+8*ks+4*ct+2*hh
            e(f"ds_read_b64_tr_b16 v[{r}:{r+1}], v5 offset:{ks*2048+hh*256+ct*32}")
e("s_waitcnt lgkmcnt(0)")
for n in range(4): mfma(8, TT+4*n, DD+4*n, None if n == 0 else 8)
e("s_nop 7")
e("ds_write_b128 v4, v[8:11]")
e("s_waitcnt lgkmcnt(0)")
e("s_barrier")
if opt.get("b2b"): e("s_barrier")
e("s_branch L_p1skip")
lab("L_p1skip0")
kdma(0, K1)
lab("L_p1skip")
ts(5)
if opt.get("kprio"): e(f"s_setprio {opt['kprio']}")
kdma(K1, 8) if K1 else (kdma(0, 1), kdma(1, 8))
if opt.get("kprio"): e("s_setprio 0")
e(f"v_lshlrev_b32 v59, 10, v{vG}")
e(f"v_lshl_add_u32 v59, v{vI}, 4, v59")
e(f"v_or_b32 v59, s{sHB}, v59")
e(f"v_xor_b32 v60, 0x1000, v59")
VS = opt["vs"]; VP = [opt["va"], opt["vb"], opt["vc"], 8]
def vload(lo, hi):
    for j in range(lo, hi):
        e(f"global_load_dwordx4 v[{VR+4*j}:{VR+4*j+3}], v{59+(j>>2)}, s[{sV}:{sV+1}] offset:{(j&3)*256}{NT}")
WP = [0, opt["wa"], opt["wb"], opt["wc"], 4]
def w3(p):
    if WP[p] == WP[p+1]: return
    e(f"s_cmp_lg_u32 s{sROLE}, 0")
    e(f"s_cbranch_scc0 L_now3{p}")
    for jj in range(WP[p], WP[p+1]):
        e(f"global_load_lds_dwordx4 v25, s[{sB2}:{sB2+1}] offset:{jj*1024}{NT}")
        if jj < 3: e(f"v_add_u32 v25, 3072, v25")
        if jj == 1: e("v_xor_b32 v25, 0x80, v25")
    lab(f"L_now3{p}")
c("phase-3 role: wo (id>=128) or down (id<56); W3 dma base sB2, voff v25; tr addr v27; operand addr v28; publish v26")
e(f"s_sub_u32 s{sT1}, s{sID}, 56")
e(f"s_cmp_lt_u32 s{sT1}, 72")
e(f"s_cselect_b32 s{sROLE}, 0, 1")
e(f"s_cmp_lt_u32 s{sID}, 128")
e(f"s_cselect_b64 s[{sB2}:{sB2+1}], s[{sD}:{sD+1}], s[{sWO}:{sWO+1}]")
e(f"s_mov_b32 s{sHB}, {WS_SP}")
e(f"s_cselect_b32 s{sHB}, {WS_DP}, s{sHB}")
e(f"s_lshr_b32 s{sT1}, s{sU_}, 2")
e(f"s_lshl_b32 s{sT0}, s{sT1}, 17")
e(f"s_lshl_b32 s{sT1}, s{sT1}, 8")
e(f"s_add_u32 s{sHB}, s{sHB}, s{sT1}")
e(f"s_lshl_b32 s{sT1}, s{sW}, 14")
e(f"s_add_u32 s{sT0}, s{sT0}, s{sT1}")
e(f"s_and_b32 s{sT1}, s{sU_}, 3")
e(f"s_lshl_b32 s{sT2}, s{sT1}, 8")
e(f"s_add_u32 s{sT0}, s{sT0}, s{sT2}")
base(sB2, sB2, f"s{sT0}")
e(f"v_lshlrev_b32 v4, 1, v{vG}")
e(f"v_xor_b32 v4, v4, v{vI}")
e("v_lshlrev_b32 v4, 4, v4")
e(f"v_lshl_add_u32 v25, v{vG}, 10, v4")
e(f"s_lshl_b32 s{sT2}, s{sW}, 12")
e(f"s_add_u32 s{sT2}, s{sT2}, {W3}")
e(f"s_mov_b32 m0, s{sT2}")
E3 = opt["e3"]
if E3: WP = [0, 4, 4, 4, 4]; w3(0); WP = [4]*5
vload(0, VS)
ts(6)
c("address precompute")
e(f"s_mov_b32 s{sPL}, 0x05040100")
e(f"s_mov_b32 s{sPH}, 0x07060302")
e("s_waitcnt lgkmcnt(0)")
tagfix()
e(f"s_and_b32 s{sT1}, s{sU_}, 3")
e(f"s_lshl_b32 s{sT1}, s{sT1}, 15")
e(f"s_add_u32 s{sHB}, s{sHB}, s{sT1}")
e(f"s_lshr_b32 s{sT1}, s{sW}, 1")
e(f"s_lshl_b32 s{sT1}, s{sT1}, 13")
e(f"s_add_u32 s{sHB}, s{sHB}, s{sT1}")
e(f"s_and_b32 s{sT1}, s{sW}, 1")
e(f"s_lshl_b32 s{sT1}, s{sT1}, 7")
e(f"s_add_u32 s{sHB}, s{sHB}, s{sT1}")
e(f"v_and_b32 v4, 7, v{vI}")
e(f"v_lshl_add_u32 v26, v4, 17, s{sHB}")
e(f"v_lshl_add_u32 v26, v{vG}, 5, v26")
e(f"v_lshrrev_b32 v5, 3, v{vI}")
e("v_lshl_add_u32 v26, v5, 4, v26")
e("v_mul_u32_u24 v28, 272, v4")
e(f"v_lshl_add_u32 v28, v{vG}, 4, v28")
e(f"v_add_u32 v28, {OB}, v28")
e(f"v_lshrrev_b32 v4, 2, v{vI}")
e(f"v_bfe_u32 v5, v{vI}, 1, 1")
e(f"s_lshl_b32 s{sT1}, s{sW}, 1")
e(f"v_or_b32 v5, s{sT1}, v5")
e("v_lshlrev_b32 v6, 1, v4")
e("v_xor_b32 v5, v5, v6")
e(f"v_and_b32 v6, 1, v{vG}")
e("v_lshlrev_b32 v6, 3, v6")
e("v_xor_b32 v5, v5, v6")
e(f"v_lshl_add_u32 v4, v{vG}, 3, v4")
e("v_lshlrev_b32 v4, 8, v4")
e("v_lshl_add_u32 v27, v5, 4, v4")
e(f"v_and_b32 v4, 1, v{vI}")
e("v_lshl_add_u32 v27, v4, 3, v27")
e(f"v_add_u32 v27, {W3}, v27")
e(f"v_cmp_lt_u32 s[{sM2}:{sM2+1}], 7, v{vI}")
e(f"v_xor_b32 v16, v{vI}, v{vG}")
e("v_lshlrev_b32 v16, 4, v16")
e(f"v_lshl_add_u32 v16, v{vI}, 8, v16")
e(f"v_add_u32 v16, s{sKM}, v16")
e("v_xor_b32 v17, 64, v16")
e("v_xor_b32 v18, 0x80, v16")
e("v_xor_b32 v19, 0xc0, v16")
e(f"v_and_b32 v22, 3, v{vI}")
e("v_mul_u32_u24 v23, 272, v22")
e(f"v_lshl_add_u32 v23, v{vG}, 4, v23")
e(f"v_add_u32 v23, {QB}, v23")
e(f"v_lshlrev_b32 v4, 5, v22")
e(f"s_lshl_b32 s{sT2}, s{sW}, 2")
e(f"v_add_u32 v24, {MB}, v4")
e(f"v_add_u32 v29, s{sT2}, v24")
e(f"s_lshr_b32 s{sT0}, s{sU_}, 2")
e(f"s_lshl_b32 s{sT0}, s{sT0}, 3")
e(f"s_add_u32 s{sT0}, s{sT0}, s{sW}")
e(f"s_lshl_b32 s{sT1}, s{sT0}, 5")
e(f"s_add_u32 s{sT1}, s{sT1}, {WS_LSE}")
e(f"v_mov_b32 v57, s{sT1}")
e(f"s_lshl_b32 s{sT1}, s{sT0}, 11")
e(f"s_add_u32 s{sT1}, s{sT1}, {WS_OP}")
e(f"v_lshl_add_u32 v56, v{vL}, 3, s{sT1}")
c("obuf write address: b*272 + (16g+4r+2a+e2)*4, lane=(a,g,e2,r)")
e(f"v_bfe_u32 v4, v{vL}, 3, 2")
e("v_lshlrev_b32 v58, 6, v4")
e(f"v_and_b32 v4, 3, v{vL}")
e("v_lshl_add_u32 v58, v4, 4, v58")
e(f"v_lshrrev_b32 v4, 5, v{vL}")
e("v_lshl_add_u32 v58, v4, 3, v58")
e(f"v_and_b32 v4, 4, v{vL}")
e(f"s_mul_i32 s{sT0}, s{sW}, 272")
e(f"s_add_u32 s{sT0}, s{sT0}, {OB}")
e(f"v_add3_u32 v58, v58, v4, s{sT0}")
c("PV slab write v30, read v31, o publish v20")
e(f"s_lshl_b32 s{sT0}, s{sW}, 11")
e(f"s_add_u32 s{sT0}, s{sT0}, {SLAB}")
e(f"v_lshl_add_u32 v30, v{vL}, 4, s{sT0}")
e(f"v_lshlrev_b32 v31, 2, v0")
e(f"v_add_u32 v31, {SLAB}, v31")
e(f"v_bfe_u32 v4, v{vL}, 2, 2")
e("v_lshlrev_b32 v20, 14, v4")
e(f"v_lshrrev_b32 v4, 5, v{vL}")
e("v_lshl_add_u32 v20, v4, 5, v20")
e(f"v_and_b32 v4, 3, v{vL}")
e("v_lshl_add_u32 v20, v4, 3, v20")
e(f"s_bfe_u32 s{sT0}, s{sID}, 0x30002")
e(f"s_lshl_b32 s{sT0}, s{sT0}, 16")
e(f"s_lshr_b32 s{sT1}, s{sID}, 5")
e(f"s_lshl_b32 s{sT1}, s{sT1}, 11")
e(f"s_add_u32 s{sT0}, s{sT0}, s{sT1}")
e(f"s_and_b32 s{sT1}, s{sID}, 3")
e(f"s_lshl_b32 s{sT1}, s{sT1}, 9")
e(f"s_add_u32 s{sT0}, s{sT0}, s{sT1}")
e(f"s_lshl_b32 s{sT1}, s{sW}, 6")
e(f"s_add_u32 s{sT0}, s{sT0}, s{sT1}")
e(f"s_add_u32 s{sT0}, s{sT0}, {WS_OP}")
e(f"v_add_u32 v20, s{sT0}, v20")
def vwait(n, nm):
    e(f"s_cbranch_scc1 {nm}")
    e(f"s_waitcnt vmcnt({n})")
    lab(nm)
    e(f"s_waitcnt vmcnt({n+4})")
if E3:
    e(f"s_cmp_lg_u32 s{sROLE}, 0")
    vwait(VS, "L_kw")
else: e(f"s_waitcnt vmcnt({VS})")
for t in range(2):
    for cc in range(4): e(f"ds_read_b128 v[{TT+16*t+4*cc}:{TT+16*t+4*cc+3}], v{16+cc} offset:{t*4096}")
e(f"s_mov_b32 s{sT0}, 0x3db504f3")
e(f"s_mov_b32 s{sT1}, 0x3fb8aa3b")
e("s_barrier")
ts(7)
for cc in range(4): e(f"ds_read_b128 v[{DD+4*cc}:{DD+4*cc+3}], v23 offset:{cc*64}")
e("s_waitcnt lgkmcnt(0)")
S = DD + 16
for cc in range(4):
    for t in range(2): mfma(S+4*t, TT+16*t+4*cc, DD+4*cc, None if cc == 0 else S+4*t)
vload(VS, VP[0])
w3(0)
e("s_nop 7")
for k in range(4): e(f"v_cvt_pk_bf16_f32 v{8+k}, v{S+2*k}, v{S+2*k+1}")
for k in range(4):
    e(f"v_lshlrev_b32 v{S+2*k}, 16, v{8+k}")
    e(f"v_and_b32 v{S+2*k+1}, 0xffff0000, v{8+k}")
for k in range(8): e(f"v_mul_f32 v{S+k}, s{sT0}, v{S+k}")
for k in range(4): e(f"v_cvt_pk_bf16_f32 v{8+k}, v{S+2*k}, v{S+2*k+1}")
for k in range(4):
    e(f"v_lshlrev_b32 v{S+2*k}, 16, v{8+k}")
    e(f"v_and_b32 v{S+2*k+1}, 0xffff0000, v{8+k}")
e(f"v_max3_f32 v6, v{S}, v{S+1}, v{S+2}")
e(f"v_max3_f32 v7, v{S+3}, v{S+4}, v{S+5}")
e(f"v_max3_f32 v6, v6, v{S+6}, v{S+7}")
e(f"v_max_f32 v6, v6, v7")
xlane("v_max_f32", 6, 7)
e(f"v_mul_f32 v23, s{sT1}, v6")
for k in range(8): e(f"v_fma_f32 v{S+k}, v{S+k}, s{sT1}, -v23")
for k in range(8): e(f"v_exp_f32 v{S+k}, v{S+k}")
e("s_nop 0")
e(f"v_pk_add_f32 v[4:5], v[{S}:{S+1}], v[{S+2}:{S+3}]")
e(f"v_pk_add_f32 v[6:7], v[{S+4}:{S+5}], v[{S+6}:{S+7}]")
e("v_pk_add_f32 v[4:5], v[4:5], v[6:7]")
e("v_add_f32 v7, v4, v5")
xlane("v_add_f32", 7, 8)
e("s_mov_b64 exec, 15")
e("ds_write2_b32 v29, v23, v7 offset0:0 offset1:32")
e("s_mov_b64 exec, -1")
vload(VP[0], VP[1])
w3(1)
e("s_waitcnt lgkmcnt(0)")
e("s_barrier")
vload(VP[1], VP[2])
w3(2)
def mlcomb():
    e("ds_read_b128 v[8:11], v24")
    e("ds_read_b128 v[12:15], v24 offset:16")
    e(f"ds_read_b128 v[{DD}:{DD+3}], v24 offset:128")
    e(f"ds_read_b128 v[{DD+4}:{DD+7}], v24 offset:144")
    e("s_waitcnt lgkmcnt(0)")
    e("v_max3_f32 v6, v8, v9, v10")
    e("v_max3_f32 v7, v11, v12, v13")
    e("v_max3_f32 v6, v6, v14, v15")
    e("v_max_f32 v6, v6, v7")
    for k in range(8): e(f"v_sub_f32 v{8+k}, v{8+k}, v6")
    for k in range(8): e(f"v_exp_f32 v{8+k}, v{8+k}")
    e(f"v_mul_f32 v7, v8, v{DD}")
    for k in range(1, 8): e(f"v_fmac_f32 v7, v{8+k}, v{DD+k}")
mlcomb()
e("v_sub_f32 v23, v23, v6")
e("v_rcp_f32 v8, v7")
e("v_exp_f32 v23, v23")
e(f"v_lshrrev_b32 v4, 2, v{vI}")
e("v_mul_f32 v23, v23, v8")
for k in range(8): e(f"v_mul_f32 v{S+k}, v23, v{S+k}")
for k in range(4): e(f"v_cvt_pk_bf16_f32 v{S+k}, v{S+2*k}, v{S+2*k+1}")
PM = DD + 20
for k in range(16): e(f"v_mov_b32 v{PM+k}, 0")
for cq in range(4):
    m = 0x000F000F << (4*cq)
    e(f"s_mov_b32 exec_lo, {m:#x}")
    e(f"s_mov_b32 exec_hi, {m:#x}")
    for k in range(0, 4, 2): e(f"v_pk_mov_b32 v[{PM+4*cq+k}:{PM+4*cq+k+1}], v[{S+k}:{S+k+1}], v[{S+k}:{S+k+1}] op_sel:[0,1]")
e("s_mov_b64 exec, -1")
e(f"v_mov_b32 v7, s{sTAG}")
ts(8)
vload(VP[2], 8)
w3(3)
e(f"s_cmp_lg_u32 s{sROLE}, 0")
for j in range(4):
    if E3: e(f"s_waitcnt vmcnt({6-2*j})")
    else: vwait(6-2*j, f"L_vw{j}")
    if j == 3: ts(9)
    for q in range(4):
        a, b = VR + 8*j + q, VR + 8*j + 4 + q
        e(f"v_perm_b32 v{TT+8*q+j}, v{b}, v{a}, s{sPL}")
        e(f"v_perm_b32 v{TT+8*q+4+j}, v{b}, v{a}, s{sPH}")
for cc in range(8): mfma(DD+4*(cc>>2), TT+4*cc, PM+4*(cc&3), None if (cc&3) == 0 else DD+4*(cc>>2))
e("s_nop 3")
e(f"ds_write_b128 v30, v[{DD}:{DD+3}]")
e("s_nop 2")
e(f"ds_write_b128 v30, v[{DD+4}:{DD+7}] offset:1024")
e("s_waitcnt lgkmcnt(0)")
e("s_barrier")
for k in range(4): e(f"ds_read2st64_b32 v[{8+2*k}:{9+2*k}], v31 offset0:{16*k} offset1:{16*k+8}")
e("s_waitcnt lgkmcnt(0)")
e("v_pk_add_f32 v[8:9], v[8:9], v[10:11]")
e("v_pk_add_f32 v[12:13], v[12:13], v[14:15]")
e("v_pk_add_f32 v[8:9], v[8:9], v[12:13]")
e("v_add_f32 v10, v8, v9")
e("v_add_f32 v11, v8, v9")
e("s_nop 1")
e("v_permlane16_swap_b32 v10, v11")
e("s_mov_b32 exec_lo, 0x0000FFFF")
e("s_mov_b32 exec_hi, 0x0000FFFF")
e("v_cvt_pk_bf16_f32 v6, v10, v11")
e(f"global_store_dwordx2 v20, v[6:7], s[{sWS}:{sWS+1}] sc1")
e("s_mov_b64 exec, -1")
ts(10)
def trread():
    for ks in range(4):
        for hh in range(2): e(f"ds_read_b64_tr_b16 v[{TT+4*ks+2*hh}:{TT+4*ks+2*hh+1}], v27 offset:{ks*8192+hh*1024}")
if E3: trread()
O = VR
e(f"s_cmp_lt_u32 s{sID}, 128")
e("s_cbranch_scc1 L_lo")
def lissue():
    for s_ in range(2): e(f"global_load_dwordx4 v[{O+4*s_}:{O+3+4*s_}], v57, s[{sWS}:{sWS+1}] offset:{s_*16} sc1")
def oissue(j):
    for s_ in range(4): e(f"global_load_dwordx2 v[{WR+8*j+2*s_}:{WR+8*j+2*s_+1}], v56, s[{sWS}:{sWS+1}] offset:{s_*512} sc1")
def ocont(j):
    R = WR+8*j
    for k in range(4):
        e(f"v_and_b32 v{R+2*k+1}, 0xffff0000, v{R+2*k}")
        e(f"v_lshlrev_b32 v{R+2*k}, 16, v{R+2*k}")
    e(f"v_pk_mul_f32 v[12:13], v[{R}:{R+1}], v[8:9] op_sel_hi:[1,0]")
    e(f"v_pk_mul_f32 v[14:15], v[{R+2}:{R+3}], v[8:9] op_sel:[0,1] op_sel_hi:[1,1]")
    e(f"v_pk_fma_f32 v[12:13], v[{R+4}:{R+5}], v[10:11], v[12:13] op_sel_hi:[1,0,1]")
    e(f"v_pk_fma_f32 v[14:15], v[{R+6}:{R+7}], v[10:11], v[14:15] op_sel:[0,1,0] op_sel_hi:[1,1,1]")
OD = opt["opipe"]
lab("L_lpoll")
lissue()
PRE = opt["opre"]
if PRE: oissue(0)
e(f"s_waitcnt vmcnt({4*PRE})")
tagcheck([O+1+2*k for k in range(4)], 4, 5, "L_lpoll", "L_lp", opt["lsleep"])
if not PRE: oissue(0); PRE = 1
e(f"v_max3_f32 v4, v{O}, v{O+2}, v{O+4}")
e(f"v_max_f32 v4, v4, v{O+6}")
for k in range(4): e(f"v_sub_f32 v{8+k}, v{O+2*k}, v4")
for k in range(4): e(f"v_exp_f32 v{8+k}, v{8+k}")
e("s_nop 0")
e("v_pk_add_f32 v[4:5], v[8:9], v[10:11]")
e("v_add_f32 v4, v4, v5")
e("v_rcp_f32 v4, v4")
e("s_nop 0")
for k in range(4): e(f"v_mul_f32 v{8+k}, v{8+k}, v4")
ppoll("L_op", OD, 4, oissue, lambda j: [WR+8*j+1+2*k for k in range(4)], ocont, opt["osleep"], PRE)
ts(11)
e("v_pk_add_f32 v[12:13], v[12:13], v[14:15]")
e("v_cvt_pk_bf16_f32 v12, v12, v13")
e("ds_write_b32 v58, v12")
e("s_waitcnt lgkmcnt(0)")
if not E3: lab("L_mf")
e("s_barrier")
if E3: lab("L_mf")
for ks in range(4): e(f"ds_read_b128 v[{DD+4*ks}:{DD+4*ks+3}], v28 offset:{ks*64}")
if not E3: trread()
e(f"v_mov_b32 v13, s{sTAG}")
e(f"v_mov_b32 v15, s{sTAG}")
for ks in range(4):
    e(f"s_waitcnt lgkmcnt({3-ks if E3 else 6-2*ks})")
    mfma(8, TT+4*ks, DD+4*ks, None if ks == 0 else 8)
e("s_nop 7")
e(f"v_cndmask_b32 v12, v8, v10, s[{sM2}:{sM2+1}]")
e(f"v_cndmask_b32 v14, v9, v11, s[{sM2}:{sM2+1}]")
e(f"global_store_dwordx4 v26, v[12:15], s[{sWS}:{sWS+1}] sc1")
e(f"s_cmp_lt_u32 s{sID}, 128")
e("s_cbranch_scc1 L_final")
ts(12)
if DIAG:
    e(f"s_cmp_lg_u32 s{sW}, 0")
    e("s_cbranch_scc1 L_end")
    dump_ts(0, 13)
e("s_endpgm")
lab("L_lo")
e(f"s_cmp_ge_u32 s{sID}, 56")
e("s_cbranch_scc1 L_final")
if not E3: e("s_waitcnt vmcnt(1)")
e("s_branch L_mf")
lab("L_final")
e(f"s_cmp_lg_u32 s{sW}, 0")
e("s_cbranch_scc1 L_end")
e(f"s_lshl_b32 s{sT0}, s{sID}, 13")
e(f"s_add_u32 s{sT0}, s{sT0}, 4096")
e(f"v_lshl_add_u32 v16, v{vL}, 4, s{sT0}")
base(sB, sWS, WS_DP)
base(sB2, sWS, WS_SP)
e(f"s_lshl_b32 s{sT0}, s{sID}, 6")
e(f"v_lshl_add_u32 v17, v{vI}, 2, s{sT0}")
e(f"global_load_dword v18, v17, s[{sX}:{sX+1}]")
def fsum(R, n):
    e(f"v_add_f32 v8, v{R}, v{R+4}")
    e(f"v_add_f32 v9, v{R+2}, v{R+6}")
    e(f"v_add_f32 v10, v{R+8}, v{R+12}")
    e(f"v_add_f32 v11, v{R+10}, v{R+14}")
    for j in range(4, n):
        e(f"v_add_f32 v{8+2*(j&1)}, v{8+2*(j&1)}, v{R+4*j}")
        e(f"v_add_f32 v{9+2*(j&1)}, v{9+2*(j&1)}, v{R+4*j+2}")
def fred():
    e("v_pk_add_f32 v[8:9], v[8:9], v[10:11]")
    e("s_nop 1")
    e("v_permlane32_swap_b32 v8, v9")
    e("s_nop 0")
    e("v_add_f32 v8, v8, v9")
    e("v_mov_b32 v9, v8")
    e("s_nop 1")
    e("v_permlane16_swap_b32 v8, v9")
    e("s_nop 0")
    e("v_add_f32 v8, v8, v9")
    rbf(8)
e(f"v_mov_b32 v{DD+12}, 0")
e(f"v_mov_b32 v{DD+13}, s{sTAG}")
e(f"v_mov_b32 v{DD+14}, 0")
e(f"v_mov_b32 v{DD+15}, s{sTAG}")
if opt["fpre"]:
    c("cheap pre-wait: every workgroup has published its lse")
    e(f"v_lshlrev_b32 v6, 10, v{vG}")
    e(f"v_lshl_add_u32 v6, v{vI}, 4, v6")
    e(f"v_add_u32 v6, {WS_LSE + 4096}, v6")
    lab("L_fpoll")
    for u in range(2): e(f"global_load_dwordx4 v[{WR+4*u}:{WR+4*u+3}], v6, s[{sWS}:{sWS+1}] offset:{u*4096-4096} sc1")
    e("s_waitcnt vmcnt(0)")
    tagcheck([WR+1+2*k for k in range(4)], 4, 5, "L_fpoll", "L_fp", opt["fsleep"])
lab("L_dpoll")
for j in range(4):
    if j == 3: e("s_mov_b32 exec_hi, 0")
    e(f"global_load_dwordx4 v[{DD+4*j}:{DD+4*j+3}], v16, s[{sB}:{sB+1}] offset:{j*1024-4096} sc1")
e("s_mov_b32 exec_hi, -1")
def sissue(j):
    for k in range(8): e(f"global_load_dwordx4 v[{WR+32*j+4*k}:{WR+32*j+4*k+3}], v16, s[{sB2}:{sB2+1}] offset:{k*1024-4096} sc1")
sissue(0)
e("s_waitcnt vmcnt(8)")
tagcheck([DD+1+2*k for k in range(8)], 4, 5, "L_dpoll", "L_dp")
SD = opt["spipe"]
fsum(DD, 4)
fred()
ts(11)
c("g = bf16(silu(d)); x half for this lane")
e("v_mul_f32 v10, 0xbfb8aa3b, v8")
e("v_exp_f32 v10, v10")
e("v_lshlrev_b32 v19, 16, v18")
e("v_add_f32 v10, 1.0, v10")
e("v_rcp_f32 v10, v10")
e("v_and_b32 v18, 0xffff0000, v18")
e("v_mul_f32 v20, v8, v10")
rbf(20)
e("s_mov_b32 exec_hi, 0")
e("v_mov_b32 v18, v19")
e("s_mov_b32 exec_hi, -1")
e(f"v_lshrrev_b32 v4, 5, v{vL}")
e("v_lshl_add_u32 v17, v4, 1, v17")
ppoll("L_sp", SD, 8, sissue, lambda j: [WR+32*j+1+2*k for k in range(16)], lambda j: fsum(WR+32*j, 8), opt["ssleep"], 1)
fred()
e("v_mul_f32 v8, v8, v20")
rbf(8)
e("v_add_f32 v8, v8, v18")
e("v_cvt_pk_bf16_f32 v8, v8, v8")
e("s_mov_b32 exec_lo, 0xffff")
e("s_mov_b32 exec_hi, 0xffff")
e(f"global_store_short v17, v8, s[{sOUT}:{sOUT+1}]")
ts(12)
e(f"s_cmp_lg_u32 s{sID}, 0")
e("s_cbranch_scc1 L_fin2")
e("s_mov_b64 exec, 1")
e("v_mov_b32 v4, 0")
e(f"v_mov_b32 v5, s{sTAG}")
e(f"global_store_dword v4, v5, s[{sWS}:{sWS+1}]")
lab("L_fin2")
dump_ts(0, 13)
lab("L_end")
e("s_endpgm")
lab("L_service")
if opt["prio"]: e(f"s_setprio {opt['prio']}")
e("v_mov_b32 v8, 0")
e(f"v_and_b32 v4, 31, v{vL}")
e("v_lshlrev_b32 v4, 2, v4")
e(f"v_add_u32 v4, {ZB}, v4")
e("ds_write_b32 v4, v8")
c("q source: Y + b*YROW + hkv*2048 + lane*16 (+1024)")
e(f"s_lshr_b32 s{sT0}, s{sID}, 5")
e(f"s_mul_i32 s{sT0}, s{sT0}, {YROW}")
e(f"s_bfe_u32 s{sT1}, s{sID}, 0x30002")
e(f"s_lshl_b32 s{sT1}, s{sT1}, 11")
e(f"s_add_u32 s{sT0}, s{sT0}, s{sT1}")
e(f"s_add_u32 s{sT0}, s{sT0}, {WS_Y}")
e(f"v_lshl_add_u32 v16, v{vL}, 4, s{sT0}")
base(sB, sWS, f"s{sT0}")
e(f"v_lshrrev_b32 v4, 5, v{vL}")
e("v_mul_u32_u24 v17, 272, v4")
e(f"v_and_b32 v4, 31, v{vL}")
e("v_lshl_add_u32 v17, v4, 3, v17")
e(f"v_add_u32 v17, {QB}, v17")
c("h source v26..v29, h dest v20")
e(f"s_lshr_b32 s{sT0}, s{sU_}, 2")
e(f"s_lshl_b32 s{sT0}, s{sT0}, 9")
e(f"s_add_u32 s{sT0}, s{sT0}, {WS_Y + 16384 + 3584}")
e(f"v_lshrrev_b32 v5, 5, v{vL}")
e(f"v_mul_u32_u24 v26, {YROW}, v5")
e(f"v_lshl_add_u32 v26, v4, 4, v26")
e(f"v_add_u32 v26, s{sT0}, v26")
for j in range(1, 4): e(f"v_add_u32 v{26+j}, {2*j*YROW}, v26")
e(f"v_add_u32 v20, {OB - QB}, v17")
c("slab read v21, Y publish v22, ml read v24, lse publish v25")
e(f"v_lshlrev_b32 v21, 4, v{vL}")
e(f"v_add_u32 v21, {P1S}, v21")
e(f"v_and_b32 v4, 7, v{vI}")
e(f"v_mul_u32_u24 v22, {YROW}, v4")
e(f"v_lshrrev_b32 v4, 3, v{vI}")
e("v_lshl_add_u32 v22, v4, 6, v22")
e(f"v_lshl_add_u32 v22, v{vG}, 4, v22")
e(f"s_lshl_b32 s{sT0}, s{sTILE}, 7")
e(f"s_add_u32 s{sT0}, s{sT0}, {WS_Y}")
e(f"v_add_u32 v22, s{sT0}, v22")
e(f"v_and_b32 v4, 3, v{vI}")
e("v_lshlrev_b32 v24, 5, v4")
e(f"v_add_u32 v24, {MB}, v24")
e(f"s_bfe_u32 s{sT0}, s{sID}, 0x30002")
e(f"s_lshl_b32 s{sT0}, s{sT0}, 10")
e(f"s_and_b32 s{sT1}, s{sID}, 0xe0")
e(f"s_add_u32 s{sT0}, s{sT0}, s{sT1}")
e(f"s_and_b32 s{sT1}, s{sID}, 3")
e(f"s_lshl_b32 s{sT1}, s{sT1}, 3")
e(f"s_add_u32 s{sT0}, s{sT0}, s{sT1}")
e(f"s_add_u32 s{sT0}, s{sT0}, {WS_LSE}")
e(f"v_lshl_add_u32 v25, v4, 8, s{sT0}")
e("s_waitcnt lgkmcnt(0)")
tagfix()
e(f"v_mov_b32 v13, s{sTAG}")
e(f"v_mov_b32 v15, s{sTAG}")
e(f"s_cmp_ge_u32 s{sID}, 240")
e("s_cbranch_scc1 L_sv1")
e("s_barrier")
e("s_barrier")
for p in range(8): e(f"ds_read_b128 v[{TT+4*p}:{TT+4*p+3}], v21 offset:{p*1024}")
for p in range(4):
    e(f"s_waitcnt lgkmcnt({3-p})")
    for k in (0, 2): e(f"v_pk_add_f32 v[{TT+4*p+k}:{TT+4*p+k+1}], v[{TT+4*p+k}:{TT+4*p+k+1}], v[{TT+16+4*p+k}:{TT+16+4*p+k+1}]")
for p in range(2):
    for k in (0, 2): e(f"v_pk_add_f32 v[{TT+4*p+k}:{TT+4*p+k+1}], v[{TT+4*p+k}:{TT+4*p+k+1}], v[{TT+8+4*p+k}:{TT+8+4*p+k+1}]")
for k in (0, 2): e(f"v_pk_add_f32 v[{TT+k}:{TT+k+1}], v[{TT+k}:{TT+k+1}], v[{TT+4+k}:{TT+4+k+1}]")
e(f"v_cvt_pk_bf16_f32 v12, v{TT}, v{TT+1}")
e(f"v_cvt_pk_bf16_f32 v14, v{TT+2}, v{TT+3}")
e(f"global_store_dwordx4 v22, v[12:15], s[{sWS}:{sWS+1}] sc1")
if opt.get("b2b"): e("s_barrier")
lab("L_sv1")
ts(2)
D = opt["qpipe"]
def qissue(j):
    for u in range(2): e(f"global_load_dwordx4 v[{WR+8*j+4*u}:{WR+8*j+4*u+3}], v16, s[{sWS}:{sWS+1}] offset:{u*1024} sc1")
def qwrite(j):
    e(f"ds_write2_b32 v17, v{WR+8*j}, v{WR+8*j+2} offset0:0 offset1:1")
    e(f"ds_write2_b32 v17, v{WR+8*j+4}, v{WR+8*j+6} offset0:136 offset1:137")
if opt["qdelay"]: e(f"s_sleep {opt['qdelay']}")
if opt["sq"]:
    c("scalar pre-wait: one tag of each of the 16 producers")
    lab("L_sq")
    for p in range(16): e(f"s_load_dword s{4+p}, s[{sB}:{sB+1}], {128*p+4} glc")
    e("s_waitcnt lgkmcnt(0)")
    e(f"s_xor_b32 s{sT0}, s4, s{sTAG}")
    for p in range(1, 16):
        e(f"s_xor_b32 s{sT1}, s{4+p}, s{sTAG}")
        e(f"s_or_b32 s{sT0}, s{sT0}, s{sT1}")
    e("s_cbranch_scc0 L_sqok")
    e(f"s_sub_u32 s{sCNT}, s{sCNT}, 1")
    if opt["sq"] > 1: e(f"s_sleep {opt['sq']}")
    e(f"s_cmp_gt_i32 s{sCNT}, 0")
    e("s_cbranch_scc1 L_sq")
    lab("L_sqok")
    ts(1)
ppoll("L_qp", D, 2, qissue, lambda j: [WR+8*j+1+2*k for k in range(4)], qwrite, opt["qsleep"])
ts(4)
def hissue():
    for u in range(4):
        e(f"global_load_dwordx4 v[{VR+8*u}:{VR+8*u+3}], v{26+u}, s[{sWS}:{sWS+1}] offset:-3584 sc1")
        e(f"global_load_dwordx4 v[{VR+8*u+4}:{VR+8*u+7}], v{26+u}, s[{sWS}:{sWS+1}] offset:3584 sc1")
e("s_waitcnt lgkmcnt(0)")
e("s_barrier")
e(f"s_cmp_ge_u32 s{sID}, 56")
e("s_cbranch_scc1 L_sv2")
hissue()
lab("L_sv2")
e("s_barrier")
mlcomb()
e("v_log_f32 v7, v7")
e(f"v_mov_b32 v9, s{sTAG}")
e("v_add_f32 v8, v6, v7")
e("s_mov_b64 exec, 15")
e(f"global_store_dwordx2 v25, v[8:9], s[{sWS}:{sWS+1}] sc1")
e("s_mov_b64 exec, -1")
ts(3)
e(f"s_cmp_ge_u32 s{sID}, 56")
e("s_cbranch_scc1 L_sv3")
e("s_waitcnt vmcnt(1)")
e("s_branch L_hchk")
lab("L_hpoll")
hissue()
e("s_waitcnt vmcnt(0)")
lab("L_hchk")
tagcheck([VR+1+2*k for k in range(16)], 4, 5, "L_hpoll", "L_hp")
for u in range(4):
    for k in range(2):
        g_, u_ = VR+8*u+2*k, VR+8*u+4+2*k
        e(f"v_lshlrev_b32 v4, 16, v{g_}")
        e(f"v_and_b32 v5, 0xffff0000, v{g_}")
        e(f"v_lshlrev_b32 v6, 16, v{u_}")
        e(f"v_and_b32 v7, 0xffff0000, v{u_}")
        e("v_max_f32 v4, 0, v4")
        e("v_max_f32 v5, 0, v5")
        e("v_mul_f32 v4, v4, v6")
        e("v_mul_f32 v5, v5, v7")
        e(f"v_cvt_pk_bf16_f32 v{8+2*u+k}, v4, v5")
for u in range(4): e(f"ds_write_b64 v20, v[{8+2*u}:{9+2*u}] offset:{u*544}")
ts(5)
e("s_waitcnt lgkmcnt(0)")
e("s_barrier")
lab("L_sv3")
if DIAG:
    e(f"s_mov_b32 s{sTS+12}, s{sCNT}")
    dump_ts(1, 7)
e("s_endpgm")

hdr = open("cdna_kernels/%s.s.ref" % NAME).read().split("; Override launch")[0]
out = hdr + f"; @launch grid=(256,1,1) block=(576,1,1) lds={LDS}\n"
out += f""".amdgcn_target "amdgcn-amd-amdhsa--gfx950"
.text
.globl {NAME}_kernel
.p2align 8
.type {NAME}_kernel,@function
{NAME}_kernel:
""" + "\n".join(L) + f"""
.section .rodata,"a"
.p2align 6
.amdhsa_kernel {NAME}_kernel
  .amdhsa_next_free_vgpr 164
  .amdhsa_next_free_sgpr 96
  .amdhsa_accum_offset 164
  .amdhsa_group_segment_fixed_size 0
  .amdhsa_kernarg_size 96
  .amdhsa_user_sgpr_count 2
  .amdhsa_user_sgpr_kernarg_segment_ptr 1
  .amdhsa_system_sgpr_workgroup_id_x 1
.end_amdhsa_kernel
"""
open(sys.argv[1], "w").write(out)
```

```python
import sys
NAME = "recurrent_scan__sliding_block_cached__glu_gated_reglu__decode"
opt = dict(diag=0, nt=1, spin=5000, sleep=4, prio=3, th=63, qpipe=1, qsleep=4, k1=4, b2b=1, opipe=1, osleep=4, spipe=1, ssleep=4, kprio=2, vs=4, va=8, vb=8, vc=8, wa=0, wb=0, wc=0, rot=3, opre=0, fpre=1, fsleep=8, lsleep=4, sq=0, qdelay=24, e3=0)
for a in sys.argv[2:]:
    k, v = a.split("="); opt[k] = int(v)
DIAG = opt["diag"]; NT = " nt" if opt["nt"] else ""
L = []
def e(s): L.append("    " + s)
def lab(s): L.append(s + ":")
def c(s): L.append("    ; " + s)
WS_Y, WS_LSE, WS_OP, WS_SP, WS_DP, WS_DIAG = 0x1000, 0x40000, 0x50000, 0x100000, 0x200000, 0x400000
YROW = 30720
W1 = 65536; SLAB = W1; SLAB2 = W1 + 16384; P1S = W1 + 32768; XN = P1S + 8192; QB = XN + 8320; HB = QB + 1088; OB = HB + 2176
MB = OB + 2176; LB = MB + 128; ZB = LB + 128; W3 = (ZB + 128 + 1023) & ~1023; LDS = W3 + 32768
sX, sK, sV, sWQ, sWO, sG, sU, sD, sOUT, sWS = 4, 6, 8, 10, 12, 16, 18, 20, 22, 26
sID, sW, sTAG, sROLE = 28, 29, 30, 31
sB = 32
sB2 = 34
sSTR, sT0, sT1, sT2, sCNT = 36, 37, 38, 39, 40
sPL, sPH = 41, 42
sM = 44
sM2 = 46
sU_ = 48
sTS = 64
vL, vG, vI = 1, 2, 3
WR, VR, TT, DD = 32, 64, 96, 128
nts = [0]
def ts(k):
    if DIAG: e(f"s_memrealtime s[{sTS+2*k}:{sTS+2*k+1}]")
def dump_ts(slot, n):
    if not DIAG: return
    e("s_waitcnt lgkmcnt(0)")
    if DIAG == 3:
        if slot: return
        nts[0] += 1
        e(f"s_cmp_lg_u32 s{sID}, {opt.get('swg', 0)}")
        e("s_cbranch_scc1 L_end")
        e(f"s_sub_u32 s{sT0}, s{sTS+2*opt['sk']}, s{sTS}")
        e(f"s_mul_i32 s{sT0}, s{sT0}, 10")
        e(f"s_add_u32 s{sT0}, s{sT0}, 3000")
        e(f"s_min_u32 s{sT0}, s{sT0}, 40000")
        lab(f"L_spin{nts[0]}")
        e("s_memrealtime s[4:5]")
        e("s_waitcnt lgkmcnt(0)")
        e(f"s_sub_u32 s4, s4, s{sTS}")
        e(f"s_cmp_lt_u32 s4, s{sT0}")
        e(f"s_cbranch_scc1 L_spin{nts[0]}")
        return
    if DIAG == 2:
        if slot: return
        e("s_mov_b64 exec, 1")
        e("v_mov_b32 v4, 0")
        e(f"s_not_b32 s{sT0}, s{sTS}")
        e(f"v_mov_b32 v5, s{sT0}")
        e("global_atomic_umax v4, v5, s[24:25] sc1")
        for k in range(n):
            e(f"v_mov_b32 v5, s{sTS+2*k}")
            e(f"s_cmp_lt_u32 s{sID}, 240")
            e(f"s_cbranch_scc0 L_dd{nts[0]}_{k}")
            e(f"global_atomic_umax v4, v5, s[24:25] offset:{4*k+4} sc1")
            lab(f"L_dd{nts[0]}_{k}")
        nts[0] += 1
        return
    e(f"s_lshl_b32 s{sT0}, s{sID}, 8")
    e(f"s_add_u32 s{sT0}, s{sT0}, {WS_DIAG + slot*64}")
    e(f"v_mov_b32 v4, s{sT0}")
    e("s_mov_b64 exec, 1")
    for k in range(n):
        e(f"v_mov_b32 v5, s{sTS+2*k}")
        e(f"global_store_dword v4, v5, s[{sWS}:{sWS+1}] offset:{4*k}")
    e("s_getreg_b32 s37, hwreg(HW_REG_XCC_ID)")
    e("v_mov_b32 v5, s37")
    e(f"global_store_dword v4, v5, s[{sWS}:{sWS+1}] offset:60")
    e("s_getreg_b32 s37, hwreg(HW_REG_HW_ID)")
    e("v_mov_b32 v5, s37")
    e(f"global_store_dword v4, v5, s[{sWS}:{sWS+1}] offset:56")
def base(dst, src, off):
    e(f"s_add_u32 s{dst}, s{src}, {off}")
    e(f"s_addc_u32 s{dst+1}, s{src+1}, 0")
def transpose(src, dst):
    for q in range(4):
        for j in range(4):
            a, b = src + 8*j + q, src + 8*j + 4 + q
            e(f"v_perm_b32 v{dst+8*q+j}, v{b}, v{a}, s{sPL}")
            e(f"v_perm_b32 v{dst+8*q+4+j}, v{b}, v{a}, s{sPH}")
def mfma(d, a, b, cc):
    cs = "0" if cc is None else f"v[{cc}:{cc+3}]"
    e(f"v_mfma_f32_16x16x32_bf16 v[{d}:{d+3}], v[{a}:{a+3}], v[{b}:{b+3}], {cs}")
def xlane(op, v, t, full=False):
    if full:
        for m in ["quad_perm:[1,0,3,2]", "quad_perm:[2,3,0,1]", "row_half_mirror", "row_mirror"]:
            e("s_nop 1")
            e(f"{op}_dpp v{v}, v{v}, v{v} {m} row_mask:0xf bank_mask:0xf")
    for sw in ["v_permlane16_swap_b32", "v_permlane32_swap_b32"]:
        e(f"v_mov_b32 v{t}, v{v}")
        e("s_nop 1")
        e(f"{sw} v{v}, v{t}")
        e("s_nop 0")
        e(f"{op} v{v}, v{v}, v{t}")
def rbf(v):
    e(f"v_cvt_pk_bf16_f32 v{v}, v{v}, v{v}")
    e(f"v_and_b32 v{v}, 0xffff0000, v{v}")
def tagcheck(regs, t0, t1, lfail_loop, name, sl=None):
    sl = opt["sleep"] if sl is None else sl
    e(f"v_min3_u32 v{t0}, v{regs[0]}, v{regs[1]}, v{regs[1]}")
    e(f"v_max3_u32 v{t1}, v{regs[0]}, v{regs[1]}, v{regs[1]}")
    for k in range(2, len(regs), 2):
        e(f"v_min3_u32 v{t0}, v{t0}, v{regs[k]}, v{regs[k+1]}")
        e(f"v_max3_u32 v{t1}, v{t1}, v{regs[k]}, v{regs[k+1]}")
    e(f"v_cmp_ne_u32 vcc, s{sTAG}, v{t0}")
    e(f"v_cmp_ne_u32 s[{sM}:{sM+1}], s{sTAG}, v{t1}")
    e(f"s_or_b64 vcc, vcc, s[{sM}:{sM+1}]")
    e(f"s_cbranch_scc0 {name}_ok")
    e(f"s_sub_u32 s{sCNT}, s{sCNT}, 1")
    if sl: e(f"s_sleep {sl}")
    e(f"s_cmp_gt_i32 s{sCNT}, 0")
    e(f"s_cbranch_scc1 {lfail_loop}")
    lab(f"{name}_ok")
def tagcmp(regs, okl):
    e(f"v_min_u32 v4, v{regs[0]}, v{regs[1]}")
    e(f"v_max_u32 v5, v{regs[0]}, v{regs[1]}")
    for k in range(2, len(regs), 2):
        e(f"v_min3_u32 v4, v4, v{regs[k]}, v{regs[k+1]}")
        e(f"v_max3_u32 v5, v5, v{regs[k]}, v{regs[k+1]}")
    e(f"v_cmp_ne_u32 vcc, s{sTAG}, v4")
    e(f"v_cmp_ne_u32 s[{sM}:{sM+1}], s{sTAG}, v5")
    e(f"s_or_b64 vcc, vcc, s[{sM}:{sM+1}]")
    e(f"s_cbranch_scc0 {okl}")
def ppoll(name, D, n, issue, tags, cont, sl, pre=0):
    if pre == D: e(f"s_branch {name}_in")
    for j in range(pre, D-1):
        issue(j)
        if sl: e(f"s_sleep {sl}")
    lab(name)
    for j in range(D):
        issue((j+D-1) % D)
        if j == 0 and pre == D: lab(f"{name}_in")
        e(f"s_waitcnt vmcnt({n*(D-1)})")
        tagcmp(tags(j), f"{name}_{j}")
        if sl: e(f"s_sleep {sl}")
    e(f"s_sub_u32 s{sCNT}, s{sCNT}, 1")
    e(f"s_cmp_gt_i32 s{sCNT}, 0")
    e(f"s_cbranch_scc1 {name}")
    for j in range(D-1, -1, -1):
        lab(f"{name}_{j}")
        cont(j)
        if j: e(f"s_branch {name}_done")
    lab(f"{name}_done")
TH = opt["th"]; K1 = opt["k1"]
def thr():
    if TH < 63: e(f"s_waitcnt vmcnt({TH-1})")
def tagfix():
    e(f"s_mul_i32 s{sTAG}, s{sTAG}, 0x9E3779B1")
    e(f"s_add_u32 s{sTAG}, s{sTAG}, 0x7F4A7C15")
def kdma(lo, hi):
    for jj in range(lo, hi):
        if jj == 4:
            e(f"s_add_u32 s{sT2}, s{sKM}, 4096")
            e(f"s_mov_b32 m0, s{sT2}")
            for q in range(4): e(f"v_xor_b32 v{16+q}, 0x1000, v{16+q}")
        if lo and opt.get("thk"): thr()
        e(f"global_load_lds_dwordx4 v{16+(jj&3)}, s[{sK}:{sK+1}] offset:{(jj&3)*1024}{NT}")
sKM, sTILE, sHB = 49, 50, 51
e("s_load_dwordx16 s[4:19], s[0:1], 0")
e("s_load_dwordx8 s[20:27], s[0:1], 64")
ts(0)
e("s_cmp_ge_u32 s2, 256")
e("s_cbranch_scc1 L_end")
e(f"s_mov_b32 s{sID}, s2")
e("v_lshrrev_b32 v4, 6, v0")
e(f"v_and_b32 v{vL}, 63, v0")
e(f"v_readfirstlane_b32 s{sW}, v4")
e(f"v_bfe_u32 v{vG}, v0, 4, 2")
e(f"v_and_b32 v{vI}, 15, v0")
e(f"s_mov_b32 s{sCNT}, {opt['spin']}")
e(f"s_and_b32 s{sU_}, s{sID}, 127")
c("phase-1 tile T = (id&~15) | (id&7)<<1 | (id>>3)&1")
e(f"s_and_b32 s{sT0}, s{sID}, 7")
e(f"s_lshl_b32 s{sT0}, s{sT0}, 1")
e(f"s_bfe_u32 s{sT1}, s{sID}, 0x10003")
e(f"s_or_b32 s{sT0}, s{sT0}, s{sT1}")
e(f"s_and_b32 s{sT1}, s{sID}, 0xf0")
e(f"s_or_b32 s{sTILE}, s{sT0}, s{sT1}")
e(f"s_movk_i32 s{sSTR}, 3584")
e(f"s_cmp_lt_u32 s{sID}, 128")
e(f"s_cselect_b32 s{sSTR}, 8192, s{sSTR}")
e(f"v_lshrrev_b32 v4, 2, v{vL}")
e(f"v_mul_u32_u24 v12, s{sSTR}, v4")
e(f"v_and_b32 v4, 3, v{vL}")
e("v_lshl_add_u32 v12, v4, 4, v12")
e(f"s_lshl_b32 s{sT0}, s{sW}, 10")
e(f"v_lshl_add_u32 v13, v{vL}, 4, s{sT0}")
e(f"s_lshl_b32 s{sKM}, s{sW}, 13")
e(f"s_lshl_b32 s{sT2}, s{sW}, 12")
e(f"s_add_u32 s{sT2}, s{sT2}, {W1}")
e(f"s_mov_b32 m0, s{sT2}")
e(f"s_lshl_b32 s{sT1}, s{sW}, 6")
e(f"s_mul_i32 s{sT1}, s{sT1}, s{sSTR}")
e(f"s_cmp_lt_u32 s{sTILE}, 184")
e(f"s_cselect_b32 s{sT0}, 0, 56")
e(f"s_and_b32 s{sT2}, s{sTILE}, 127")
e(f"s_sub_u32 s{sT0}, s{sT2}, s{sT0}")
e(f"s_lshl_b32 s{sT0}, s{sT0}, 6")
e(f"s_add_u32 s{sT1}, s{sT1}, s{sT0}")
e(f"s_lshl_b32 s{sT2}, s{sSTR}, 4")
e(f"s_sub_u32 s{sT2}, s{sT2}, 1024")
e("s_waitcnt lgkmcnt(0)")
ts(1)
e(f"s_load_dword s{sTAG}, s[{sWS}:{sWS+1}], 0")
e(f"s_cmp_eq_u32 s{sW}, 8")
e("s_cbranch_scc1 L_service")
e(f"s_cmp_ge_u32 s{sID}, 240")
e("s_cbranch_scc1 L_now1")
e(f"global_load_dwordx4 v[8:11], v13, s[{sX}:{sX+1}]")
e(f"s_cmp_lt_u32 s{sTILE}, 184")
e(f"s_cselect_b64 s[{sB}:{sB+1}], s[{sG}:{sG+1}], s[{sU}:{sU+1}]")
e(f"s_cmp_lt_u32 s{sID}, 128")
e(f"s_cselect_b64 s[{sB}:{sB+1}], s[{sWQ}:{sWQ+1}], s[{sB}:{sB+1}]")
base(sB, sB, f"s{sT1}")
for jj in range(4):
    e(f"global_load_lds_dwordx4 v12, s[{sB}:{sB+1}] offset:{jj*1024}{NT}")
    if jj < 3: e(f"v_add_u32 v12, s{sT2}, v12")
lab("L_now1")
c("KV slice offset: (id>>2)<<20 + 786432 + (id&3)<<16 + wave<<13")
e(f"s_lshr_b32 s{sT0}, s{sID}, 2")
e(f"s_lshl_b32 s{sT0}, s{sT0}, 20")
e(f"s_and_b32 s{sT1}, s{sID}, 3")
e(f"s_lshl_b32 s{sT1}, s{sT1}, 16")
e(f"s_add_u32 s{sT0}, s{sT0}, s{sT1}")
e(f"s_add_u32 s{sT0}, s{sT0}, 786432")
base(sK, sK, f"s{sT0}")
base(sV, sV, f"s{sT0}")
e(f"v_xor_b32 v16, v{vI}, v{vG}")
e("v_lshlrev_b32 v16, 4, v16")
e(f"v_lshl_add_u32 v16, v{vG}, 8, v16")
c("first 4 KB block of this wave: (2w + (w>>2)) ^ r ; the second one is ^1 (spreads the HBM stacks)")
e(f"s_lshr_b32 s{sHB}, s{sW}, 2")
e(f"s_lshl_b32 s{sT1}, s{sW}, 1")
e(f"s_or_b32 s{sHB}, s{sHB}, s{sT1}")
if opt["rot"]:
    e(f"s_bfe_u32 s{sT1}, s{sID}, {0x30000 + opt['rot']:#x}")
    e(f"s_xor_b32 s{sHB}, s{sHB}, s{sT1}")
e(f"s_lshl_b32 s{sHB}, s{sHB}, 12")
e(f"v_or_b32 v16, s{sHB}, v16")
e("v_xor_b32 v17, 64, v16")
e("v_xor_b32 v18, 0x80, v16")
e("v_xor_b32 v19, 0xc0, v16")
e(f"s_mov_b32 m0, s{sKM}")
ts(2)
e(f"s_cmp_ge_u32 s{sID}, 240")
e("s_cbranch_scc1 L_p1skip0")
c("layernorm of row w")
e(f"s_waitcnt vmcnt(4)")
ts(3)
for k in range(4):
    e(f"v_lshlrev_b32 v{TT+2*k}, 16, v{8+k}")
    e(f"v_and_b32 v{TT+2*k+1}, 0xffff0000, v{8+k}")
e(f"v_pk_add_f32 v[4:5], v[{TT}:{TT+1}], v[{TT+2}:{TT+3}]")
e(f"v_pk_add_f32 v[6:7], v[{TT+4}:{TT+5}], v[{TT+6}:{TT+7}]")
e("v_pk_add_f32 v[4:5], v[4:5], v[6:7]")
e("v_add_f32 v4, v4, v5")
xlane("v_add_f32", 4, 5, full=True)
e("v_mul_f32 v4, 0x3b000000, v4")
e(f"v_sub_f32 v5, v{TT}, v4")
e("v_mul_f32 v6, v5, v5")
for k in range(1, 8):
    e(f"v_sub_f32 v5, v{TT+k}, v4")
    e("v_fmac_f32 v6, v5, v5")
xlane("v_add_f32", 6, 5, full=True)
e("v_mul_f32 v6, 0x3b000000, v6")
rbf(4); rbf(6)
e("v_add_f32 v6, 0x3727c5ac, v6")
rbf(6)
e("v_sqrt_f32 v6, v6")
e("s_nop 0")
rbf(6)
e("v_rcp_f32 v6, v6")
for k in range(8): e(f"v_sub_f32 v{TT+k}, v{TT+k}, v4")
for k in range(4):
    e(f"v_cvt_pk_bf16_f32 v{8+k}, v{TT+2*k}, v{TT+2*k+1}")
    e(f"v_lshlrev_b32 v{TT+2*k}, 16, v{8+k}")
    e(f"v_and_b32 v{TT+2*k+1}, 0xffff0000, v{8+k}")
    e(f"v_mul_f32 v{TT+2*k}, v{TT+2*k}, v6")
    e(f"v_mul_f32 v{TT+2*k+1}, v{TT+2*k+1}, v6")
    e(f"v_cvt_pk_bf16_f32 v{8+k}, v{TT+2*k}, v{TT+2*k+1}")
e(f"s_mul_i32 s{sT0}, s{sW}, 1040")
e(f"s_add_u32 s{sT0}, s{sT0}, {XN}")
e(f"v_lshl_add_u32 v4, v{vL}, 4, s{sT0}")
e("ds_write_b128 v4, v[8:11]")
c("xn operand addresses (v6,v7), W tr-read address (v5), slab address (v4)")
e(f"v_and_b32 v5, 7, v{vI}")
e("v_mul_u32_u24 v4, 1040, v5")
e(f"v_lshl_add_u32 v4, v{vG}, 4, v4")
e(f"s_lshl_b32 s{sT0}, s{sW}, 7")
e(f"s_add_u32 s{sT0}, s{sT0}, {XN}")
e(f"v_add_u32 v4, s{sT0}, v4")
e(f"v_mov_b32 v5, {ZB}")
e(f"v_cmp_gt_u32 vcc, 8, v{vI}")
e(f"s_lshl_b32 s{sT0}, s{sW}, 12")
e(f"s_add_u32 s{sT0}, s{sT0}, {W1}")
e("v_cndmask_b32 v6, v5, v4, vcc")
e("v_cndmask_b32 v7, v4, v5, vcc")
e(f"v_lshrrev_b32 v4, 2, v{vI}")
e(f"v_lshl_add_u32 v4, v{vG}, 3, v4")
e(f"v_and_b32 v5, 3, v{vI}")
e("v_lshlrev_b32 v5, 3, v5")
e("v_lshl_add_u32 v5, v4, 6, v5")
e(f"v_add_u32 v5, s{sT0}, v5")
e(f"s_lshl_b32 s{sT0}, s{sW}, 10")
e(f"s_add_u32 s{sT0}, s{sT0}, {P1S}")
e(f"v_lshl_add_u32 v4, v{vL}, 4, s{sT0}")
e("s_waitcnt lgkmcnt(0)")
e("s_barrier")
for ks in range(2):
    for ct in range(2): e(f"ds_read_b128 v[{DD+8*ks+4*ct}:{DD+8*ks+4*ct+3}], v{6+ct} offset:{ks*64}")
kdma(0, K1)
e(f"s_waitcnt vmcnt({K1})")
ts(4)
for ks in range(2):
    for ct in range(2):
        for hh in range(2):
            r = TT+8*ks+4*ct+2*hh
            e(f"ds_read_b64_tr_b16 v[{r}:{r+1}], v5 offset:{ks*2048+hh*256+ct*32}")
e("s_waitcnt lgkmcnt(0)")
for n in range(4): mfma(8, TT+4*n, DD+4*n, None if n == 0 else 8)
e("s_nop 7")
e("ds_write_b128 v4, v[8:11]")
e("s_waitcnt lgkmcnt(0)")
e("s_barrier")
if opt.get("b2b"): e("s_barrier")
e("s_branch L_p1skip")
lab("L_p1skip0")
kdma(0, K1)
lab("L_p1skip")
ts(5)
if opt.get("kprio"): e(f"s_setprio {opt['kprio']}")
kdma(K1, 8) if K1 else (kdma(0, 1), kdma(1, 8))
if opt.get("kprio"): e("s_setprio 0")
e(f"v_lshlrev_b32 v59, 10, v{vG}")
e(f"v_lshl_add_u32 v59, v{vI}, 4, v59")
e(f"v_or_b32 v59, s{sHB}, v59")
e(f"v_xor_b32 v60, 0x1000, v59")
VS = opt["vs"]; VP = [opt["va"], opt["vb"], opt["vc"], 8]
def vload(lo, hi):
    for j in range(lo, hi):
        e(f"global_load_dwordx4 v[{VR+4*j}:{VR+4*j+3}], v{59+(j>>2)}, s[{sV}:{sV+1}] offset:{(j&3)*256}{NT}")
WP = [0, opt["wa"], opt["wb"], opt["wc"], 4]
def w3(p):
    if WP[p] == WP[p+1]: return
    e(f"s_cmp_lg_u32 s{sROLE}, 0")
    e(f"s_cbranch_scc0 L_now3{p}")
    for jj in range(WP[p], WP[p+1]):
        e(f"global_load_lds_dwordx4 v25, s[{sB2}:{sB2+1}] offset:{jj*1024}{NT}")
        if jj < 3: e(f"v_add_u32 v25, 3072, v25")
        if jj == 1: e("v_xor_b32 v25, 0x80, v25")
    lab(f"L_now3{p}")
c("phase-3 role: wo (id>=128) or down (id<56); W3 dma base sB2, voff v25; tr addr v27; operand addr v28; publish v26")
e(f"s_sub_u32 s{sT1}, s{sID}, 56")
e(f"s_cmp_lt_u32 s{sT1}, 72")
e(f"s_cselect_b32 s{sROLE}, 0, 1")
e(f"s_cmp_lt_u32 s{sID}, 128")
e(f"s_cselect_b64 s[{sB2}:{sB2+1}], s[{sD}:{sD+1}], s[{sWO}:{sWO+1}]")
e(f"s_mov_b32 s{sHB}, {WS_SP}")
e(f"s_cselect_b32 s{sHB}, {WS_DP}, s{sHB}")
e(f"s_lshr_b32 s{sT1}, s{sU_}, 2")
e(f"s_lshl_b32 s{sT0}, s{sT1}, 17")
e(f"s_lshl_b32 s{sT1}, s{sT1}, 8")
e(f"s_add_u32 s{sHB}, s{sHB}, s{sT1}")
e(f"s_lshl_b32 s{sT1}, s{sW}, 14")
e(f"s_add_u32 s{sT0}, s{sT0}, s{sT1}")
e(f"s_and_b32 s{sT1}, s{sU_}, 3")
e(f"s_lshl_b32 s{sT2}, s{sT1}, 8")
e(f"s_add_u32 s{sT0}, s{sT0}, s{sT2}")
base(sB2, sB2, f"s{sT0}")
e(f"v_lshlrev_b32 v4, 1, v{vG}")
e(f"v_xor_b32 v4, v4, v{vI}")
e("v_lshlrev_b32 v4, 4, v4")
e(f"v_lshl_add_u32 v25, v{vG}, 10, v4")
e(f"s_lshl_b32 s{sT2}, s{sW}, 12")
e(f"s_add_u32 s{sT2}, s{sT2}, {W3}")
e(f"s_mov_b32 m0, s{sT2}")
E3 = opt["e3"]
if E3: WP = [0, 4, 4, 4, 4]; w3(0); WP = [4]*5
vload(0, VS)
ts(6)
c("address precompute")
e(f"s_mov_b32 s{sPL}, 0x05040100")
e(f"s_mov_b32 s{sPH}, 0x07060302")
e("s_waitcnt lgkmcnt(0)")
tagfix()
e(f"s_and_b32 s{sT1}, s{sU_}, 3")
e(f"s_lshl_b32 s{sT1}, s{sT1}, 15")
e(f"s_add_u32 s{sHB}, s{sHB}, s{sT1}")
e(f"s_lshr_b32 s{sT1}, s{sW}, 1")
e(f"s_lshl_b32 s{sT1}, s{sT1}, 13")
e(f"s_add_u32 s{sHB}, s{sHB}, s{sT1}")
e(f"s_and_b32 s{sT1}, s{sW}, 1")
e(f"s_lshl_b32 s{sT1}, s{sT1}, 7")
e(f"s_add_u32 s{sHB}, s{sHB}, s{sT1}")
e(f"v_and_b32 v4, 7, v{vI}")
e(f"v_lshl_add_u32 v26, v4, 17, s{sHB}")
e(f"v_lshl_add_u32 v26, v{vG}, 5, v26")
e(f"v_lshrrev_b32 v5, 3, v{vI}")
e("v_lshl_add_u32 v26, v5, 4, v26")
e("v_mul_u32_u24 v28, 272, v4")
e(f"v_lshl_add_u32 v28, v{vG}, 4, v28")
e(f"v_add_u32 v28, {OB}, v28")
e(f"v_lshrrev_b32 v4, 2, v{vI}")
e(f"v_bfe_u32 v5, v{vI}, 1, 1")
e(f"s_lshl_b32 s{sT1}, s{sW}, 1")
e(f"v_or_b32 v5, s{sT1}, v5")
e("v_lshlrev_b32 v6, 1, v4")
e("v_xor_b32 v5, v5, v6")
e(f"v_and_b32 v6, 1, v{vG}")
e("v_lshlrev_b32 v6, 3, v6")
e("v_xor_b32 v5, v5, v6")
e(f"v_lshl_add_u32 v4, v{vG}, 3, v4")
e("v_lshlrev_b32 v4, 8, v4")
e("v_lshl_add_u32 v27, v5, 4, v4")
e(f"v_and_b32 v4, 1, v{vI}")
e("v_lshl_add_u32 v27, v4, 3, v27")
e(f"v_add_u32 v27, {W3}, v27")
e(f"v_cmp_lt_u32 s[{sM2}:{sM2+1}], 7, v{vI}")
e(f"v_xor_b32 v16, v{vI}, v{vG}")
e("v_lshlrev_b32 v16, 4, v16")
e(f"v_lshl_add_u32 v16, v{vI}, 8, v16")
e(f"v_add_u32 v16, s{sKM}, v16")
e("v_xor_b32 v17, 64, v16")
e("v_xor_b32 v18, 0x80, v16")
e("v_xor_b32 v19, 0xc0, v16")
e(f"v_and_b32 v22, 3, v{vI}")
e("v_mul_u32_u24 v23, 272, v22")
e(f"v_lshl_add_u32 v23, v{vG}, 4, v23")
e(f"v_add_u32 v23, {QB}, v23")
e(f"v_lshlrev_b32 v4, 5, v22")
e(f"s_lshl_b32 s{sT2}, s{sW}, 2")
e(f"v_add_u32 v24, {MB}, v4")
e(f"v_add_u32 v29, s{sT2}, v24")
e(f"s_lshr_b32 s{sT0}, s{sU_}, 2")
e(f"s_lshl_b32 s{sT0}, s{sT0}, 3")
e(f"s_add_u32 s{sT0}, s{sT0}, s{sW}")
e(f"s_lshl_b32 s{sT1}, s{sT0}, 5")
e(f"s_add_u32 s{sT1}, s{sT1}, {WS_LSE}")
e(f"v_mov_b32 v57, s{sT1}")
e(f"s_lshl_b32 s{sT1}, s{sT0}, 11")
e(f"s_add_u32 s{sT1}, s{sT1}, {WS_OP}")
e(f"v_lshl_add_u32 v56, v{vL}, 3, s{sT1}")
c("obuf write address: b*272 + (16g+4r+2a+e2)*4, lane=(a,g,e2,r)")
e(f"v_bfe_u32 v4, v{vL}, 3, 2")
e("v_lshlrev_b32 v58, 6, v4")
e(f"v_and_b32 v4, 3, v{vL}")
e("v_lshl_add_u32 v58, v4, 4, v58")
e(f"v_lshrrev_b32 v4, 5, v{vL}")
e("v_lshl_add_u32 v58, v4, 3, v58")
e(f"v_and_b32 v4, 4, v{vL}")
e(f"s_mul_i32 s{sT0}, s{sW}, 272")
e(f"s_add_u32 s{sT0}, s{sT0}, {OB}")
e(f"v_add3_u32 v58, v58, v4, s{sT0}")
c("PV slab write v30, read v31, o publish v20")
e(f"s_lshl_b32 s{sT0}, s{sW}, 11")
e(f"s_add_u32 s{sT0}, s{sT0}, {SLAB}")
e(f"v_lshl_add_u32 v30, v{vL}, 4, s{sT0}")
e(f"v_lshlrev_b32 v31, 2, v0")
e(f"v_add_u32 v31, {SLAB}, v31")
e(f"v_bfe_u32 v4, v{vL}, 2, 2")
e("v_lshlrev_b32 v20, 14, v4")
e(f"v_lshrrev_b32 v4, 5, v{vL}")
e("v_lshl_add_u32 v20, v4, 5, v20")
e(f"v_and_b32 v4, 3, v{vL}")
e("v_lshl_add_u32 v20, v4, 3, v20")
e(f"s_bfe_u32 s{sT0}, s{sID}, 0x30002")
e(f"s_lshl_b32 s{sT0}, s{sT0}, 16")
e(f"s_lshr_b32 s{sT1}, s{sID}, 5")
e(f"s_lshl_b32 s{sT1}, s{sT1}, 11")
e(f"s_add_u32 s{sT0}, s{sT0}, s{sT1}")
e(f"s_and_b32 s{sT1}, s{sID}, 3")
e(f"s_lshl_b32 s{sT1}, s{sT1}, 9")
e(f"s_add_u32 s{sT0}, s{sT0}, s{sT1}")
e(f"s_lshl_b32 s{sT1}, s{sW}, 6")
e(f"s_add_u32 s{sT0}, s{sT0}, s{sT1}")
e(f"s_add_u32 s{sT0}, s{sT0}, {WS_OP}")
e(f"v_add_u32 v20, s{sT0}, v20")
def vwait(n, nm):
    e(f"s_cbranch_scc1 {nm}")
    e(f"s_waitcnt vmcnt({n})")
    lab(nm)
    e(f"s_waitcnt vmcnt({n+4})")
if E3:
    e(f"s_cmp_lg_u32 s{sROLE}, 0")
    vwait(VS, "L_kw")
else: e(f"s_waitcnt vmcnt({VS})")
for t in range(2):
    for cc in range(4): e(f"ds_read_b128 v[{TT+16*t+4*cc}:{TT+16*t+4*cc+3}], v{16+cc} offset:{t*4096}")
e(f"s_mov_b32 s{sT0}, 0x3db504f3")
e(f"s_mov_b32 s{sT1}, 0x3fb8aa3b")
e("s_barrier")
ts(7)
for cc in range(4): e(f"ds_read_b128 v[{DD+4*cc}:{DD+4*cc+3}], v23 offset:{cc*64}")
e("s_waitcnt lgkmcnt(0)")
S = DD + 16
for cc in range(4):
    for t in range(2): mfma(S+4*t, TT+16*t+4*cc, DD+4*cc, None if cc == 0 else S+4*t)
vload(VS, VP[0])
w3(0)
e("s_nop 7")
for k in range(4): e(f"v_cvt_pk_bf16_f32 v{8+k}, v{S+2*k}, v{S+2*k+1}")
for k in range(4):
    e(f"v_lshlrev_b32 v{S+2*k}, 16, v{8+k}")
    e(f"v_and_b32 v{S+2*k+1}, 0xffff0000, v{8+k}")
for k in range(8): e(f"v_mul_f32 v{S+k}, s{sT0}, v{S+k}")
for k in range(4): e(f"v_cvt_pk_bf16_f32 v{8+k}, v{S+2*k}, v{S+2*k+1}")
for k in range(4):
    e(f"v_lshlrev_b32 v{S+2*k}, 16, v{8+k}")
    e(f"v_and_b32 v{S+2*k+1}, 0xffff0000, v{8+k}")
e(f"v_max3_f32 v6, v{S}, v{S+1}, v{S+2}")
e(f"v_max3_f32 v7, v{S+3}, v{S+4}, v{S+5}")
e(f"v_max3_f32 v6, v6, v{S+6}, v{S+7}")
e(f"v_max_f32 v6, v6, v7")
xlane("v_max_f32", 6, 7)
e(f"v_mul_f32 v23, s{sT1}, v6")
for k in range(8): e(f"v_fma_f32 v{S+k}, v{S+k}, s{sT1}, -v23")
for k in range(8): e(f"v_exp_f32 v{S+k}, v{S+k}")
e("s_nop 0")
e(f"v_pk_add_f32 v[4:5], v[{S}:{S+1}], v[{S+2}:{S+3}]")
e(f"v_pk_add_f32 v[6:7], v[{S+4}:{S+5}], v[{S+6}:{S+7}]")
e("v_pk_add_f32 v[4:5], v[4:5], v[6:7]")
e("v_add_f32 v7, v4, v5")
xlane("v_add_f32", 7, 8)
e("s_mov_b64 exec, 15")
e("ds_write2_b32 v29, v23, v7 offset0:0 offset1:32")
e("s_mov_b64 exec, -1")
vload(VP[0], VP[1])
w3(1)
e("s_waitcnt lgkmcnt(0)")
e("s_barrier")
vload(VP[1], VP[2])
w3(2)
def mlcomb():
    e("ds_read_b128 v[8:11], v24")
    e("ds_read_b128 v[12:15], v24 offset:16")
    e(f"ds_read_b128 v[{DD}:{DD+3}], v24 offset:128")
    e(f"ds_read_b128 v[{DD+4}:{DD+7}], v24 offset:144")
    e("s_waitcnt lgkmcnt(0)")
    e("v_max3_f32 v6, v8, v9, v10")
    e("v_max3_f32 v7, v11, v12, v13")
    e("v_max3_f32 v6, v6, v14, v15")
    e("v_max_f32 v6, v6, v7")
    for k in range(8): e(f"v_sub_f32 v{8+k}, v{8+k}, v6")
    for k in range(8): e(f"v_exp_f32 v{8+k}, v{8+k}")
    e(f"v_mul_f32 v7, v8, v{DD}")
    for k in range(1, 8): e(f"v_fmac_f32 v7, v{8+k}, v{DD+k}")
mlcomb()
e("v_sub_f32 v23, v23, v6")
e("v_rcp_f32 v8, v7")
e("v_exp_f32 v23, v23")
e(f"v_lshrrev_b32 v4, 2, v{vI}")
e("v_mul_f32 v23, v23, v8")
for k in range(8): e(f"v_mul_f32 v{S+k}, v23, v{S+k}")
for k in range(4): e(f"v_cvt_pk_bf16_f32 v{S+k}, v{S+2*k}, v{S+2*k+1}")
PM = DD + 20
for k in range(16): e(f"v_mov_b32 v{PM+k}, 0")
for cq in range(4):
    m = 0x000F000F << (4*cq)
    e(f"s_mov_b32 exec_lo, {m:#x}")
    e(f"s_mov_b32 exec_hi, {m:#x}")
    for k in range(0, 4, 2): e(f"v_pk_mov_b32 v[{PM+4*cq+k}:{PM+4*cq+k+1}], v[{S+k}:{S+k+1}], v[{S+k}:{S+k+1}] op_sel:[0,1]")
e("s_mov_b64 exec, -1")
e(f"v_mov_b32 v7, s{sTAG}")
ts(8)
vload(VP[2], 8)
w3(3)
e(f"s_cmp_lg_u32 s{sROLE}, 0")
for j in range(4):
    if E3: e(f"s_waitcnt vmcnt({6-2*j})")
    else: vwait(6-2*j, f"L_vw{j}")
    if j == 3: ts(9)
    for q in range(4):
        a, b = VR + 8*j + q, VR + 8*j + 4 + q
        e(f"v_perm_b32 v{TT+8*q+j}, v{b}, v{a}, s{sPL}")
        e(f"v_perm_b32 v{TT+8*q+4+j}, v{b}, v{a}, s{sPH}")
for cc in range(8): mfma(DD+4*(cc>>2), TT+4*cc, PM+4*(cc&3), None if (cc&3) == 0 else DD+4*(cc>>2))
e("s_nop 3")
e(f"ds_write_b128 v30, v[{DD}:{DD+3}]")
e("s_nop 2")
e(f"ds_write_b128 v30, v[{DD+4}:{DD+7}] offset:1024")
e("s_waitcnt lgkmcnt(0)")
e("s_barrier")
for k in range(4): e(f"ds_read2st64_b32 v[{8+2*k}:{9+2*k}], v31 offset0:{16*k} offset1:{16*k+8}")
e("s_waitcnt lgkmcnt(0)")
e("v_pk_add_f32 v[8:9], v[8:9], v[10:11]")
e("v_pk_add_f32 v[12:13], v[12:13], v[14:15]")
e("v_pk_add_f32 v[8:9], v[8:9], v[12:13]")
e("v_add_f32 v10, v8, v9")
e("v_add_f32 v11, v8, v9")
e("s_nop 1")
e("v_permlane16_swap_b32 v10, v11")
e("s_mov_b32 exec_lo, 0x0000FFFF")
e("s_mov_b32 exec_hi, 0x0000FFFF")
e("v_cvt_pk_bf16_f32 v6, v10, v11")
e(f"global_store_dwordx2 v20, v[6:7], s[{sWS}:{sWS+1}] sc1")
e("s_mov_b64 exec, -1")
ts(10)
def trread():
    for ks in range(4):
        for hh in range(2): e(f"ds_read_b64_tr_b16 v[{TT+4*ks+2*hh}:{TT+4*ks+2*hh+1}], v27 offset:{ks*8192+hh*1024}")
if E3: trread()
O = VR
e(f"s_cmp_lt_u32 s{sID}, 128")
e("s_cbranch_scc1 L_lo")
def lissue():
    for s_ in range(2): e(f"global_load_dwordx4 v[{O+4*s_}:{O+3+4*s_}], v57, s[{sWS}:{sWS+1}] offset:{s_*16} sc1")
def oissue(j):
    for s_ in range(4): e(f"global_load_dwordx2 v[{WR+8*j+2*s_}:{WR+8*j+2*s_+1}], v56, s[{sWS}:{sWS+1}] offset:{s_*512} sc1")
def ocont(j):
    R = WR+8*j
    for k in range(4):
        e(f"v_and_b32 v{R+2*k+1}, 0xffff0000, v{R+2*k}")
        e(f"v_lshlrev_b32 v{R+2*k}, 16, v{R+2*k}")
    e(f"v_pk_mul_f32 v[12:13], v[{R}:{R+1}], v[8:9] op_sel_hi:[1,0]")
    e(f"v_pk_mul_f32 v[14:15], v[{R+2}:{R+3}], v[8:9] op_sel:[0,1] op_sel_hi:[1,1]")
    e(f"v_pk_fma_f32 v[12:13], v[{R+4}:{R+5}], v[10:11], v[12:13] op_sel_hi:[1,0,1]")
    e(f"v_pk_fma_f32 v[14:15], v[{R+6}:{R+7}], v[10:11], v[14:15] op_sel:[0,1,0] op_sel_hi:[1,1,1]")
OD = opt["opipe"]
lab("L_lpoll")
lissue()
PRE = opt["opre"]
if PRE: oissue(0)
e(f"s_waitcnt vmcnt({4*PRE})")
tagcheck([O+1+2*k for k in range(4)], 4, 5, "L_lpoll", "L_lp", opt["lsleep"])
if not PRE: oissue(0); PRE = 1
e(f"v_max3_f32 v4, v{O}, v{O+2}, v{O+4}")
e(f"v_max_f32 v4, v4, v{O+6}")
for k in range(4): e(f"v_sub_f32 v{8+k}, v{O+2*k}, v4")
for k in range(4): e(f"v_exp_f32 v{8+k}, v{8+k}")
e("s_nop 0")
e("v_pk_add_f32 v[4:5], v[8:9], v[10:11]")
e("v_add_f32 v4, v4, v5")
e("v_rcp_f32 v4, v4")
e("s_nop 0")
for k in range(4): e(f"v_mul_f32 v{8+k}, v{8+k}, v4")
ppoll("L_op", OD, 4, oissue, lambda j: [WR+8*j+1+2*k for k in range(4)], ocont, opt["osleep"], PRE)
ts(11)
e("v_pk_add_f32 v[12:13], v[12:13], v[14:15]")
e("v_cvt_pk_bf16_f32 v12, v12, v13")
e("ds_write_b32 v58, v12")
e("s_waitcnt lgkmcnt(0)")
if not E3: lab("L_mf")
e("s_barrier")
if E3: lab("L_mf")
for ks in range(4): e(f"ds_read_b128 v[{DD+4*ks}:{DD+4*ks+3}], v28 offset:{ks*64}")
if not E3: trread()
e(f"v_mov_b32 v13, s{sTAG}")
e(f"v_mov_b32 v15, s{sTAG}")
for ks in range(4):
    e(f"s_waitcnt lgkmcnt({3-ks if E3 else 6-2*ks})")
    mfma(8, TT+4*ks, DD+4*ks, None if ks == 0 else 8)
e("s_nop 7")
e(f"v_cndmask_b32 v12, v8, v10, s[{sM2}:{sM2+1}]")
e(f"v_cndmask_b32 v14, v9, v11, s[{sM2}:{sM2+1}]")
e(f"global_store_dwordx4 v26, v[12:15], s[{sWS}:{sWS+1}] sc1")
e(f"s_cmp_lt_u32 s{sID}, 128")
e("s_cbranch_scc1 L_final")
ts(12)
if DIAG:
    e(f"s_cmp_lg_u32 s{sW}, 0")
    e("s_cbranch_scc1 L_end")
    dump_ts(0, 13)
e("s_endpgm")
lab("L_lo")
e(f"s_cmp_ge_u32 s{sID}, 56")
e("s_cbranch_scc1 L_final")
if not E3: e("s_waitcnt vmcnt(1)")
e("s_branch L_mf")
lab("L_final")
e(f"s_cmp_lg_u32 s{sW}, 0")
e("s_cbranch_scc1 L_end")
e(f"s_lshl_b32 s{sT0}, s{sID}, 13")
e(f"s_add_u32 s{sT0}, s{sT0}, 4096")
e(f"v_lshl_add_u32 v16, v{vL}, 4, s{sT0}")
base(sB, sWS, WS_DP)
base(sB2, sWS, WS_SP)
e(f"s_lshl_b32 s{sT0}, s{sID}, 6")
e(f"v_lshl_add_u32 v17, v{vI}, 2, s{sT0}")
e(f"global_load_dword v18, v17, s[{sX}:{sX+1}]")
def fsum(R, n):
    e(f"v_add_f32 v8, v{R}, v{R+4}")
    e(f"v_add_f32 v9, v{R+2}, v{R+6}")
    e(f"v_add_f32 v10, v{R+8}, v{R+12}")
    e(f"v_add_f32 v11, v{R+10}, v{R+14}")
    for j in range(4, n):
        e(f"v_add_f32 v{8+2*(j&1)}, v{8+2*(j&1)}, v{R+4*j}")
        e(f"v_add_f32 v{9+2*(j&1)}, v{9+2*(j&1)}, v{R+4*j+2}")
def fred():
    e("v_pk_add_f32 v[8:9], v[8:9], v[10:11]")
    e("s_nop 1")
    e("v_permlane32_swap_b32 v8, v9")
    e("s_nop 0")
    e("v_add_f32 v8, v8, v9")
    e("v_mov_b32 v9, v8")
    e("s_nop 1")
    e("v_permlane16_swap_b32 v8, v9")
    e("s_nop 0")
    e("v_add_f32 v8, v8, v9")
    rbf(8)
e(f"v_mov_b32 v{DD+12}, 0")
e(f"v_mov_b32 v{DD+13}, s{sTAG}")
e(f"v_mov_b32 v{DD+14}, 0")
e(f"v_mov_b32 v{DD+15}, s{sTAG}")
if opt["fpre"]:
    c("cheap pre-wait: every workgroup has published its lse")
    e(f"v_lshlrev_b32 v6, 10, v{vG}")
    e(f"v_lshl_add_u32 v6, v{vI}, 4, v6")
    e(f"v_add_u32 v6, {WS_LSE + 4096}, v6")
    lab("L_fpoll")
    for u in range(2): e(f"global_load_dwordx4 v[{WR+4*u}:{WR+4*u+3}], v6, s[{sWS}:{sWS+1}] offset:{u*4096-4096} sc1")
    e("s_waitcnt vmcnt(0)")
    tagcheck([WR+1+2*k for k in range(4)], 4, 5, "L_fpoll", "L_fp", opt["fsleep"])
lab("L_dpoll")
for j in range(4):
    if j == 3: e("s_mov_b32 exec_hi, 0")
    e(f"global_load_dwordx4 v[{DD+4*j}:{DD+4*j+3}], v16, s[{sB}:{sB+1}] offset:{j*1024-4096} sc1")
e("s_mov_b32 exec_hi, -1")
def sissue(j):
    for k in range(8): e(f"global_load_dwordx4 v[{WR+32*j+4*k}:{WR+32*j+4*k+3}], v16, s[{sB2}:{sB2+1}] offset:{k*1024-4096} sc1")
sissue(0)
e("s_waitcnt vmcnt(8)")
tagcheck([DD+1+2*k for k in range(8)], 4, 5, "L_dpoll", "L_dp")
SD = opt["spipe"]
fsum(DD, 4)
fred()
ts(11)
c("g = bf16(silu(d)); x half for this lane")
e("v_mul_f32 v10, 0xbfb8aa3b, v8")
e("v_exp_f32 v10, v10")
e("v_lshlrev_b32 v19, 16, v18")
e("v_add_f32 v10, 1.0, v10")
e("v_rcp_f32 v10, v10")
e("v_and_b32 v18, 0xffff0000, v18")
e("v_mul_f32 v20, v8, v10")
rbf(20)
e("s_mov_b32 exec_hi, 0")
e("v_mov_b32 v18, v19")
e("s_mov_b32 exec_hi, -1")
e(f"v_lshrrev_b32 v4, 5, v{vL}")
e("v_lshl_add_u32 v17, v4, 1, v17")
ppoll("L_sp", SD, 8, sissue, lambda j: [WR+32*j+1+2*k for k in range(16)], lambda j: fsum(WR+32*j, 8), opt["ssleep"], 1)
fred()
e("v_mul_f32 v8, v8, v20")
rbf(8)
e("v_add_f32 v8, v8, v18")
e("v_cvt_pk_bf16_f32 v8, v8, v8")
e("s_mov_b32 exec_lo, 0xffff")
e("s_mov_b32 exec_hi, 0xffff")
e(f"global_store_short v17, v8, s[{sOUT}:{sOUT+1}]" + ["", " sc1", " sc0 sc1", " nt"][opt.get("osc", 0)])
ts(12)
e(f"s_cmp_lg_u32 s{sID}, 0")
e("s_cbranch_scc1 L_fin2")
e("s_mov_b64 exec, 1")
e("v_mov_b32 v4, 0")
e(f"v_mov_b32 v5, s{sTAG}")
e(f"global_store_dword v4, v5, s[{sWS}:{sWS+1}]" + ["", " sc1", " sc0 sc1", " nt"][opt.get("osc", 0)])
lab("L_fin2")
dump_ts(0, 13)
lab("L_end")
e("s_endpgm")
lab("L_service")
if opt["prio"]: e(f"s_setprio {opt['prio']}")
e("v_mov_b32 v8, 0")
e(f"v_and_b32 v4, 31, v{vL}")
e("v_lshlrev_b32 v4, 2, v4")
e(f"v_add_u32 v4, {ZB}, v4")
e("ds_write_b32 v4, v8")
c("q source: Y + b*YROW + hkv*2048 + lane*16 (+1024)")
e(f"s_lshr_b32 s{sT0}, s{sID}, 5")
e(f"s_mul_i32 s{sT0}, s{sT0}, {YROW}")
e(f"s_bfe_u32 s{sT1}, s{sID}, 0x30002")
e(f"s_lshl_b32 s{sT1}, s{sT1}, 11")
e(f"s_add_u32 s{sT0}, s{sT0}, s{sT1}")
e(f"s_add_u32 s{sT0}, s{sT0}, {WS_Y}")
e(f"v_lshl_add_u32 v16, v{vL}, 4, s{sT0}")
base(sB, sWS, f"s{sT0}")
e(f"v_lshrrev_b32 v4, 5, v{vL}")
e("v_mul_u32_u24 v17, 272, v4")
e(f"v_and_b32 v4, 31, v{vL}")
e("v_lshl_add_u32 v17, v4, 3, v17")
e(f"v_add_u32 v17, {QB}, v17")
c("h source v26..v29, h dest v20")
e(f"s_lshr_b32 s{sT0}, s{sU_}, 2")
e(f"s_lshl_b32 s{sT0}, s{sT0}, 9")
e(f"s_add_u32 s{sT0}, s{sT0}, {WS_Y + 16384 + 3584}")
e(f"v_lshrrev_b32 v5, 5, v{vL}")
e(f"v_mul_u32_u24 v26, {YROW}, v5")
e(f"v_lshl_add_u32 v26, v4, 4, v26")
e(f"v_add_u32 v26, s{sT0}, v26")
for j in range(1, 4): e(f"v_add_u32 v{26+j}, {2*j*YROW}, v26")
e(f"v_add_u32 v20, {OB - QB}, v17")
c("slab read v21, Y publish v22, ml read v24, lse publish v25")
e(f"v_lshlrev_b32 v21, 4, v{vL}")
e(f"v_add_u32 v21, {P1S}, v21")
e(f"v_and_b32 v4, 7, v{vI}")
e(f"v_mul_u32_u24 v22, {YROW}, v4")
e(f"v_lshrrev_b32 v4, 3, v{vI}")
e("v_lshl_add_u32 v22, v4, 6, v22")
e(f"v_lshl_add_u32 v22, v{vG}, 4, v22")
e(f"s_lshl_b32 s{sT0}, s{sTILE}, 7")
e(f"s_add_u32 s{sT0}, s{sT0}, {WS_Y}")
e(f"v_add_u32 v22, s{sT0}, v22")
e(f"v_and_b32 v4, 3, v{vI}")
e("v_lshlrev_b32 v24, 5, v4")
e(f"v_add_u32 v24, {MB}, v24")
e(f"s_bfe_u32 s{sT0}, s{sID}, 0x30002")
e(f"s_lshl_b32 s{sT0}, s{sT0}, 10")
e(f"s_and_b32 s{sT1}, s{sID}, 0xe0")
e(f"s_add_u32 s{sT0}, s{sT0}, s{sT1}")
e(f"s_and_b32 s{sT1}, s{sID}, 3")
e(f"s_lshl_b32 s{sT1}, s{sT1}, 3")
e(f"s_add_u32 s{sT0}, s{sT0}, s{sT1}")
e(f"s_add_u32 s{sT0}, s{sT0}, {WS_LSE}")
e(f"v_lshl_add_u32 v25, v4, 8, s{sT0}")
e("s_waitcnt lgkmcnt(0)")
tagfix()
e(f"v_mov_b32 v13, s{sTAG}")
e(f"v_mov_b32 v15, s{sTAG}")
e(f"s_cmp_ge_u32 s{sID}, 240")
e("s_cbranch_scc1 L_sv1")
e("s_barrier")
e("s_barrier")
for p in range(8): e(f"ds_read_b128 v[{TT+4*p}:{TT+4*p+3}], v21 offset:{p*1024}")
for p in range(4):
    e(f"s_waitcnt lgkmcnt({3-p})")
    for k in (0, 2): e(f"v_pk_add_f32 v[{TT+4*p+k}:{TT+4*p+k+1}], v[{TT+4*p+k}:{TT+4*p+k+1}], v[{TT+16+4*p+k}:{TT+16+4*p+k+1}]")
for p in range(2):
    for k in (0, 2): e(f"v_pk_add_f32 v[{TT+4*p+k}:{TT+4*p+k+1}], v[{TT+4*p+k}:{TT+4*p+k+1}], v[{TT+8+4*p+k}:{TT+8+4*p+k+1}]")
for k in (0, 2): e(f"v_pk_add_f32 v[{TT+k}:{TT+k+1}], v[{TT+k}:{TT+k+1}], v[{TT+4+k}:{TT+4+k+1}]")
e(f"v_cvt_pk_bf16_f32 v12, v{TT}, v{TT+1}")
e(f"v_cvt_pk_bf16_f32 v14, v{TT+2}, v{TT+3}")
e(f"global_store_dwordx4 v22, v[12:15], s[{sWS}:{sWS+1}] sc1")
if opt.get("b2b"): e("s_barrier")
lab("L_sv1")
ts(2)
D = opt["qpipe"]
def qissue(j):
    for u in range(2): e(f"global_load_dwordx4 v[{WR+8*j+4*u}:{WR+8*j+4*u+3}], v16, s[{sWS}:{sWS+1}] offset:{u*1024} sc1")
def qwrite(j):
    e(f"ds_write2_b32 v17, v{WR+8*j}, v{WR+8*j+2} offset0:0 offset1:1")
    e(f"ds_write2_b32 v17, v{WR+8*j+4}, v{WR+8*j+6} offset0:136 offset1:137")
if opt["qdelay"]: e(f"s_sleep {opt['qdelay']}")
if opt["sq"]:
    c("scalar pre-wait: one tag of each of the 16 producers")
    lab("L_sq")
    for p in range(16): e(f"s_load_dword s{4+p}, s[{sB}:{sB+1}], {128*p+4} glc")
    e("s_waitcnt lgkmcnt(0)")
    e(f"s_xor_b32 s{sT0}, s4, s{sTAG}")
    for p in range(1, 16):
        e(f"s_xor_b32 s{sT1}, s{4+p}, s{sTAG}")
        e(f"s_or_b32 s{sT0}, s{sT0}, s{sT1}")
    e("s_cbranch_scc0 L_sqok")
    e(f"s_sub_u32 s{sCNT}, s{sCNT}, 1")
    if opt["sq"] > 1: e(f"s_sleep {opt['sq']}")
    e(f"s_cmp_gt_i32 s{sCNT}, 0")
    e("s_cbranch_scc1 L_sq")
    lab("L_sqok")
    ts(1)
ppoll("L_qp", D, 2, qissue, lambda j: [WR+8*j+1+2*k for k in range(4)], qwrite, opt["qsleep"])
ts(4)
def hissue():
    for u in range(4):
        e(f"global_load_dwordx4 v[{VR+8*u}:{VR+8*u+3}], v{26+u}, s[{sWS}:{sWS+1}] offset:-3584 sc1")
        e(f"global_load_dwordx4 v[{VR+8*u+4}:{VR+8*u+7}], v{26+u}, s[{sWS}:{sWS+1}] offset:3584 sc1")
e("s_waitcnt lgkmcnt(0)")
e("s_barrier")
e(f"s_cmp_ge_u32 s{sID}, 56")
e("s_cbranch_scc1 L_sv2")
hissue()
lab("L_sv2")
e("s_barrier")
mlcomb()
e("v_log_f32 v7, v7")
e(f"v_mov_b32 v9, s{sTAG}")
e("v_add_f32 v8, v6, v7")
e("s_mov_b64 exec, 15")
e(f"global_store_dwordx2 v25, v[8:9], s[{sWS}:{sWS+1}] sc1")
e("s_mov_b64 exec, -1")
ts(3)
e(f"s_cmp_ge_u32 s{sID}, 56")
e("s_cbranch_scc1 L_sv3")
e("s_waitcnt vmcnt(1)")
e("s_branch L_hchk")
lab("L_hpoll")
hissue()
e("s_waitcnt vmcnt(0)")
lab("L_hchk")
tagcheck([VR+1+2*k for k in range(16)], 4, 5, "L_hpoll", "L_hp")
for u in range(4):
    for k in range(2):
        g_, u_ = VR+8*u+2*k, VR+8*u+4+2*k
        e(f"v_lshlrev_b32 v4, 16, v{g_}")
        e(f"v_and_b32 v5, 0xffff0000, v{g_}")
        e(f"v_lshlrev_b32 v6, 16, v{u_}")
        e(f"v_and_b32 v7, 0xffff0000, v{u_}")
        e("v_max_f32 v4, 0, v4")
        e("v_max_f32 v5, 0, v5")
        e("v_mul_f32 v4, v4, v6")
        e("v_mul_f32 v5, v5, v7")
        e(f"v_cvt_pk_bf16_f32 v{8+2*u+k}, v4, v5")
for u in range(4): e(f"ds_write_b64 v20, v[{8+2*u}:{9+2*u}] offset:{u*544}")
ts(5)
e("s_waitcnt lgkmcnt(0)")
e("s_barrier")
lab("L_sv3")
if DIAG:
    e(f"s_mov_b32 s{sTS+12}, s{sCNT}")
    dump_ts(1, 7)
e("s_endpgm")

hdr = open("cdna_kernels/%s.s.ref" % NAME).read().split("; Override launch")[0]
out = hdr + f"; @launch grid=(256,1,1) block=(576,1,1) lds={LDS}\n"
out += f""".amdgcn_target "amdgcn-amd-amdhsa--gfx950"
.text
.globl {NAME}_kernel
.p2align 8
.type {NAME}_kernel,@function
{NAME}_kernel:
""" + "\n".join(L) + f"""
.section .rodata,"a"
.p2align 6
.amdhsa_kernel {NAME}_kernel
  .amdhsa_next_free_vgpr 164
  .amdhsa_next_free_sgpr 96
  .amdhsa_accum_offset 164
  .amdhsa_group_segment_fixed_size 0
  .amdhsa_kernarg_size 96
  .amdhsa_user_sgpr_count 2
  .amdhsa_user_sgpr_kernarg_segment_ptr 1
  .amdhsa_system_sgpr_workgroup_id_x 1
.end_amdhsa_kernel
"""
open(sys.argv[1], "w").write(out)
```

```python
import sys
NAME = "recurrent_scan__sliding_block_cached__glu_gated_reglu__decode"
opt = dict(diag=0, nt=1, spin=5000, sleep=4, prio=3, th=63, qpipe=1, qsleep=4, k1=4, b2b=1, opipe=1, osleep=1, spipe=1, ssleep=4, kprio=2, vs=4, va=8, vb=8, vc=8, wa=0, wb=0, wc=0, rot=3, opre=0, fpre=1, fsleep=8, lsleep=1, sq=0, qdelay=24, e3=0, loc=1, lm=15, qloc=1)
for a in sys.argv[2:]:
    k, v = a.split("="); opt[k] = int(v)
DIAG = opt["diag"]; NT = " nt" if opt["nt"] else ""
L = []
def e(s): L.append("    " + s)
def lab(s): L.append(s + ":")
def c(s): L.append("    ; " + s)
WS_Y, WS_LSE, WS_OP, WS_SP, WS_DP, WS_DIAG = 0x1000, 0x40000, 0x50000, 0x100000, 0x200000, 0x400000
YROW = 30720
W1 = 65536; SLAB = W1; SLAB2 = W1 + 16384; P1S = W1 + 32768; XN = P1S + 8192; QB = XN + 8320; HB = QB + 1088; OB = HB + 2176
MB = OB + 2176; LB = MB + 128; ZB = LB + 128; W3 = (ZB + 128 + 1023) & ~1023; LDS = W3 + 32768
sX, sK, sV, sWQ, sWO, sG, sU, sD, sOUT, sWS = 4, 6, 8, 10, 12, 16, 18, 20, 22, 26
sID, sW, sTAG, sROLE = 28, 29, 30, 31
sB = 32
sB2 = 34
sSTR, sT0, sT1, sT2, sCNT = 36, 37, 38, 39, 40
sPL, sPH = 41, 42
sM = 44
sM2 = 46
sU_ = 48
sWA, sP = 54, 56
sTS = 64
vL, vG, vI = 1, 2, 3
WR, VR, TT, DD = 32, 64, 96, 128
nts = [0]
def ts(k):
    if DIAG: e(f"s_memrealtime s[{sTS+2*k}:{sTS+2*k+1}]")
def dump_ts(slot, n):
    if not DIAG: return
    e("s_waitcnt lgkmcnt(0)")
    if DIAG == 3:
        if slot: return
        nts[0] += 1
        e(f"s_cmp_lg_u32 s{sID}, {opt.get('swg', 0)}")
        e("s_cbranch_scc1 L_end")
        e(f"s_sub_u32 s{sT0}, s{sTS+2*opt['sk']}, s{sTS}")
        e(f"s_mul_i32 s{sT0}, s{sT0}, 10")
        e(f"s_add_u32 s{sT0}, s{sT0}, 3000")
        e(f"s_min_u32 s{sT0}, s{sT0}, 40000")
        lab(f"L_spin{nts[0]}")
        e("s_memrealtime s[4:5]")
        e("s_waitcnt lgkmcnt(0)")
        e(f"s_sub_u32 s4, s4, s{sTS}")
        e(f"s_cmp_lt_u32 s4, s{sT0}")
        e(f"s_cbranch_scc1 L_spin{nts[0]}")
        return
    if DIAG == 2:
        if slot: return
        e("s_mov_b64 exec, 1")
        e("v_mov_b32 v4, 0")
        e(f"s_not_b32 s{sT0}, s{sTS}")
        e(f"v_mov_b32 v5, s{sT0}")
        e("global_atomic_umax v4, v5, s[24:25] sc1")
        for k in range(n):
            e(f"v_mov_b32 v5, s{sTS+2*k}")
            e(f"s_cmp_lt_u32 s{sID}, 240")
            e(f"s_cbranch_scc0 L_dd{nts[0]}_{k}")
            e(f"global_atomic_umax v4, v5, s[24:25] offset:{4*k+4} sc1")
            lab(f"L_dd{nts[0]}_{k}")
        nts[0] += 1
        return
    e(f"s_lshl_b32 s{sT0}, s{sID}, 8")
    e(f"s_add_u32 s{sT0}, s{sT0}, {WS_DIAG + slot*64}")
    e(f"v_mov_b32 v4, s{sT0}")
    e("s_mov_b64 exec, 1")
    for k in range(n):
        e(f"v_mov_b32 v5, s{sTS+2*k}")
        e(f"global_store_dword v4, v5, s[{sWS}:{sWS+1}] offset:{4*k}")
    e("s_getreg_b32 s37, hwreg(HW_REG_XCC_ID)")
    e("v_mov_b32 v5, s37")
    e(f"global_store_dword v4, v5, s[{sWS}:{sWS+1}] offset:60")
    e("s_getreg_b32 s37, hwreg(HW_REG_HW_ID)")
    e("v_mov_b32 v5, s37")
    e(f"global_store_dword v4, v5, s[{sWS}:{sWS+1}] offset:56")
def base(dst, src, off):
    e(f"s_add_u32 s{dst}, s{src}, {off}")
    e(f"s_addc_u32 s{dst+1}, s{src+1}, 0")
def transpose(src, dst):
    for q in range(4):
        for j in range(4):
            a, b = src + 8*j + q, src + 8*j + 4 + q
            e(f"v_perm_b32 v{dst+8*q+j}, v{b}, v{a}, s{sPL}")
            e(f"v_perm_b32 v{dst+8*q+4+j}, v{b}, v{a}, s{sPH}")
def mfma(d, a, b, cc):
    cs = "0" if cc is None else f"v[{cc}:{cc+3}]"
    e(f"v_mfma_f32_16x16x32_bf16 v[{d}:{d+3}], v[{a}:{a+3}], v[{b}:{b+3}], {cs}")
def xlane(op, v, t, full=False):
    if full:
        for m in ["quad_perm:[1,0,3,2]", "quad_perm:[2,3,0,1]", "row_half_mirror", "row_mirror"]:
            e("s_nop 1")
            e(f"{op}_dpp v{v}, v{v}, v{v} {m} row_mask:0xf bank_mask:0xf")
    for sw in ["v_permlane16_swap_b32", "v_permlane32_swap_b32"]:
        e(f"v_mov_b32 v{t}, v{v}")
        e("s_nop 1")
        e(f"{sw} v{v}, v{t}")
        e("s_nop 0")
        e(f"{op} v{v}, v{v}, v{t}")
def rbf(v):
    e(f"v_cvt_pk_bf16_f32 v{v}, v{v}, v{v}")
    e(f"v_and_b32 v{v}, 0xffff0000, v{v}")
def locinit():
    base(sWA, sWS, 0x300000 if opt["loc"] else 0)
    e(f"s_mov_b64 s[{sP}:{sP+1}], s[{sWA}:{sWA+1}]")
def locsel(f):
    if not opt["loc"]: return
    e(f"s_and_b32 s{sT0}, s{sCNT}, {opt['lm']}")
    e(f"s_cselect_b64 s[{sP}:{sP+1}], s[{sWA}:{sWA+1}], s[{sWS}:{sWS+1}]")
    if f is not True:
        nts[0] += 1
        e(f"s_cbranch_scc1 L_ls{nts[0]}")
        f()
        lab(f"L_ls{nts[0]}")
def tagcheck(regs, t0, t1, lfail_loop, name, sl=None, loc=False):
    sl = opt["sleep"] if sl is None else sl
    e(f"v_min3_u32 v{t0}, v{regs[0]}, v{regs[1]}, v{regs[1]}")
    e(f"v_max3_u32 v{t1}, v{regs[0]}, v{regs[1]}, v{regs[1]}")
    for k in range(2, len(regs), 2):
        e(f"v_min3_u32 v{t0}, v{t0}, v{regs[k]}, v{regs[k+1]}")
        e(f"v_max3_u32 v{t1}, v{t1}, v{regs[k]}, v{regs[k+1]}")
    e(f"v_cmp_ne_u32 vcc, s{sTAG}, v{t0}")
    e(f"v_cmp_ne_u32 s[{sM}:{sM+1}], s{sTAG}, v{t1}")
    e(f"s_or_b64 vcc, vcc, s[{sM}:{sM+1}]")
    e(f"s_cbranch_scc0 {name}_ok")
    e(f"s_sub_u32 s{sCNT}, s{sCNT}, 1")
    if loc: locsel(loc)
    if sl: e(f"s_sleep {sl}")
    e(f"s_cmp_gt_i32 s{sCNT}, 0")
    e(f"s_cbranch_scc1 {lfail_loop}")
    lab(f"{name}_ok")
def tagcmp(regs, okl):
    e(f"v_min_u32 v4, v{regs[0]}, v{regs[1]}")
    e(f"v_max_u32 v5, v{regs[0]}, v{regs[1]}")
    for k in range(2, len(regs), 2):
        e(f"v_min3_u32 v4, v4, v{regs[k]}, v{regs[k+1]}")
        e(f"v_max3_u32 v5, v5, v{regs[k]}, v{regs[k+1]}")
    e(f"v_cmp_ne_u32 vcc, s{sTAG}, v4")
    e(f"v_cmp_ne_u32 s[{sM}:{sM+1}], s{sTAG}, v5")
    e(f"s_or_b64 vcc, vcc, s[{sM}:{sM+1}]")
    e(f"s_cbranch_scc0 {okl}")
def ppoll(name, D, n, issue, tags, cont, sl, pre=0, loc=False):
    if pre == D: e(f"s_branch {name}_in")
    for j in range(pre, D-1):
        issue(j)
        if sl: e(f"s_sleep {sl}")
    lab(name)
    for j in range(D):
        issue((j+D-1) % D)
        if j == 0 and pre == D: lab(f"{name}_in")
        e(f"s_waitcnt vmcnt({n*(D-1)})")
        tagcmp(tags(j), f"{name}_{j}")
        if sl: e(f"s_sleep {sl}")
    e(f"s_sub_u32 s{sCNT}, s{sCNT}, 1")
    if loc: locsel(loc)
    e(f"s_cmp_gt_i32 s{sCNT}, 0")
    e(f"s_cbranch_scc1 {name}")
    for j in range(D-1, -1, -1):
        lab(f"{name}_{j}")
        cont(j)
        if j: e(f"s_branch {name}_done")
    lab(f"{name}_done")
TH = opt["th"]; K1 = opt["k1"]
def thr():
    if TH < 63: e(f"s_waitcnt vmcnt({TH-1})")
def tagfix():
    e(f"s_mul_i32 s{sTAG}, s{sTAG}, 0x9E3779B1")
    e(f"s_add_u32 s{sTAG}, s{sTAG}, 0x7F4A7C15")
def kdma(lo, hi):
    for jj in range(lo, hi):
        if jj == 4:
            e(f"s_add_u32 s{sT2}, s{sKM}, 4096")
            e(f"s_mov_b32 m0, s{sT2}")
            for q in range(4): e(f"v_xor_b32 v{16+q}, 0x1000, v{16+q}")
        if lo and opt.get("thk"): thr()
        e(f"global_load_lds_dwordx4 v{16+(jj&3)}, s[{sK}:{sK+1}] offset:{(jj&3)*1024}{NT}")
sKM, sTILE, sHB, sA = 49, 50, 51, 52
LOC = opt["loc"]
sSP = 53; E3 = opt["e3"]
WP = [0, opt["wa"], opt["wb"], opt["wc"], 4]
def w3(p):
    if WP[p] == WP[p+1]: return
    e(f"s_cmp_lg_u32 s{sROLE}, 0")
    e(f"s_cbranch_scc0 L_now3{p}")
    for jj in range(WP[p], WP[p+1]):
        e(f"global_load_lds_dwordx4 v25, s[{sB2}:{sB2+1}] offset:{jj*1024}{NT}")
        if jj < 3: e(f"v_add_u32 v25, 3072, v25")
        if jj == 1: e("v_xor_b32 v25, 0x80, v25")
    lab(f"L_now3{p}")
def w3addr():
    c("phase-3 role: wo (id>=128) or down (id<56); W3 dma base sB2, voff v25; tr addr v27; operand addr v28; publish v26")
    e(f"s_sub_u32 s{sT1}, s{sID}, 56")
    e(f"s_cmp_lt_u32 s{sT1}, 72")
    e(f"s_cselect_b32 s{sROLE}, 0, 1")
    e(f"s_cmp_lt_u32 s{sID}, 128")
    e(f"s_cselect_b64 s[{sB2}:{sB2+1}], s[{sD}:{sD+1}], s[{sWO}:{sWO+1}]")
    e(f"s_mov_b32 s{sSP}, {WS_SP}")
    e(f"s_cselect_b32 s{sSP}, {WS_DP}, s{sSP}")
    e(f"s_lshr_b32 s{sT1}, s{sU_}, 2")
    e(f"s_lshl_b32 s{sT0}, s{sT1}, 17")
    e(f"s_lshl_b32 s{sT1}, s{sT1}, 8")
    e(f"s_add_u32 s{sSP}, s{sSP}, s{sT1}")
    e(f"s_lshl_b32 s{sT1}, s{sW}, 14")
    e(f"s_add_u32 s{sT0}, s{sT0}, s{sT1}")
    e(f"s_and_b32 s{sT1}, s{sU_}, 3")
    e(f"s_lshl_b32 s{sT2}, s{sT1}, 8")
    e(f"s_add_u32 s{sT0}, s{sT0}, s{sT2}")
    base(sB2, sB2, f"s{sT0}")
    e(f"v_lshlrev_b32 v4, 1, v{vG}")
    e(f"v_xor_b32 v4, v4, v{vI}")
    e("v_lshlrev_b32 v4, 4, v4")
    e(f"v_lshl_add_u32 v25, v{vG}, 10, v4")
    e(f"s_lshl_b32 s{sT2}, s{sW}, 12")
    e(f"s_add_u32 s{sT2}, s{sT2}, {W3}")
    e(f"s_mov_b32 m0, s{sT2}")
def vwait(n, nm):
    e(f"s_cbranch_scc1 {nm}")
    e(f"s_waitcnt vmcnt({n})")
    lab(nm)
    e(f"s_waitcnt vmcnt({n+4})")
e("s_load_dwordx16 s[4:19], s[0:1], 0")
e("s_load_dwordx8 s[20:27], s[0:1], 64")
ts(0)
e("s_cmp_ge_u32 s2, 256")
e("s_cbranch_scc1 L_end")
e(f"s_mov_b32 s{sID}, s2")
e("v_lshrrev_b32 v4, 6, v0")
e(f"v_and_b32 v{vL}, 63, v0")
e(f"v_readfirstlane_b32 s{sW}, v4")
e(f"v_bfe_u32 v{vG}, v0, 4, 2")
e(f"v_and_b32 v{vI}, 15, v0")
e(f"s_mov_b32 s{sCNT}, {opt['spin']}")
c("phase-1 tile T = (id&~15) | (id&7)<<1 | (id>>3)&1")
e(f"s_and_b32 s{sT0}, s{sID}, 7")
e(f"s_lshl_b32 s{sT0}, s{sT0}, 1")
e(f"s_bfe_u32 s{sT1}, s{sID}, 0x10003")
e(f"s_or_b32 s{sT0}, s{sT0}, s{sT1}")
e(f"s_and_b32 s{sT1}, s{sID}, 0xf0")
e(f"s_or_b32 s{sTILE}, s{sT0}, s{sT1}")
c("X = (id&7)<<4 | (id>>3)&15 : q tile (id<128) or wo unit (id>=128); attention id A = b<<5 | (id&7)<<2 | (id>>3)&3")
e(f"s_and_b32 s{sT0}, s{sID}, 7")
e(f"s_bfe_u32 s{sT1}, s{sID}, 0x40003")
e(f"s_lshl4_add_u32 s{sT2}, s{sT0}, s{sT1}")
e(f"s_and_b32 s{sT1}, s{sT1}, 3")
e(f"s_lshl2_add_u32 s{sT0}, s{sT0}, s{sT1}")
e(f"s_and_b32 s{sT1}, s{sID}, 0xe0")
e(f"s_or_b32 s{sA}, s{sT0}, s{sT1}")
e(f"s_cmp_lt_u32 s{sID}, 128")
if opt["qloc"]: e(f"s_cselect_b32 s{sTILE}, s{sT2}, s{sTILE}")
e(f"s_cselect_b32 s{sU_}, s{sID}, s{sT2}")
e(f"s_movk_i32 s{sSTR}, 3584")
e(f"s_cmp_lt_u32 s{sID}, 128")
e(f"s_cselect_b32 s{sSTR}, 8192, s{sSTR}")
e(f"v_lshrrev_b32 v4, 2, v{vL}")
e(f"v_mul_u32_u24 v12, s{sSTR}, v4")
e(f"v_and_b32 v4, 3, v{vL}")
e("v_lshl_add_u32 v12, v4, 4, v12")
e(f"s_lshl_b32 s{sT0}, s{sW}, 10")
e(f"v_lshl_add_u32 v13, v{vL}, 4, s{sT0}")
e(f"s_lshl_b32 s{sKM}, s{sW}, 13")
e(f"s_lshl_b32 s{sT2}, s{sW}, 12")
e(f"s_add_u32 s{sT2}, s{sT2}, {W1}")
e(f"s_mov_b32 m0, s{sT2}")
e(f"s_lshl_b32 s{sT1}, s{sW}, 6")
e(f"s_mul_i32 s{sT1}, s{sT1}, s{sSTR}")
e(f"s_cmp_lt_u32 s{sTILE}, 184")
e(f"s_cselect_b32 s{sT0}, 0, 56")
e(f"s_and_b32 s{sT2}, s{sTILE}, 127")
e(f"s_sub_u32 s{sT0}, s{sT2}, s{sT0}")
e(f"s_lshl_b32 s{sT0}, s{sT0}, 6")
e(f"s_add_u32 s{sT1}, s{sT1}, s{sT0}")
e(f"s_lshl_b32 s{sT2}, s{sSTR}, 4")
e(f"s_sub_u32 s{sT2}, s{sT2}, 1024")
e("s_waitcnt lgkmcnt(0)")
ts(1)
e(f"s_load_dword s{sTAG}, s[{sWS}:{sWS+1}], 0")
e(f"s_cmp_eq_u32 s{sW}, 8")
e("s_cbranch_scc1 L_service")
e(f"s_cmp_ge_u32 s{sID}, 240")
e("s_cbranch_scc1 L_now1")
if opt.get("wprio"): e("s_setprio 2")
e(f"global_load_dwordx4 v[8:11], v13, s[{sX}:{sX+1}]")
e(f"s_cmp_lt_u32 s{sTILE}, 184")
e(f"s_cselect_b64 s[{sB}:{sB+1}], s[{sG}:{sG+1}], s[{sU}:{sU+1}]")
e(f"s_cmp_lt_u32 s{sID}, 128")
e(f"s_cselect_b64 s[{sB}:{sB+1}], s[{sWQ}:{sWQ+1}], s[{sB}:{sB+1}]")
base(sB, sB, f"s{sT1}")
for jj in range(4):
    e(f"global_load_lds_dwordx4 v12, s[{sB}:{sB+1}] offset:{jj*1024}{NT}")
    if jj < 3: e(f"v_add_u32 v12, s{sT2}, v12")
lab("L_now1")
if E3 == 2:
    if opt.get("wprio"): e("s_setprio 0")
    w3addr(); WP = [0, 4, 4, 4, 4]; w3(0); WP = [4]*5
c("KV slice offset: (id>>2)<<20 + 786432 + (id&3)<<16 + wave<<13")
e(f"s_lshr_b32 s{sT0}, s{sA}, 2")
e(f"s_lshl_b32 s{sT0}, s{sT0}, 20")
e(f"s_and_b32 s{sT1}, s{sA}, 3")
e(f"s_lshl_b32 s{sT1}, s{sT1}, 16")
e(f"s_add_u32 s{sT0}, s{sT0}, s{sT1}")
e(f"s_add_u32 s{sT0}, s{sT0}, 786432")
base(sK, sK, f"s{sT0}")
base(sV, sV, f"s{sT0}")
e(f"v_xor_b32 v16, v{vI}, v{vG}")
e("v_lshlrev_b32 v16, 4, v16")
e(f"v_lshl_add_u32 v16, v{vG}, 8, v16")
c("first 4 KB block of this wave: (2w + (w>>2)) ^ r ; the second one is ^1 (spreads the HBM stacks)")
e(f"s_lshr_b32 s{sHB}, s{sW}, 2")
e(f"s_lshl_b32 s{sT1}, s{sW}, 1")
e(f"s_or_b32 s{sHB}, s{sHB}, s{sT1}")
if opt["rot"]:
    e(f"s_bfe_u32 s{sT1}, s{sID}, {0x30000 + opt['rot']:#x}")
    e(f"s_xor_b32 s{sHB}, s{sHB}, s{sT1}")
e(f"s_lshl_b32 s{sHB}, s{sHB}, 12")
e(f"v_or_b32 v16, s{sHB}, v16")
e("v_xor_b32 v17, 64, v16")
e("v_xor_b32 v18, 0x80, v16")
e("v_xor_b32 v19, 0xc0, v16")
e(f"s_mov_b32 m0, s{sKM}")
ts(2)
e(f"s_cmp_ge_u32 s{sID}, 240")
e("s_cbranch_scc1 L_p1skip0")
c("layernorm of row w")
if E3 == 2:
    e(f"s_cmp_lg_u32 s{sROLE}, 0")
    vwait(4, "L_xw")
else: e(f"s_waitcnt vmcnt(4)")
ts(3)
for k in range(4):
    e(f"v_lshlrev_b32 v{TT+2*k}, 16, v{8+k}")
    e(f"v_and_b32 v{TT+2*k+1}, 0xffff0000, v{8+k}")
e(f"v_pk_add_f32 v[4:5], v[{TT}:{TT+1}], v[{TT+2}:{TT+3}]")
e(f"v_pk_add_f32 v[6:7], v[{TT+4}:{TT+5}], v[{TT+6}:{TT+7}]")
e("v_pk_add_f32 v[4:5], v[4:5], v[6:7]")
e("v_add_f32 v4, v4, v5")
xlane("v_add_f32", 4, 5, full=True)
e("v_mul_f32 v4, 0x3b000000, v4")
e(f"v_sub_f32 v5, v{TT}, v4")
e("v_mul_f32 v6, v5, v5")
for k in range(1, 8):
    e(f"v_sub_f32 v5, v{TT+k}, v4")
    e("v_fmac_f32 v6, v5, v5")
xlane("v_add_f32", 6, 5, full=True)
e("v_mul_f32 v6, 0x3b000000, v6")
rbf(4); rbf(6)
e("v_add_f32 v6, 0x3727c5ac, v6")
rbf(6)
e("v_sqrt_f32 v6, v6")
e("s_nop 0")
rbf(6)
e("v_rcp_f32 v6, v6")
for k in range(8): e(f"v_sub_f32 v{TT+k}, v{TT+k}, v4")
for k in range(4):
    e(f"v_cvt_pk_bf16_f32 v{8+k}, v{TT+2*k}, v{TT+2*k+1}")
    e(f"v_lshlrev_b32 v{TT+2*k}, 16, v{8+k}")
    e(f"v_and_b32 v{TT+2*k+1}, 0xffff0000, v{8+k}")
    e(f"v_mul_f32 v{TT+2*k}, v{TT+2*k}, v6")
    e(f"v_mul_f32 v{TT+2*k+1}, v{TT+2*k+1}, v6")
    e(f"v_cvt_pk_bf16_f32 v{8+k}, v{TT+2*k}, v{TT+2*k+1}")
e(f"s_mul_i32 s{sT0}, s{sW}, 1040")
e(f"s_add_u32 s{sT0}, s{sT0}, {XN}")
e(f"v_lshl_add_u32 v4, v{vL}, 4, s{sT0}")
e("ds_write_b128 v4, v[8:11]")
c("xn operand addresses (v6,v7), W tr-read address (v5), slab address (v4)")
e(f"v_and_b32 v5, 7, v{vI}")
e("v_mul_u32_u24 v4, 1040, v5")
e(f"v_lshl_add_u32 v4, v{vG}, 4, v4")
e(f"s_lshl_b32 s{sT0}, s{sW}, 7")
e(f"s_add_u32 s{sT0}, s{sT0}, {XN}")
e(f"v_add_u32 v4, s{sT0}, v4")
e(f"v_mov_b32 v5, {ZB}")
e(f"v_cmp_gt_u32 vcc, 8, v{vI}")
e(f"s_lshl_b32 s{sT0}, s{sW}, 12")
e(f"s_add_u32 s{sT0}, s{sT0}, {W1}")
e("v_cndmask_b32 v6, v5, v4, vcc")
e("v_cndmask_b32 v7, v4, v5, vcc")
e(f"v_lshrrev_b32 v4, 2, v{vI}")
e(f"v_lshl_add_u32 v4, v{vG}, 3, v4")
e(f"v_and_b32 v5, 3, v{vI}")
e("v_lshlrev_b32 v5, 3, v5")
e("v_lshl_add_u32 v5, v4, 6, v5")
e(f"v_add_u32 v5, s{sT0}, v5")
e(f"s_lshl_b32 s{sT0}, s{sW}, 10")
e(f"s_add_u32 s{sT0}, s{sT0}, {P1S}")
e(f"v_lshl_add_u32 v4, v{vL}, 4, s{sT0}")
e("s_waitcnt lgkmcnt(0)")
e("s_barrier")
for ks in range(2):
    for ct in range(2): e(f"ds_read_b128 v[{DD+8*ks+4*ct}:{DD+8*ks+4*ct+3}], v{6+ct} offset:{ks*64}")
kdma(0, K1)
if E3 == 2:
    e(f"s_cmp_lg_u32 s{sROLE}, 0")
    vwait(K1, "L_ww")
else: e(f"s_waitcnt vmcnt({K1})")
ts(4)
for ks in range(2):
    for ct in range(2):
        for hh in range(2):
            r = TT+8*ks+4*ct+2*hh
            e(f"ds_read_b64_tr_b16 v[{r}:{r+1}], v5 offset:{ks*2048+hh*256+ct*32}")
e("s_waitcnt lgkmcnt(0)")
for n in range(4): mfma(8, TT+4*n, DD+4*n, None if n == 0 else 8)
e("s_nop 7")
e("ds_write_b128 v4, v[8:11]")
e("s_waitcnt lgkmcnt(0)")
e("s_barrier")
if opt.get("b2b"): e("s_barrier")
e("s_branch L_p1skip")
lab("L_p1skip0")
kdma(0, K1)
lab("L_p1skip")
ts(5)
if opt.get("kprio"): e(f"s_setprio {opt['kprio']}")
kdma(K1, 8) if K1 else (kdma(0, 1), kdma(1, 8))
if opt.get("kprio"): e("s_setprio 0")
e(f"v_lshlrev_b32 v59, 10, v{vG}")
e(f"v_lshl_add_u32 v59, v{vI}, 4, v59")
e(f"v_or_b32 v59, s{sHB}, v59")
e(f"v_xor_b32 v60, 0x1000, v59")
VS = opt["vs"]; VP = [opt["va"], opt["vb"], opt["vc"], 8]
def vload(lo, hi):
    for j in range(lo, hi):
        e(f"global_load_dwordx4 v[{VR+4*j}:{VR+4*j+3}], v{59+(j>>2)}, s[{sV}:{sV+1}] offset:{(j&3)*256}{NT}")
if E3 < 2: w3addr()
if E3 == 1: WP = [0, 4, 4, 4, 4]; w3(0); WP = [4]*5
vload(0, VS)
ts(6)
c("address precompute")
e(f"s_mov_b32 s{sPL}, 0x05040100")
e(f"s_mov_b32 s{sPH}, 0x07060302")
e("s_waitcnt lgkmcnt(0)")
tagfix()
locinit()
e(f"s_and_b32 s{sT1}, s{sU_}, 3")
e(f"s_lshl_b32 s{sT1}, s{sT1}, 15")
e(f"s_add_u32 s{sSP}, s{sSP}, s{sT1}")
e(f"s_lshr_b32 s{sT1}, s{sW}, 1")
e(f"s_lshl_b32 s{sT1}, s{sT1}, 13")
e(f"s_add_u32 s{sSP}, s{sSP}, s{sT1}")
e(f"s_and_b32 s{sT1}, s{sW}, 1")
e(f"s_lshl_b32 s{sT1}, s{sT1}, 7")
e(f"s_add_u32 s{sSP}, s{sSP}, s{sT1}")
e(f"v_and_b32 v4, 7, v{vI}")
e(f"v_lshl_add_u32 v26, v4, 17, s{sSP}")
e(f"v_lshl_add_u32 v26, v{vG}, 5, v26")
e(f"v_lshrrev_b32 v5, 3, v{vI}")
e("v_lshl_add_u32 v26, v5, 4, v26")
e("v_mul_u32_u24 v28, 272, v4")
e(f"v_lshl_add_u32 v28, v{vG}, 4, v28")
e(f"v_add_u32 v28, {OB}, v28")
e(f"v_lshrrev_b32 v4, 2, v{vI}")
e(f"v_bfe_u32 v5, v{vI}, 1, 1")
e(f"s_lshl_b32 s{sT1}, s{sW}, 1")
e(f"v_or_b32 v5, s{sT1}, v5")
e("v_lshlrev_b32 v6, 1, v4")
e("v_xor_b32 v5, v5, v6")
e(f"v_and_b32 v6, 1, v{vG}")
e("v_lshlrev_b32 v6, 3, v6")
e("v_xor_b32 v5, v5, v6")
e(f"v_lshl_add_u32 v4, v{vG}, 3, v4")
e("v_lshlrev_b32 v4, 8, v4")
e("v_lshl_add_u32 v27, v5, 4, v4")
e(f"v_and_b32 v4, 1, v{vI}")
e("v_lshl_add_u32 v27, v4, 3, v27")
e(f"v_add_u32 v27, {W3}, v27")
e(f"v_cmp_lt_u32 s[{sM2}:{sM2+1}], 7, v{vI}")
e(f"v_xor_b32 v16, v{vI}, v{vG}")
e("v_lshlrev_b32 v16, 4, v16")
e(f"v_lshl_add_u32 v16, v{vI}, 8, v16")
e(f"v_add_u32 v16, s{sKM}, v16")
e("v_xor_b32 v17, 64, v16")
e("v_xor_b32 v18, 0x80, v16")
e("v_xor_b32 v19, 0xc0, v16")
e(f"v_and_b32 v22, 3, v{vI}")
e("v_mul_u32_u24 v23, 272, v22")
e(f"v_lshl_add_u32 v23, v{vG}, 4, v23")
e(f"v_add_u32 v23, {QB}, v23")
e(f"v_lshlrev_b32 v4, 5, v22")
e(f"s_lshl_b32 s{sT2}, s{sW}, 2")
e(f"v_add_u32 v24, {MB}, v4")
e(f"v_add_u32 v29, s{sT2}, v24")
e(f"s_lshr_b32 s{sT0}, s{sU_}, 2")
e(f"s_lshl_b32 s{sT0}, s{sT0}, 3")
e(f"s_add_u32 s{sT0}, s{sT0}, s{sW}")
e(f"s_lshl_b32 s{sT1}, s{sT0}, 5")
e(f"s_add_u32 s{sT1}, s{sT1}, {WS_LSE}")
e(f"v_mov_b32 v57, s{sT1}")
e(f"s_lshl_b32 s{sT1}, s{sT0}, 11")
e(f"s_add_u32 s{sT1}, s{sT1}, {WS_OP}")
e(f"v_lshl_add_u32 v56, v{vL}, 3, s{sT1}")
c("obuf write address: b*272 + (16g+4r+2a+e2)*4, lane=(a,g,e2,r)")
e(f"v_bfe_u32 v4, v{vL}, 3, 2")
e("v_lshlrev_b32 v58, 6, v4")
e(f"v_and_b32 v4, 3, v{vL}")
e("v_lshl_add_u32 v58, v4, 4, v58")
e(f"v_lshrrev_b32 v4, 5, v{vL}")
e("v_lshl_add_u32 v58, v4, 3, v58")
e(f"v_and_b32 v4, 4, v{vL}")
e(f"s_mul_i32 s{sT0}, s{sW}, 272")
e(f"s_add_u32 s{sT0}, s{sT0}, {OB}")
e(f"v_add3_u32 v58, v58, v4, s{sT0}")
c("PV slab write v30, read v31, o publish v20")
e(f"s_lshl_b32 s{sT0}, s{sW}, 11")
e(f"s_add_u32 s{sT0}, s{sT0}, {SLAB}")
e(f"v_lshl_add_u32 v30, v{vL}, 4, s{sT0}")
e(f"v_lshlrev_b32 v31, 2, v0")
e(f"v_add_u32 v31, {SLAB}, v31")
e(f"v_bfe_u32 v4, v{vL}, 2, 2")
e("v_lshlrev_b32 v20, 14, v4")
e(f"v_lshrrev_b32 v4, 5, v{vL}")
e("v_lshl_add_u32 v20, v4, 5, v20")
e(f"v_and_b32 v4, 3, v{vL}")
e("v_lshl_add_u32 v20, v4, 3, v20")
e(f"s_bfe_u32 s{sT0}, s{sA}, 0x30002")
e(f"s_lshl_b32 s{sT0}, s{sT0}, 16")
e(f"s_lshr_b32 s{sT1}, s{sA}, 5")
e(f"s_lshl_b32 s{sT1}, s{sT1}, 11")
e(f"s_add_u32 s{sT0}, s{sT0}, s{sT1}")
e(f"s_and_b32 s{sT1}, s{sA}, 3")
e(f"s_lshl_b32 s{sT1}, s{sT1}, 9")
e(f"s_add_u32 s{sT0}, s{sT0}, s{sT1}")
e(f"s_lshl_b32 s{sT1}, s{sW}, 6")
e(f"s_add_u32 s{sT0}, s{sT0}, s{sT1}")
e(f"s_add_u32 s{sT0}, s{sT0}, {WS_OP}")
e(f"v_add_u32 v20, s{sT0}, v20")
if E3 == 1:
    e(f"s_cmp_lg_u32 s{sROLE}, 0")
    vwait(VS, "L_kw")
else: e(f"s_waitcnt vmcnt({VS})")
for t in range(2):
    for cc in range(4): e(f"ds_read_b128 v[{TT+16*t+4*cc}:{TT+16*t+4*cc+3}], v{16+cc} offset:{t*4096}")
e(f"s_mov_b32 s{sT0}, 0x3db504f3")
e(f"s_mov_b32 s{sT1}, 0x3fb8aa3b")
e("s_barrier")
ts(7)
for cc in range(4): e(f"ds_read_b128 v[{DD+4*cc}:{DD+4*cc+3}], v23 offset:{cc*64}")
e("s_waitcnt lgkmcnt(0)")
S = DD + 16
for cc in range(4):
    for t in range(2): mfma(S+4*t, TT+16*t+4*cc, DD+4*cc, None if cc == 0 else S+4*t)
vload(VS, VP[0])
w3(0)
e("s_nop 7")
for k in range(4): e(f"v_cvt_pk_bf16_f32 v{8+k}, v{S+2*k}, v{S+2*k+1}")
for k in range(4):
    e(f"v_lshlrev_b32 v{S+2*k}, 16, v{8+k}")
    e(f"v_and_b32 v{S+2*k+1}, 0xffff0000, v{8+k}")
for k in range(8): e(f"v_mul_f32 v{S+k}, s{sT0}, v{S+k}")
for k in range(4): e(f"v_cvt_pk_bf16_f32 v{8+k}, v{S+2*k}, v{S+2*k+1}")
for k in range(4):
    e(f"v_lshlrev_b32 v{S+2*k}, 16, v{8+k}")
    e(f"v_and_b32 v{S+2*k+1}, 0xffff0000, v{8+k}")
e(f"v_max3_f32 v6, v{S}, v{S+1}, v{S+2}")
e(f"v_max3_f32 v7, v{S+3}, v{S+4}, v{S+5}")
e(f"v_max3_f32 v6, v6, v{S+6}, v{S+7}")
e(f"v_max_f32 v6, v6, v7")
xlane("v_max_f32", 6, 7)
e(f"v_mul_f32 v23, s{sT1}, v6")
for k in range(8): e(f"v_fma_f32 v{S+k}, v{S+k}, s{sT1}, -v23")
for k in range(8): e(f"v_exp_f32 v{S+k}, v{S+k}")
e("s_nop 0")
e(f"v_pk_add_f32 v[4:5], v[{S}:{S+1}], v[{S+2}:{S+3}]")
e(f"v_pk_add_f32 v[6:7], v[{S+4}:{S+5}], v[{S+6}:{S+7}]")
e("v_pk_add_f32 v[4:5], v[4:5], v[6:7]")
e("v_add_f32 v7, v4, v5")
xlane("v_add_f32", 7, 8)
e("s_mov_b64 exec, 15")
e("ds_write2_b32 v29, v23, v7 offset0:0 offset1:32")
e("s_mov_b64 exec, -1")
vload(VP[0], VP[1])
w3(1)
e("s_waitcnt lgkmcnt(0)")
e("s_barrier")
vload(VP[1], VP[2])
w3(2)
def mlcomb():
    e("ds_read_b128 v[8:11], v24")
    e("ds_read_b128 v[12:15], v24 offset:16")
    e(f"ds_read_b128 v[{DD}:{DD+3}], v24 offset:128")
    e(f"ds_read_b128 v[{DD+4}:{DD+7}], v24 offset:144")
    e("s_waitcnt lgkmcnt(0)")
    e("v_max3_f32 v6, v8, v9, v10")
    e("v_max3_f32 v7, v11, v12, v13")
    e("v_max3_f32 v6, v6, v14, v15")
    e("v_max_f32 v6, v6, v7")
    for k in range(8): e(f"v_sub_f32 v{8+k}, v{8+k}, v6")
    for k in range(8): e(f"v_exp_f32 v{8+k}, v{8+k}")
    e(f"v_mul_f32 v7, v8, v{DD}")
    for k in range(1, 8): e(f"v_fmac_f32 v7, v{8+k}, v{DD+k}")
mlcomb()
e("v_sub_f32 v23, v23, v6")
e("v_rcp_f32 v8, v7")
e("v_exp_f32 v23, v23")
e(f"v_lshrrev_b32 v4, 2, v{vI}")
e("v_mul_f32 v23, v23, v8")
for k in range(8): e(f"v_mul_f32 v{S+k}, v23, v{S+k}")
for k in range(4): e(f"v_cvt_pk_bf16_f32 v{S+k}, v{S+2*k}, v{S+2*k+1}")
PM = DD + 20
for k in range(16): e(f"v_mov_b32 v{PM+k}, 0")
for cq in range(4):
    m = 0x000F000F << (4*cq)
    e(f"s_mov_b32 exec_lo, {m:#x}")
    e(f"s_mov_b32 exec_hi, {m:#x}")
    for k in range(0, 4, 2): e(f"v_pk_mov_b32 v[{PM+4*cq+k}:{PM+4*cq+k+1}], v[{S+k}:{S+k+1}], v[{S+k}:{S+k+1}] op_sel:[0,1]")
e("s_mov_b64 exec, -1")
e(f"v_mov_b32 v7, s{sTAG}")
ts(8)
vload(VP[2], 8)
w3(3)
e(f"s_cmp_lg_u32 s{sROLE}, 0")
for j in range(4):
    if E3: e(f"s_waitcnt vmcnt({6-2*j})")
    else: vwait(6-2*j, f"L_vw{j}")
    if j == 3: ts(9)
    for q in range(4):
        a, b = VR + 8*j + q, VR + 8*j + 4 + q
        e(f"v_perm_b32 v{TT+8*q+j}, v{b}, v{a}, s{sPL}")
        e(f"v_perm_b32 v{TT+8*q+4+j}, v{b}, v{a}, s{sPH}")
for cc in range(8): mfma(DD+4*(cc>>2), TT+4*cc, PM+4*(cc&3), None if (cc&3) == 0 else DD+4*(cc>>2))
e("s_nop 3")
e(f"ds_write_b128 v30, v[{DD}:{DD+3}]")
e("s_nop 2")
e(f"ds_write_b128 v30, v[{DD+4}:{DD+7}] offset:1024")
e("s_waitcnt lgkmcnt(0)")
e("s_barrier")
for k in range(4): e(f"ds_read2st64_b32 v[{8+2*k}:{9+2*k}], v31 offset0:{16*k} offset1:{16*k+8}")
e("s_waitcnt lgkmcnt(0)")
e("v_pk_add_f32 v[8:9], v[8:9], v[10:11]")
e("v_pk_add_f32 v[12:13], v[12:13], v[14:15]")
e("v_pk_add_f32 v[8:9], v[8:9], v[12:13]")
e("v_add_f32 v10, v8, v9")
e("v_add_f32 v11, v8, v9")
e("s_nop 1")
e("v_permlane16_swap_b32 v10, v11")
e("s_mov_b32 exec_lo, 0x0000FFFF")
e("s_mov_b32 exec_hi, 0x0000FFFF")
e("v_cvt_pk_bf16_f32 v6, v10, v11")
def ostoreB():
    e("s_mov_b32 exec_lo, 0x0000FFFF")
    e("s_mov_b32 exec_hi, 0x0000FFFF")
    e(f"global_store_dwordx2 v20, v[6:7], s[{sWS}:{sWS+1}] sc1")
    e("s_mov_b64 exec, -1")
if LOC: e(f"global_store_dwordx2 v20, v[6:7], s[{sWA}:{sWA+1}]")
else: e(f"global_store_dwordx2 v20, v[6:7], s[{sWS}:{sWS+1}] sc1")
e("s_mov_b64 exec, -1")
ts(10)
def trread():
    for ks in range(4):
        for hh in range(2): e(f"ds_read_b64_tr_b16 v[{TT+4*ks+2*hh}:{TT+4*ks+2*hh+1}], v27 offset:{ks*8192+hh*1024}")
if E3: trread()
O = VR
e(f"s_cmp_lt_u32 s{sID}, 128")
e("s_cbranch_scc1 L_lo")
def lissue():
    for s_ in range(2): e(f"global_load_dwordx4 v[{O+4*s_}:{O+3+4*s_}], v57, s[{sP}:{sP+1}] offset:{s_*16} sc1")
def oissue(j):
    for s_ in range(4): e(f"global_load_dwordx2 v[{WR+8*j+2*s_}:{WR+8*j+2*s_+1}], v56, s[{sP}:{sP+1}] offset:{s_*512} sc1")
def ocont(j):
    R = WR+8*j
    for k in range(4):
        e(f"v_and_b32 v{R+2*k+1}, 0xffff0000, v{R+2*k}")
        e(f"v_lshlrev_b32 v{R+2*k}, 16, v{R+2*k}")
    e(f"v_pk_mul_f32 v[12:13], v[{R}:{R+1}], v[8:9] op_sel_hi:[1,0]")
    e(f"v_pk_mul_f32 v[14:15], v[{R+2}:{R+3}], v[8:9] op_sel:[0,1] op_sel_hi:[1,1]")
    e(f"v_pk_fma_f32 v[12:13], v[{R+4}:{R+5}], v[10:11], v[12:13] op_sel_hi:[1,0,1]")
    e(f"v_pk_fma_f32 v[14:15], v[{R+6}:{R+7}], v[10:11], v[14:15] op_sel:[0,1,0] op_sel_hi:[1,1,1]")
OD = opt["opipe"]
lab("L_lpoll")
lissue()
PRE = opt["opre"]
if PRE: oissue(0)
e(f"s_waitcnt vmcnt({4*PRE})")
tagcheck([O+1+2*k for k in range(4)], 4, 5, "L_lpoll", "L_lp", opt["lsleep"], ostoreB)
if LOC: e(f"s_mov_b64 s[{sP}:{sP+1}], s[{sWA}:{sWA+1}]")
if not PRE: oissue(0); PRE = 1
e(f"v_max3_f32 v4, v{O}, v{O+2}, v{O+4}")
e(f"v_max_f32 v4, v4, v{O+6}")
for k in range(4): e(f"v_sub_f32 v{8+k}, v{O+2*k}, v4")
for k in range(4): e(f"v_exp_f32 v{8+k}, v{8+k}")
e("s_nop 0")
e("v_pk_add_f32 v[4:5], v[8:9], v[10:11]")
e("v_add_f32 v4, v4, v5")
e("v_rcp_f32 v4, v4")
e("s_nop 0")
for k in range(4): e(f"v_mul_f32 v{8+k}, v{8+k}, v4")
ppoll("L_op", OD, 4, oissue, lambda j: [WR+8*j+1+2*k for k in range(4)], ocont, opt["osleep"], PRE, ostoreB)
ts(11)
e("v_pk_add_f32 v[12:13], v[12:13], v[14:15]")
e("v_cvt_pk_bf16_f32 v12, v12, v13")
e("ds_write_b32 v58, v12")
if LOC: ostoreB()
e("s_waitcnt lgkmcnt(0)")
if not E3: lab("L_mf")
e("s_barrier")
if E3: lab("L_mf")
for ks in range(4): e(f"ds_read_b128 v[{DD+4*ks}:{DD+4*ks+3}], v28 offset:{ks*64}")
if not E3: trread()
e(f"v_mov_b32 v13, s{sTAG}")
e(f"v_mov_b32 v15, s{sTAG}")
for ks in range(4):
    e(f"s_waitcnt lgkmcnt({3-ks if E3 else 6-2*ks})")
    mfma(8, TT+4*ks, DD+4*ks, None if ks == 0 else 8)
e("s_nop 7")
e(f"v_cndmask_b32 v12, v8, v10, s[{sM2}:{sM2+1}]")
e(f"v_cndmask_b32 v14, v9, v11, s[{sM2}:{sM2+1}]")
e(f"global_store_dwordx4 v26, v[12:15], s[{sWS}:{sWS+1}] sc1")
e(f"s_cmp_lt_u32 s{sID}, 128")
e("s_cbranch_scc1 L_final")
ts(12)
if DIAG:
    e(f"s_cmp_lg_u32 s{sW}, 0")
    e("s_cbranch_scc1 L_end")
    dump_ts(0, 13)
e("s_endpgm")
lab("L_lo")
if LOC: ostoreB()
e(f"s_cmp_ge_u32 s{sID}, 56")
e("s_cbranch_scc1 L_final")
if not E3: e(f"s_waitcnt vmcnt({1+(LOC>0)})")
e("s_branch L_mf")
lab("L_final")
e(f"s_cmp_lg_u32 s{sW}, 0")
e("s_cbranch_scc1 L_end")
e(f"s_lshl_b32 s{sT0}, s{sID}, 13")
e(f"s_add_u32 s{sT0}, s{sT0}, 4096")
e(f"v_lshl_add_u32 v16, v{vL}, 4, s{sT0}")
base(sB, sWS, WS_DP)
base(sB2, sWS, WS_SP)
e(f"s_lshl_b32 s{sT0}, s{sID}, 6")
e(f"v_lshl_add_u32 v17, v{vI}, 2, s{sT0}")
e(f"global_load_dword v18, v17, s[{sX}:{sX+1}]")
def fsum(R, n):
    e(f"v_add_f32 v8, v{R}, v{R+4}")
    e(f"v_add_f32 v9, v{R+2}, v{R+6}")
    e(f"v_add_f32 v10, v{R+8}, v{R+12}")
    e(f"v_add_f32 v11, v{R+10}, v{R+14}")
    for j in range(4, n):
        e(f"v_add_f32 v{8+2*(j&1)}, v{8+2*(j&1)}, v{R+4*j}")
        e(f"v_add_f32 v{9+2*(j&1)}, v{9+2*(j&1)}, v{R+4*j+2}")
def fred():
    e("v_pk_add_f32 v[8:9], v[8:9], v[10:11]")
    e("s_nop 1")
    e("v_permlane32_swap_b32 v8, v9")
    e("s_nop 0")
    e("v_add_f32 v8, v8, v9")
    e("v_mov_b32 v9, v8")
    e("s_nop 1")
    e("v_permlane16_swap_b32 v8, v9")
    e("s_nop 0")
    e("v_add_f32 v8, v8, v9")
    rbf(8)
e(f"v_mov_b32 v{DD+12}, 0")
e(f"v_mov_b32 v{DD+13}, s{sTAG}")
e(f"v_mov_b32 v{DD+14}, 0")
e(f"v_mov_b32 v{DD+15}, s{sTAG}")
if opt["fpre"]:
    c("cheap pre-wait: every workgroup has published its lse")
    e(f"v_lshlrev_b32 v6, 10, v{vG}")
    e(f"v_lshl_add_u32 v6, v{vI}, 4, v6")
    e(f"v_add_u32 v6, {WS_LSE + 4096}, v6")
    lab("L_fpoll")
    for u in range(2): e(f"global_load_dwordx4 v[{WR+4*u}:{WR+4*u+3}], v6, s[{sWS}:{sWS+1}] offset:{u*4096-4096} sc1")
    e("s_waitcnt vmcnt(0)")
    tagcheck([WR+1+2*k for k in range(4)], 4, 5, "L_fpoll", "L_fp", opt["fsleep"])
lab("L_dpoll")
for j in range(4):
    if j == 3: e("s_mov_b32 exec_hi, 0")
    e(f"global_load_dwordx4 v[{DD+4*j}:{DD+4*j+3}], v16, s[{sB}:{sB+1}] offset:{j*1024-4096} sc1")
e("s_mov_b32 exec_hi, -1")
def sissue(j):
    for k in range(8): e(f"global_load_dwordx4 v[{WR+32*j+4*k}:{WR+32*j+4*k+3}], v16, s[{sB2}:{sB2+1}] offset:{k*1024-4096} sc1")
sissue(0)
e("s_waitcnt vmcnt(8)")
tagcheck([DD+1+2*k for k in range(8)], 4, 5, "L_dpoll", "L_dp")
SD = opt["spipe"]
fsum(DD, 4)
fred()
ts(11)
c("g = bf16(silu(d)); x half for this lane")
e("v_mul_f32 v10, 0xbfb8aa3b, v8")
e("v_exp_f32 v10, v10")
e("v_lshlrev_b32 v19, 16, v18")
e("v_add_f32 v10, 1.0, v10")
e("v_rcp_f32 v10, v10")
e("v_and_b32 v18, 0xffff0000, v18")
e("v_mul_f32 v20, v8, v10")
rbf(20)
e("s_mov_b32 exec_hi, 0")
e("v_mov_b32 v18, v19")
e("s_mov_b32 exec_hi, -1")
e(f"v_lshrrev_b32 v4, 5, v{vL}")
e("v_lshl_add_u32 v17, v4, 1, v17")
ppoll("L_sp", SD, 8, sissue, lambda j: [WR+32*j+1+2*k for k in range(16)], lambda j: fsum(WR+32*j, 8), opt["ssleep"], 1)
fred()
e("v_mul_f32 v8, v8, v20")
rbf(8)
e("v_add_f32 v8, v8, v18")
e("v_cvt_pk_bf16_f32 v8, v8, v8")
e("s_mov_b32 exec_lo, 0xffff")
e("s_mov_b32 exec_hi, 0xffff")
e(f"global_store_short v17, v8, s[{sOUT}:{sOUT+1}]" + ["", " sc1", " sc0 sc1", " nt"][opt.get("osc", 0)])
ts(12)
e(f"s_cmp_lg_u32 s{sID}, 0")
e("s_cbranch_scc1 L_fin2")
e("s_mov_b64 exec, 1")
e("v_mov_b32 v4, 0")
e(f"v_mov_b32 v5, s{sTAG}")
e(f"global_store_dword v4, v5, s[{sWS}:{sWS+1}]" + ["", " sc1", " sc0 sc1", " nt"][opt.get("osc", 0)])
lab("L_fin2")
dump_ts(0, 13)
lab("L_end")
e("s_endpgm")
lab("L_service")
if opt["prio"]: e(f"s_setprio {opt['prio']}")
e("v_mov_b32 v8, 0")
e(f"v_and_b32 v4, 31, v{vL}")
e("v_lshlrev_b32 v4, 2, v4")
e(f"v_add_u32 v4, {ZB}, v4")
e("ds_write_b32 v4, v8")
locinit()
if LOC > 1:
    c("bring the lines of the local o / lse copies of this head into L2")
    e(f"s_cmp_lt_u32 s{sID}, 128")
    e("s_cbranch_scc1 L_nopt")
    e(f"s_lshl_b32 s{sT0}, s{sU_}, 12")
    e(f"s_add_u32 s{sT0}, s{sT0}, {WS_OP}")
    e(f"v_lshl_add_u32 v5, v{vL}, 6, s{sT0}")
    e(f"global_load_dword v6, v5, s[{sWA}:{sWA+1}]")
    e(f"s_lshl_b32 s{sT0}, s{sU_}, 6")
    e(f"s_add_u32 s{sT0}, s{sT0}, {WS_LSE}")
    e(f"v_mov_b32 v5, s{sT0}")
    e(f"global_load_dword v7, v5, s[{sWA}:{sWA+1}]")
    lab("L_nopt")
c("q source: Y + b*YROW + hkv*2048 + lane*16 (+1024)")
e(f"s_lshr_b32 s{sT0}, s{sA}, 5")
e(f"s_mul_i32 s{sT0}, s{sT0}, {YROW}")
e(f"s_bfe_u32 s{sT1}, s{sA}, 0x30002")
e(f"s_lshl_b32 s{sT1}, s{sT1}, 11")
e(f"s_add_u32 s{sT0}, s{sT0}, s{sT1}")
e(f"s_add_u32 s{sT0}, s{sT0}, {WS_Y}")
e(f"v_lshl_add_u32 v16, v{vL}, 4, s{sT0}")
base(sB, sWS, f"s{sT0}")
e(f"v_lshrrev_b32 v4, 5, v{vL}")
e("v_mul_u32_u24 v17, 272, v4")
e(f"v_and_b32 v4, 31, v{vL}")
e("v_lshl_add_u32 v17, v4, 3, v17")
e(f"v_add_u32 v17, {QB}, v17")
c("h source v26..v29, h dest v20")
e(f"s_lshr_b32 s{sT0}, s{sU_}, 2")
e(f"s_lshl_b32 s{sT0}, s{sT0}, 9")
e(f"s_add_u32 s{sT0}, s{sT0}, {WS_Y + 16384 + 3584}")
e(f"v_lshrrev_b32 v5, 5, v{vL}")
e(f"v_mul_u32_u24 v26, {YROW}, v5")
e(f"v_lshl_add_u32 v26, v4, 4, v26")
e(f"v_add_u32 v26, s{sT0}, v26")
for j in range(1, 4): e(f"v_add_u32 v{26+j}, {2*j*YROW}, v26")
e(f"v_add_u32 v20, {OB - QB}, v17")
c("slab read v21, Y publish v22, ml read v24, lse publish v25")
e(f"v_lshlrev_b32 v21, 4, v{vL}")
e(f"v_add_u32 v21, {P1S}, v21")
e(f"v_and_b32 v4, 7, v{vI}")
e(f"v_mul_u32_u24 v22, {YROW}, v4")
e(f"v_lshrrev_b32 v4, 3, v{vI}")
e("v_lshl_add_u32 v22, v4, 6, v22")
e(f"v_lshl_add_u32 v22, v{vG}, 4, v22")
e(f"s_lshl_b32 s{sT0}, s{sTILE}, 7")
e(f"s_add_u32 s{sT0}, s{sT0}, {WS_Y}")
e(f"v_add_u32 v22, s{sT0}, v22")
e(f"v_and_b32 v4, 3, v{vI}")
e("v_lshlrev_b32 v24, 5, v4")
e(f"v_add_u32 v24, {MB}, v24")
e(f"s_bfe_u32 s{sT0}, s{sA}, 0x30002")
e(f"s_lshl_b32 s{sT0}, s{sT0}, 10")
e(f"s_and_b32 s{sT1}, s{sID}, 0xe0")
e(f"s_add_u32 s{sT0}, s{sT0}, s{sT1}")
e(f"s_and_b32 s{sT1}, s{sA}, 3")
e(f"s_lshl_b32 s{sT1}, s{sT1}, 3")
e(f"s_add_u32 s{sT0}, s{sT0}, s{sT1}")
e(f"s_add_u32 s{sT0}, s{sT0}, {WS_LSE}")
e(f"v_lshl_add_u32 v25, v4, 8, s{sT0}")
e("s_waitcnt lgkmcnt(0)")
tagfix()
e(f"v_mov_b32 v13, s{sTAG}")
e(f"v_mov_b32 v15, s{sTAG}")
e(f"s_cmp_ge_u32 s{sID}, 240")
e("s_cbranch_scc1 L_sv1")
e("s_barrier")
e("s_barrier")
for p in range(8): e(f"ds_read_b128 v[{TT+4*p}:{TT+4*p+3}], v21 offset:{p*1024}")
for p in range(4):
    e(f"s_waitcnt lgkmcnt({3-p})")
    for k in (0, 2): e(f"v_pk_add_f32 v[{TT+4*p+k}:{TT+4*p+k+1}], v[{TT+4*p+k}:{TT+4*p+k+1}], v[{TT+16+4*p+k}:{TT+16+4*p+k+1}]")
for p in range(2):
    for k in (0, 2): e(f"v_pk_add_f32 v[{TT+4*p+k}:{TT+4*p+k+1}], v[{TT+4*p+k}:{TT+4*p+k+1}], v[{TT+8+4*p+k}:{TT+8+4*p+k+1}]")
for k in (0, 2): e(f"v_pk_add_f32 v[{TT+k}:{TT+k+1}], v[{TT+k}:{TT+k+1}], v[{TT+4+k}:{TT+4+k+1}]")
e(f"v_cvt_pk_bf16_f32 v12, v{TT}, v{TT+1}")
e(f"v_cvt_pk_bf16_f32 v14, v{TT+2}, v{TT+3}")
QL = LOC and opt["qloc"]
if QL: e(f"global_store_dwordx4 v22, v[12:15], s[{sWA}:{sWA+1}]")
e(f"global_store_dwordx4 v22, v[12:15], s[{sWS}:{sWS+1}] sc1")
if opt.get("b2b"): e("s_barrier")
lab("L_sv1")
ts(2)
D = opt["qpipe"]
def qissue(j):
    for u in range(2): e(f"global_load_dwordx4 v[{WR+8*j+4*u}:{WR+8*j+4*u+3}], v16, s[{sP if QL else sWS}:{(sP if QL else sWS)+1}] offset:{u*1024} sc1")
def qwrite(j):
    e(f"ds_write2_b32 v17, v{WR+8*j}, v{WR+8*j+2} offset0:0 offset1:1")
    e(f"ds_write2_b32 v17, v{WR+8*j+4}, v{WR+8*j+6} offset0:136 offset1:137")
if opt["qdelay"]: e(f"s_sleep {opt['qdelay']}")
if opt["sq"]:
    c("scalar pre-wait: one tag of each of the 16 producers")
    lab("L_sq")
    for p in range(16): e(f"s_load_dword s{4+p}, s[{sB}:{sB+1}], {128*p+4} glc")
    e("s_waitcnt lgkmcnt(0)")
    e(f"s_xor_b32 s{sT0}, s4, s{sTAG}")
    for p in range(1, 16):
        e(f"s_xor_b32 s{sT1}, s{4+p}, s{sTAG}")
        e(f"s_or_b32 s{sT0}, s{sT0}, s{sT1}")
    e("s_cbranch_scc0 L_sqok")
    e(f"s_sub_u32 s{sCNT}, s{sCNT}, 1")
    if opt["sq"] > 1: e(f"s_sleep {opt['sq']}")
    e(f"s_cmp_gt_i32 s{sCNT}, 0")
    e("s_cbranch_scc1 L_sq")
    lab("L_sqok")
    ts(1)
ppoll("L_qp", D, 2, qissue, lambda j: [WR+8*j+1+2*k for k in range(4)], qwrite, opt["qsleep"], 0, True)
ts(4)
def hissue():
    for u in range(4):
        e(f"global_load_dwordx4 v[{VR+8*u}:{VR+8*u+3}], v{26+u}, s[{sWS}:{sWS+1}] offset:-3584 sc1")
        e(f"global_load_dwordx4 v[{VR+8*u+4}:{VR+8*u+7}], v{26+u}, s[{sWS}:{sWS+1}] offset:3584 sc1")
e("s_waitcnt lgkmcnt(0)")
e("s_barrier")
e(f"s_cmp_ge_u32 s{sID}, 56")
e("s_cbranch_scc1 L_sv2")
hissue()
lab("L_sv2")
e("s_barrier")
mlcomb()
e("v_log_f32 v7, v7")
e(f"v_mov_b32 v9, s{sTAG}")
e("v_add_f32 v8, v6, v7")
e("s_mov_b64 exec, 15")
if LOC: e(f"global_store_dwordx2 v25, v[8:9], s[{sWA}:{sWA+1}]")
e(f"global_store_dwordx2 v25, v[8:9], s[{sWS}:{sWS+1}] sc1")
e("s_mov_b64 exec, -1")
ts(3)
e(f"s_cmp_ge_u32 s{sID}, 56")
e("s_cbranch_scc1 L_sv3")
e(f"s_waitcnt vmcnt({1+(LOC>0)})")
e("s_branch L_hchk")
lab("L_hpoll")
hissue()
e("s_waitcnt vmcnt(0)")
lab("L_hchk")
tagcheck([VR+1+2*k for k in range(16)], 4, 5, "L_hpoll", "L_hp")
for u in range(4):
    for k in range(2):
        g_, u_ = VR+8*u+2*k, VR+8*u+4+2*k
        e(f"v_lshlrev_b32 v4, 16, v{g_}")
        e(f"v_and_b32 v5, 0xffff0000, v{g_}")
        e(f"v_lshlrev_b32 v6, 16, v{u_}")
        e(f"v_and_b32 v7, 0xffff0000, v{u_}")
        e("v_max_f32 v4, 0, v4")
        e("v_max_f32 v5, 0, v5")
        e("v_mul_f32 v4, v4, v6")
        e("v_mul_f32 v5, v5, v7")
        e(f"v_cvt_pk_bf16_f32 v{8+2*u+k}, v4, v5")
for u in range(4): e(f"ds_write_b64 v20, v[{8+2*u}:{9+2*u}] offset:{u*544}")
ts(5)
e("s_waitcnt lgkmcnt(0)")
e("s_barrier")
lab("L_sv3")
if DIAG:
    e(f"s_mov_b32 s{sTS+12}, s{sCNT}")
    dump_ts(1, 7)
e("s_endpgm")

hdr = open("cdna_kernels/%s.s.ref" % NAME).read().split("; Override launch")[0]
out = hdr + f"; @launch grid=(256,1,1) block=(576,1,1) lds={LDS}\n"
out += f""".amdgcn_target "amdgcn-amd-amdhsa--gfx950"
.text
.globl {NAME}_kernel
.p2align 8
.type {NAME}_kernel,@function
{NAME}_kernel:
""" + "\n".join(L) + f"""
.section .rodata,"a"
.p2align 6
.amdhsa_kernel {NAME}_kernel
  .amdhsa_next_free_vgpr 164
  .amdhsa_next_free_sgpr 96
  .amdhsa_accum_offset 164
  .amdhsa_group_segment_fixed_size 0
  .amdhsa_kernarg_size 96
  .amdhsa_user_sgpr_count 2
  .amdhsa_user_sgpr_kernarg_segment_ptr 1
  .amdhsa_system_sgpr_workgroup_id_x 1
.end_amdhsa_kernel
"""
open(sys.argv[1], "w").write(out)
```

```python
import sys
NAME = "recurrent_scan__sliding_block_cached__glu_gated_reglu__decode"
opt = dict(diag=0, nt=1, spin=5000, sleep=4, prio=3, th=63, qpipe=1, qsleep=4, k1=4, b2b=1, opipe=1, osleep=1, spipe=1, ssleep=4, kprio=2, vs=4, va=8, vb=8, vc=8, wa=0, wb=0, wc=0, rot=3, opre=0, fpre=1, fsleep=8, lsleep=1, sq=0, qdelay=24, e3=0, loc=1, lm=15, qloc=1, qpt=0, slse=0)
for a in sys.argv[2:]:
    k, v = a.split("="); opt[k] = int(v)
DIAG = opt["diag"]; NT = " nt" if opt["nt"] else ""
L = []
def e(s): L.append("    " + s)
def lab(s): L.append(s + ":")
def c(s): L.append("    ; " + s)
WS_Y, WS_LSE, WS_OP, WS_SP, WS_DP, WS_DIAG = 0x1000, 0x40000, 0x50000, 0x100000, 0x200000, 0x400000
YROW = 30720
W1 = 65536; SLAB = W1; SLAB2 = W1 + 16384; P1S = W1 + 32768; XN = P1S + 8192; QB = XN + 8320; HB = QB + 1088; OB = HB + 2176
MB = OB + 2176; LB = MB + 128; ZB = LB + 128; W3 = (ZB + 128 + 1023) & ~1023; LDS = W3 + 32768
sX, sK, sV, sWQ, sWO, sG, sU, sD, sOUT, sWS = 4, 6, 8, 10, 12, 16, 18, 20, 22, 26
sID, sW, sTAG, sROLE = 28, 29, 30, 31
sB = 32
sB2 = 34
sSTR, sT0, sT1, sT2, sCNT = 36, 37, 38, 39, 40
sPL, sPH = 41, 42
sM = 44
sM2 = 46
sU_ = 48
sWA, sP = 54, 56
sTS = 64
vL, vG, vI = 1, 2, 3
WR, VR, TT, DD = 32, 64, 96, 128
nts = [0]
def ts(k):
    if DIAG: e(f"s_memrealtime s[{sTS+2*k}:{sTS+2*k+1}]")
def dump_ts(slot, n):
    if not DIAG: return
    e("s_waitcnt lgkmcnt(0)")
    if DIAG == 3:
        if slot: return
        nts[0] += 1
        e(f"s_cmp_lg_u32 s{sID}, {opt.get('swg', 0)}")
        e("s_cbranch_scc1 L_end")
        e(f"s_sub_u32 s{sT0}, s{sTS+2*opt['sk']}, s{sTS}")
        e(f"s_mul_i32 s{sT0}, s{sT0}, 10")
        e(f"s_add_u32 s{sT0}, s{sT0}, 3000")
        e(f"s_min_u32 s{sT0}, s{sT0}, 40000")
        lab(f"L_spin{nts[0]}")
        e("s_memrealtime s[4:5]")
        e("s_waitcnt lgkmcnt(0)")
        e(f"s_sub_u32 s4, s4, s{sTS}")
        e(f"s_cmp_lt_u32 s4, s{sT0}")
        e(f"s_cbranch_scc1 L_spin{nts[0]}")
        return
    if DIAG == 2:
        if slot: return
        e("s_mov_b64 exec, 1")
        e("v_mov_b32 v4, 0")
        e(f"s_not_b32 s{sT0}, s{sTS}")
        e(f"v_mov_b32 v5, s{sT0}")
        e("global_atomic_umax v4, v5, s[24:25] sc1")
        for k in range(n):
            e(f"v_mov_b32 v5, s{sTS+2*k}")
            e(f"s_cmp_lt_u32 s{sID}, 240")
            e(f"s_cbranch_scc0 L_dd{nts[0]}_{k}")
            e(f"global_atomic_umax v4, v5, s[24:25] offset:{4*k+4} sc1")
            lab(f"L_dd{nts[0]}_{k}")
        nts[0] += 1
        return
    e(f"s_lshl_b32 s{sT0}, s{sID}, 8")
    e(f"s_add_u32 s{sT0}, s{sT0}, {WS_DIAG + slot*64}")
    e(f"v_mov_b32 v4, s{sT0}")
    e("s_mov_b64 exec, 1")
    for k in range(n):
        e(f"v_mov_b32 v5, s{sTS+2*k}")
        e(f"global_store_dword v4, v5, s[{sWS}:{sWS+1}] offset:{4*k}")
    e("s_getreg_b32 s37, hwreg(HW_REG_XCC_ID)")
    e("v_mov_b32 v5, s37")
    e(f"global_store_dword v4, v5, s[{sWS}:{sWS+1}] offset:60")
    e("s_getreg_b32 s37, hwreg(HW_REG_HW_ID)")
    e("v_mov_b32 v5, s37")
    e(f"global_store_dword v4, v5, s[{sWS}:{sWS+1}] offset:56")
def base(dst, src, off):
    e(f"s_add_u32 s{dst}, s{src}, {off}")
    e(f"s_addc_u32 s{dst+1}, s{src+1}, 0")
def transpose(src, dst):
    for q in range(4):
        for j in range(4):
            a, b = src + 8*j + q, src + 8*j + 4 + q
            e(f"v_perm_b32 v{dst+8*q+j}, v{b}, v{a}, s{sPL}")
            e(f"v_perm_b32 v{dst+8*q+4+j}, v{b}, v{a}, s{sPH}")
def mfma(d, a, b, cc):
    cs = "0" if cc is None else f"v[{cc}:{cc+3}]"
    e(f"v_mfma_f32_16x16x32_bf16 v[{d}:{d+3}], v[{a}:{a+3}], v[{b}:{b+3}], {cs}")
def xlane(op, v, t, full=False):
    if full:
        for m in ["quad_perm:[1,0,3,2]", "quad_perm:[2,3,0,1]", "row_half_mirror", "row_mirror"]:
            e("s_nop 1")
            e(f"{op}_dpp v{v}, v{v}, v{v} {m} row_mask:0xf bank_mask:0xf")
    for sw in ["v_permlane16_swap_b32", "v_permlane32_swap_b32"]:
        e(f"v_mov_b32 v{t}, v{v}")
        e("s_nop 1")
        e(f"{sw} v{v}, v{t}")
        e("s_nop 0")
        e(f"{op} v{v}, v{v}, v{t}")
def rbf(v):
    e(f"v_cvt_pk_bf16_f32 v{v}, v{v}, v{v}")
    e(f"v_and_b32 v{v}, 0xffff0000, v{v}")
def locinit():
    base(sWA, sWS, 0x300000 if opt["loc"] else 0)
    e(f"s_mov_b64 s[{sP}:{sP+1}], s[{sWA}:{sWA+1}]")
def locsel(f):
    if not opt["loc"]: return
    e(f"s_and_b32 s{sT0}, s{sCNT}, {opt['lm']}")
    e(f"s_cselect_b64 s[{sP}:{sP+1}], s[{sWA}:{sWA+1}], s[{sWS}:{sWS+1}]")
    if f is not True:
        nts[0] += 1
        e(f"s_cbranch_scc1 L_ls{nts[0]}")
        f()
        lab(f"L_ls{nts[0]}")
def tagcheck(regs, t0, t1, lfail_loop, name, sl=None, loc=False):
    sl = opt["sleep"] if sl is None else sl
    e(f"v_min3_u32 v{t0}, v{regs[0]}, v{regs[1]}, v{regs[1]}")
    e(f"v_max3_u32 v{t1}, v{regs[0]}, v{regs[1]}, v{regs[1]}")
    for k in range(2, len(regs), 2):
        e(f"v_min3_u32 v{t0}, v{t0}, v{regs[k]}, v{regs[k+1]}")
        e(f"v_max3_u32 v{t1}, v{t1}, v{regs[k]}, v{regs[k+1]}")
    e(f"v_cmp_ne_u32 vcc, s{sTAG}, v{t0}")
    e(f"v_cmp_ne_u32 s[{sM}:{sM+1}], s{sTAG}, v{t1}")
    e(f"s_or_b64 vcc, vcc, s[{sM}:{sM+1}]")
    e(f"s_cbranch_scc0 {name}_ok")
    e(f"s_sub_u32 s{sCNT}, s{sCNT}, 1")
    if loc: locsel(loc)
    if sl: e(f"s_sleep {sl}")
    e(f"s_cmp_gt_i32 s{sCNT}, 0")
    e(f"s_cbranch_scc1 {lfail_loop}")
    lab(f"{name}_ok")
def tagcmp(regs, okl):
    e(f"v_min_u32 v4, v{regs[0]}, v{regs[1]}")
    e(f"v_max_u32 v5, v{regs[0]}, v{regs[1]}")
    for k in range(2, len(regs), 2):
        e(f"v_min3_u32 v4, v4, v{regs[k]}, v{regs[k+1]}")
        e(f"v_max3_u32 v5, v5, v{regs[k]}, v{regs[k+1]}")
    e(f"v_cmp_ne_u32 vcc, s{sTAG}, v4")
    e(f"v_cmp_ne_u32 s[{sM}:{sM+1}], s{sTAG}, v5")
    e(f"s_or_b64 vcc, vcc, s[{sM}:{sM+1}]")
    e(f"s_cbranch_scc0 {okl}")
def ppoll(name, D, n, issue, tags, cont, sl, pre=0, loc=False):
    if pre == D: e(f"s_branch {name}_in")
    for j in range(pre, D-1):
        issue(j)
        if sl: e(f"s_sleep {sl}")
    lab(name)
    for j in range(D):
        issue((j+D-1) % D)
        if j == 0 and pre == D: lab(f"{name}_in")
        e(f"s_waitcnt vmcnt({n*(D-1)})")
        tagcmp(tags(j), f"{name}_{j}")
        if sl: e(f"s_sleep {sl}")
    e(f"s_sub_u32 s{sCNT}, s{sCNT}, 1")
    if loc: locsel(loc)
    e(f"s_cmp_gt_i32 s{sCNT}, 0")
    e(f"s_cbranch_scc1 {name}")
    for j in range(D-1, -1, -1):
        lab(f"{name}_{j}")
        cont(j)
        if j: e(f"s_branch {name}_done")
    lab(f"{name}_done")
TH = opt["th"]; K1 = opt["k1"]
def thr():
    if TH < 63: e(f"s_waitcnt vmcnt({TH-1})")
def tagfix():
    e(f"s_mul_i32 s{sTAG}, s{sTAG}, 0x9E3779B1")
    e(f"s_add_u32 s{sTAG}, s{sTAG}, 0x7F4A7C15")
def kdma(lo, hi):
    for jj in range(lo, hi):
        if jj == 4:
            e(f"s_add_u32 s{sT2}, s{sKM}, 4096")
            e(f"s_mov_b32 m0, s{sT2}")
            for q in range(4): e(f"v_xor_b32 v{16+q}, 0x1000, v{16+q}")
        if lo and opt.get("thk"): thr()
        e(f"global_load_lds_dwordx4 v{16+(jj&3)}, s[{sK}:{sK+1}] offset:{(jj&3)*1024}{NT}")
sKM, sTILE, sHB, sA = 49, 50, 51, 52
LOC = opt["loc"]
sSP = 53; E3 = opt["e3"]
WP = [0, opt["wa"], opt["wb"], opt["wc"], 4]
def w3(p):
    if WP[p] == WP[p+1]: return
    e(f"s_cmp_lg_u32 s{sROLE}, 0")
    e(f"s_cbranch_scc0 L_now3{p}")
    for jj in range(WP[p], WP[p+1]):
        e(f"global_load_lds_dwordx4 v25, s[{sB2}:{sB2+1}] offset:{jj*1024}{NT}")
        if jj < 3: e(f"v_add_u32 v25, 3072, v25")
        if jj == 1: e("v_xor_b32 v25, 0x80, v25")
    lab(f"L_now3{p}")
def w3addr():
    c("phase-3 role: wo (id>=128) or down (id<56); W3 dma base sB2, voff v25; tr addr v27; operand addr v28; publish v26")
    e(f"s_sub_u32 s{sT1}, s{sID}, 56")
    e(f"s_cmp_lt_u32 s{sT1}, 72")
    e(f"s_cselect_b32 s{sROLE}, 0, 1")
    e(f"s_cmp_lt_u32 s{sID}, 128")
    e(f"s_cselect_b64 s[{sB2}:{sB2+1}], s[{sD}:{sD+1}], s[{sWO}:{sWO+1}]")
    e(f"s_mov_b32 s{sSP}, {WS_SP}")
    e(f"s_cselect_b32 s{sSP}, {WS_DP}, s{sSP}")
    e(f"s_lshr_b32 s{sT1}, s{sU_}, 2")
    e(f"s_lshl_b32 s{sT0}, s{sT1}, 17")
    e(f"s_lshl_b32 s{sT1}, s{sT1}, 8")
    e(f"s_add_u32 s{sSP}, s{sSP}, s{sT1}")
    e(f"s_lshl_b32 s{sT1}, s{sW}, 14")
    e(f"s_add_u32 s{sT0}, s{sT0}, s{sT1}")
    e(f"s_and_b32 s{sT1}, s{sU_}, 3")
    e(f"s_lshl_b32 s{sT2}, s{sT1}, 8")
    e(f"s_add_u32 s{sT0}, s{sT0}, s{sT2}")
    base(sB2, sB2, f"s{sT0}")
    e(f"v_lshlrev_b32 v4, 1, v{vG}")
    e(f"v_xor_b32 v4, v4, v{vI}")
    e("v_lshlrev_b32 v4, 4, v4")
    e(f"v_lshl_add_u32 v25, v{vG}, 10, v4")
    e(f"s_lshl_b32 s{sT2}, s{sW}, 12")
    e(f"s_add_u32 s{sT2}, s{sT2}, {W3}")
    e(f"s_mov_b32 m0, s{sT2}")
def vwait(n, nm):
    e(f"s_cbranch_scc1 {nm}")
    e(f"s_waitcnt vmcnt({n})")
    lab(nm)
    e(f"s_waitcnt vmcnt({n+4})")
e("s_load_dwordx16 s[4:19], s[0:1], 0")
e("s_load_dwordx8 s[20:27], s[0:1], 64")
ts(0)
e("s_cmp_ge_u32 s2, 256")
e("s_cbranch_scc1 L_end")
e(f"s_mov_b32 s{sID}, s2")
e("v_lshrrev_b32 v4, 6, v0")
e(f"v_and_b32 v{vL}, 63, v0")
e(f"v_readfirstlane_b32 s{sW}, v4")
e(f"v_bfe_u32 v{vG}, v0, 4, 2")
e(f"v_and_b32 v{vI}, 15, v0")
e(f"s_mov_b32 s{sCNT}, {opt['spin']}")
c("phase-1 tile T = (id&~15) | (id&7)<<1 | (id>>3)&1")
e(f"s_and_b32 s{sT0}, s{sID}, 7")
e(f"s_lshl_b32 s{sT0}, s{sT0}, 1")
e(f"s_bfe_u32 s{sT1}, s{sID}, 0x10003")
e(f"s_or_b32 s{sT0}, s{sT0}, s{sT1}")
e(f"s_and_b32 s{sT1}, s{sID}, 0xf0")
e(f"s_or_b32 s{sTILE}, s{sT0}, s{sT1}")
c("X = (id&7)<<4 | (id>>3)&15 : q tile (id<128) or wo unit (id>=128); attention id A = b<<5 | (id&7)<<2 | (id>>3)&3")
e(f"s_and_b32 s{sT0}, s{sID}, 7")
e(f"s_bfe_u32 s{sT1}, s{sID}, 0x40003")
e(f"s_lshl4_add_u32 s{sT2}, s{sT0}, s{sT1}")
e(f"s_and_b32 s{sT1}, s{sT1}, 3")
e(f"s_lshl2_add_u32 s{sT0}, s{sT0}, s{sT1}")
e(f"s_and_b32 s{sT1}, s{sID}, 0xe0")
e(f"s_or_b32 s{sA}, s{sT0}, s{sT1}")
e(f"s_cmp_lt_u32 s{sID}, 128")
if opt["qloc"]: e(f"s_cselect_b32 s{sTILE}, s{sT2}, s{sTILE}")
e(f"s_cselect_b32 s{sU_}, s{sID}, s{sT2}")
e(f"s_movk_i32 s{sSTR}, 3584")
e(f"s_cmp_lt_u32 s{sID}, 128")
e(f"s_cselect_b32 s{sSTR}, 8192, s{sSTR}")
e(f"v_lshrrev_b32 v4, 2, v{vL}")
e(f"v_mul_u32_u24 v12, s{sSTR}, v4")
e(f"v_and_b32 v4, 3, v{vL}")
e("v_lshl_add_u32 v12, v4, 4, v12")
e(f"s_lshl_b32 s{sT0}, s{sW}, 10")
e(f"v_lshl_add_u32 v13, v{vL}, 4, s{sT0}")
e(f"s_lshl_b32 s{sKM}, s{sW}, 13")
e(f"s_lshl_b32 s{sT2}, s{sW}, 12")
e(f"s_add_u32 s{sT2}, s{sT2}, {W1}")
e(f"s_mov_b32 m0, s{sT2}")
e(f"s_lshl_b32 s{sT1}, s{sW}, 6")
e(f"s_mul_i32 s{sT1}, s{sT1}, s{sSTR}")
e(f"s_cmp_lt_u32 s{sTILE}, 184")
e(f"s_cselect_b32 s{sT0}, 0, 56")
e(f"s_and_b32 s{sT2}, s{sTILE}, 127")
e(f"s_sub_u32 s{sT0}, s{sT2}, s{sT0}")
e(f"s_lshl_b32 s{sT0}, s{sT0}, 6")
e(f"s_add_u32 s{sT1}, s{sT1}, s{sT0}")
e(f"s_lshl_b32 s{sT2}, s{sSTR}, 4")
e(f"s_sub_u32 s{sT2}, s{sT2}, 1024")
e("s_waitcnt lgkmcnt(0)")
ts(1)
e(f"s_load_dword s{sTAG}, s[{sWS}:{sWS+1}], 0")
e(f"s_cmp_eq_u32 s{sW}, 8")
e("s_cbranch_scc1 L_service")
e(f"s_cmp_ge_u32 s{sID}, 240")
e("s_cbranch_scc1 L_now1")
if opt.get("wprio"): e("s_setprio 2")
e(f"global_load_dwordx4 v[8:11], v13, s[{sX}:{sX+1}]")
e(f"s_cmp_lt_u32 s{sTILE}, 184")
e(f"s_cselect_b64 s[{sB}:{sB+1}], s[{sG}:{sG+1}], s[{sU}:{sU+1}]")
e(f"s_cmp_lt_u32 s{sID}, 128")
e(f"s_cselect_b64 s[{sB}:{sB+1}], s[{sWQ}:{sWQ+1}], s[{sB}:{sB+1}]")
base(sB, sB, f"s{sT1}")
for jj in range(4):
    e(f"global_load_lds_dwordx4 v12, s[{sB}:{sB+1}] offset:{jj*1024}{NT}")
    if jj < 3: e(f"v_add_u32 v12, s{sT2}, v12")
lab("L_now1")
if E3 == 2:
    if opt.get("wprio"): e("s_setprio 0")
    w3addr(); WP = [0, 4, 4, 4, 4]; w3(0); WP = [4]*5
c("KV slice offset: (id>>2)<<20 + 786432 + (id&3)<<16 + wave<<13")
e(f"s_lshr_b32 s{sT0}, s{sA}, 2")
e(f"s_lshl_b32 s{sT0}, s{sT0}, 20")
e(f"s_and_b32 s{sT1}, s{sA}, 3")
e(f"s_lshl_b32 s{sT1}, s{sT1}, 16")
e(f"s_add_u32 s{sT0}, s{sT0}, s{sT1}")
e(f"s_add_u32 s{sT0}, s{sT0}, 786432")
base(sK, sK, f"s{sT0}")
base(sV, sV, f"s{sT0}")
e(f"v_xor_b32 v16, v{vI}, v{vG}")
e("v_lshlrev_b32 v16, 4, v16")
e(f"v_lshl_add_u32 v16, v{vG}, 8, v16")
c("first 4 KB block of this wave: (2w + (w>>2)) ^ r ; the second one is ^1 (spreads the HBM stacks)")
e(f"s_lshr_b32 s{sHB}, s{sW}, 2")
e(f"s_lshl_b32 s{sT1}, s{sW}, 1")
e(f"s_or_b32 s{sHB}, s{sHB}, s{sT1}")
if opt["rot"]:
    e(f"s_bfe_u32 s{sT1}, s{sID}, {0x30000 + opt['rot']:#x}")
    e(f"s_xor_b32 s{sHB}, s{sHB}, s{sT1}")
e(f"s_lshl_b32 s{sHB}, s{sHB}, 12")
e(f"v_or_b32 v16, s{sHB}, v16")
e("v_xor_b32 v17, 64, v16")
e("v_xor_b32 v18, 0x80, v16")
e("v_xor_b32 v19, 0xc0, v16")
e(f"s_mov_b32 m0, s{sKM}")
ts(2)
e(f"s_cmp_ge_u32 s{sID}, 240")
e("s_cbranch_scc1 L_p1skip0")
c("layernorm of row w")
if E3 == 2:
    e(f"s_cmp_lg_u32 s{sROLE}, 0")
    vwait(4, "L_xw")
else: e(f"s_waitcnt vmcnt(4)")
ts(3)
for k in range(4):
    e(f"v_lshlrev_b32 v{TT+2*k}, 16, v{8+k}")
    e(f"v_and_b32 v{TT+2*k+1}, 0xffff0000, v{8+k}")
e(f"v_pk_add_f32 v[4:5], v[{TT}:{TT+1}], v[{TT+2}:{TT+3}]")
e(f"v_pk_add_f32 v[6:7], v[{TT+4}:{TT+5}], v[{TT+6}:{TT+7}]")
e("v_pk_add_f32 v[4:5], v[4:5], v[6:7]")
e("v_add_f32 v4, v4, v5")
xlane("v_add_f32", 4, 5, full=True)
e("v_mul_f32 v4, 0x3b000000, v4")
e(f"v_sub_f32 v5, v{TT}, v4")
e("v_mul_f32 v6, v5, v5")
for k in range(1, 8):
    e(f"v_sub_f32 v5, v{TT+k}, v4")
    e("v_fmac_f32 v6, v5, v5")
xlane("v_add_f32", 6, 5, full=True)
e("v_mul_f32 v6, 0x3b000000, v6")
rbf(4); rbf(6)
e("v_add_f32 v6, 0x3727c5ac, v6")
rbf(6)
e("v_sqrt_f32 v6, v6")
e("s_nop 0")
rbf(6)
e("v_rcp_f32 v6, v6")
for k in range(8): e(f"v_sub_f32 v{TT+k}, v{TT+k}, v4")
for k in range(4):
    e(f"v_cvt_pk_bf16_f32 v{8+k}, v{TT+2*k}, v{TT+2*k+1}")
    e(f"v_lshlrev_b32 v{TT+2*k}, 16, v{8+k}")
    e(f"v_and_b32 v{TT+2*k+1}, 0xffff0000, v{8+k}")
    e(f"v_mul_f32 v{TT+2*k}, v{TT+2*k}, v6")
    e(f"v_mul_f32 v{TT+2*k+1}, v{TT+2*k+1}, v6")
    e(f"v_cvt_pk_bf16_f32 v{8+k}, v{TT+2*k}, v{TT+2*k+1}")
e(f"s_mul_i32 s{sT0}, s{sW}, 1040")
e(f"s_add_u32 s{sT0}, s{sT0}, {XN}")
e(f"v_lshl_add_u32 v4, v{vL}, 4, s{sT0}")
e("ds_write_b128 v4, v[8:11]")
c("xn operand addresses (v6,v7), W tr-read address (v5), slab address (v4)")
e(f"v_and_b32 v5, 7, v{vI}")
e("v_mul_u32_u24 v4, 1040, v5")
e(f"v_lshl_add_u32 v4, v{vG}, 4, v4")
e(f"s_lshl_b32 s{sT0}, s{sW}, 7")
e(f"s_add_u32 s{sT0}, s{sT0}, {XN}")
e(f"v_add_u32 v4, s{sT0}, v4")
e(f"v_mov_b32 v5, {ZB}")
e(f"v_cmp_gt_u32 vcc, 8, v{vI}")
e(f"s_lshl_b32 s{sT0}, s{sW}, 12")
e(f"s_add_u32 s{sT0}, s{sT0}, {W1}")
e("v_cndmask_b32 v6, v5, v4, vcc")
e("v_cndmask_b32 v7, v4, v5, vcc")
e(f"v_lshrrev_b32 v4, 2, v{vI}")
e(f"v_lshl_add_u32 v4, v{vG}, 3, v4")
e(f"v_and_b32 v5, 3, v{vI}")
e("v_lshlrev_b32 v5, 3, v5")
e("v_lshl_add_u32 v5, v4, 6, v5")
e(f"v_add_u32 v5, s{sT0}, v5")
e(f"s_lshl_b32 s{sT0}, s{sW}, 10")
e(f"s_add_u32 s{sT0}, s{sT0}, {P1S}")
e(f"v_lshl_add_u32 v4, v{vL}, 4, s{sT0}")
e("s_waitcnt lgkmcnt(0)")
e("s_barrier")
for ks in range(2):
    for ct in range(2): e(f"ds_read_b128 v[{DD+8*ks+4*ct}:{DD+8*ks+4*ct+3}], v{6+ct} offset:{ks*64}")
kdma(0, K1)
if E3 == 2:
    e(f"s_cmp_lg_u32 s{sROLE}, 0")
    vwait(K1, "L_ww")
else: e(f"s_waitcnt vmcnt({K1})")
ts(4)
for ks in range(2):
    for ct in range(2):
        for hh in range(2):
            r = TT+8*ks+4*ct+2*hh
            e(f"ds_read_b64_tr_b16 v[{r}:{r+1}], v5 offset:{ks*2048+hh*256+ct*32}")
e("s_waitcnt lgkmcnt(0)")
for n in range(4): mfma(8, TT+4*n, DD+4*n, None if n == 0 else 8)
e("s_nop 7")
e("ds_write_b128 v4, v[8:11]")
e("s_waitcnt lgkmcnt(0)")
e("s_barrier")
if opt.get("b2b"): e("s_barrier")
e("s_branch L_p1skip")
lab("L_p1skip0")
kdma(0, K1)
lab("L_p1skip")
ts(5)
if opt.get("kprio"): e(f"s_setprio {opt['kprio']}")
kdma(K1, 8) if K1 else (kdma(0, 1), kdma(1, 8))
if opt.get("kprio"): e("s_setprio 0")
e(f"v_lshlrev_b32 v59, 10, v{vG}")
e(f"v_lshl_add_u32 v59, v{vI}, 4, v59")
e(f"v_or_b32 v59, s{sHB}, v59")
e(f"v_xor_b32 v60, 0x1000, v59")
VS = opt["vs"]; VP = [opt["va"], opt["vb"], opt["vc"], 8]
def vload(lo, hi):
    for j in range(lo, hi):
        e(f"global_load_dwordx4 v[{VR+4*j}:{VR+4*j+3}], v{59+(j>>2)}, s[{sV}:{sV+1}] offset:{(j&3)*256}{NT}")
if E3 < 2: w3addr()
if E3 == 1: WP = [0, 4, 4, 4, 4]; w3(0); WP = [4]*5
vload(0, VS)
ts(6)
c("address precompute")
e(f"s_mov_b32 s{sPL}, 0x05040100")
e(f"s_mov_b32 s{sPH}, 0x07060302")
e("s_waitcnt lgkmcnt(0)")
tagfix()
locinit()
e(f"s_and_b32 s{sT1}, s{sU_}, 3")
e(f"s_lshl_b32 s{sT1}, s{sT1}, 15")
e(f"s_add_u32 s{sSP}, s{sSP}, s{sT1}")
e(f"s_lshr_b32 s{sT1}, s{sW}, 1")
e(f"s_lshl_b32 s{sT1}, s{sT1}, 13")
e(f"s_add_u32 s{sSP}, s{sSP}, s{sT1}")
e(f"s_and_b32 s{sT1}, s{sW}, 1")
e(f"s_lshl_b32 s{sT1}, s{sT1}, 7")
e(f"s_add_u32 s{sSP}, s{sSP}, s{sT1}")
e(f"v_and_b32 v4, 7, v{vI}")
e(f"v_lshl_add_u32 v26, v4, 17, s{sSP}")
e(f"v_lshl_add_u32 v26, v{vG}, 5, v26")
e(f"v_lshrrev_b32 v5, 3, v{vI}")
e("v_lshl_add_u32 v26, v5, 4, v26")
e("v_mul_u32_u24 v28, 272, v4")
e(f"v_lshl_add_u32 v28, v{vG}, 4, v28")
e(f"v_add_u32 v28, {OB}, v28")
e(f"v_lshrrev_b32 v4, 2, v{vI}")
e(f"v_bfe_u32 v5, v{vI}, 1, 1")
e(f"s_lshl_b32 s{sT1}, s{sW}, 1")
e(f"v_or_b32 v5, s{sT1}, v5")
e("v_lshlrev_b32 v6, 1, v4")
e("v_xor_b32 v5, v5, v6")
e(f"v_and_b32 v6, 1, v{vG}")
e("v_lshlrev_b32 v6, 3, v6")
e("v_xor_b32 v5, v5, v6")
e(f"v_lshl_add_u32 v4, v{vG}, 3, v4")
e("v_lshlrev_b32 v4, 8, v4")
e("v_lshl_add_u32 v27, v5, 4, v4")
e(f"v_and_b32 v4, 1, v{vI}")
e("v_lshl_add_u32 v27, v4, 3, v27")
e(f"v_add_u32 v27, {W3}, v27")
e(f"v_cmp_lt_u32 s[{sM2}:{sM2+1}], 7, v{vI}")
e(f"v_xor_b32 v16, v{vI}, v{vG}")
e("v_lshlrev_b32 v16, 4, v16")
e(f"v_lshl_add_u32 v16, v{vI}, 8, v16")
e(f"v_add_u32 v16, s{sKM}, v16")
e("v_xor_b32 v17, 64, v16")
e("v_xor_b32 v18, 0x80, v16")
e("v_xor_b32 v19, 0xc0, v16")
e(f"v_and_b32 v22, 3, v{vI}")
e("v_mul_u32_u24 v23, 272, v22")
e(f"v_lshl_add_u32 v23, v{vG}, 4, v23")
e(f"v_add_u32 v23, {QB}, v23")
e(f"v_lshlrev_b32 v4, 5, v22")
e(f"s_lshl_b32 s{sT2}, s{sW}, 2")
e(f"v_add_u32 v24, {MB}, v4")
e(f"v_add_u32 v29, s{sT2}, v24")
e(f"s_lshr_b32 s{sT0}, s{sU_}, 2")
e(f"s_lshl_b32 s{sT0}, s{sT0}, 3")
e(f"s_add_u32 s{sT0}, s{sT0}, s{sW}")
e(f"s_lshl_b32 s{sT1}, s{sT0}, 5")
e(f"s_add_u32 s{sT1}, s{sT1}, {WS_LSE}")
e(f"v_mov_b32 v57, s{sT1}")
e(f"s_lshl_b32 s{sT1}, s{sT0}, 11")
e(f"s_add_u32 s{sT1}, s{sT1}, {WS_OP}")
e(f"v_lshl_add_u32 v56, v{vL}, 3, s{sT1}")
c("obuf write address: b*272 + (16g+4r+2a+e2)*4, lane=(a,g,e2,r)")
e(f"v_bfe_u32 v4, v{vL}, 3, 2")
e("v_lshlrev_b32 v58, 6, v4")
e(f"v_and_b32 v4, 3, v{vL}")
e("v_lshl_add_u32 v58, v4, 4, v58")
e(f"v_lshrrev_b32 v4, 5, v{vL}")
e("v_lshl_add_u32 v58, v4, 3, v58")
e(f"v_and_b32 v4, 4, v{vL}")
e(f"s_mul_i32 s{sT0}, s{sW}, 272")
e(f"s_add_u32 s{sT0}, s{sT0}, {OB}")
e(f"v_add3_u32 v58, v58, v4, s{sT0}")
c("PV slab write v30, read v31, o publish v20")
e(f"s_lshl_b32 s{sT0}, s{sW}, 11")
e(f"s_add_u32 s{sT0}, s{sT0}, {SLAB}")
e(f"v_lshl_add_u32 v30, v{vL}, 4, s{sT0}")
e(f"v_lshlrev_b32 v31, 2, v0")
e(f"v_add_u32 v31, {SLAB}, v31")
e(f"v_bfe_u32 v4, v{vL}, 2, 2")
e("v_lshlrev_b32 v20, 14, v4")
e(f"v_lshrrev_b32 v4, 5, v{vL}")
e("v_lshl_add_u32 v20, v4, 5, v20")
e(f"v_and_b32 v4, 3, v{vL}")
e("v_lshl_add_u32 v20, v4, 3, v20")
e(f"s_bfe_u32 s{sT0}, s{sA}, 0x30002")
e(f"s_lshl_b32 s{sT0}, s{sT0}, 16")
e(f"s_lshr_b32 s{sT1}, s{sA}, 5")
e(f"s_lshl_b32 s{sT1}, s{sT1}, 11")
e(f"s_add_u32 s{sT0}, s{sT0}, s{sT1}")
e(f"s_and_b32 s{sT1}, s{sA}, 3")
e(f"s_lshl_b32 s{sT1}, s{sT1}, 9")
e(f"s_add_u32 s{sT0}, s{sT0}, s{sT1}")
e(f"s_lshl_b32 s{sT1}, s{sW}, 6")
e(f"s_add_u32 s{sT0}, s{sT0}, s{sT1}")
e(f"s_add_u32 s{sT0}, s{sT0}, {WS_OP}")
e(f"v_add_u32 v20, s{sT0}, v20")
if E3 == 1:
    e(f"s_cmp_lg_u32 s{sROLE}, 0")
    vwait(VS, "L_kw")
else: e(f"s_waitcnt vmcnt({VS})")
for t in range(2):
    for cc in range(4): e(f"ds_read_b128 v[{TT+16*t+4*cc}:{TT+16*t+4*cc+3}], v{16+cc} offset:{t*4096}")
e(f"s_mov_b32 s{sT0}, 0x3db504f3")
e(f"s_mov_b32 s{sT1}, 0x3fb8aa3b")
e("s_barrier")
ts(7)
for cc in range(4): e(f"ds_read_b128 v[{DD+4*cc}:{DD+4*cc+3}], v23 offset:{cc*64}")
e("s_waitcnt lgkmcnt(0)")
S = DD + 16
for cc in range(4):
    for t in range(2): mfma(S+4*t, TT+16*t+4*cc, DD+4*cc, None if cc == 0 else S+4*t)
vload(VS, VP[0])
w3(0)
e("s_nop 7")
for k in range(4): e(f"v_cvt_pk_bf16_f32 v{8+k}, v{S+2*k}, v{S+2*k+1}")
for k in range(4):
    e(f"v_lshlrev_b32 v{S+2*k}, 16, v{8+k}")
    e(f"v_and_b32 v{S+2*k+1}, 0xffff0000, v{8+k}")
for k in range(8): e(f"v_mul_f32 v{S+k}, s{sT0}, v{S+k}")
for k in range(4): e(f"v_cvt_pk_bf16_f32 v{8+k}, v{S+2*k}, v{S+2*k+1}")
for k in range(4):
    e(f"v_lshlrev_b32 v{S+2*k}, 16, v{8+k}")
    e(f"v_and_b32 v{S+2*k+1}, 0xffff0000, v{8+k}")
e(f"v_max3_f32 v6, v{S}, v{S+1}, v{S+2}")
e(f"v_max3_f32 v7, v{S+3}, v{S+4}, v{S+5}")
e(f"v_max3_f32 v6, v6, v{S+6}, v{S+7}")
e(f"v_max_f32 v6, v6, v7")
xlane("v_max_f32", 6, 7)
e(f"v_mul_f32 v23, s{sT1}, v6")
for k in range(8): e(f"v_fma_f32 v{S+k}, v{S+k}, s{sT1}, -v23")
for k in range(8): e(f"v_exp_f32 v{S+k}, v{S+k}")
e("s_nop 0")
e(f"v_pk_add_f32 v[4:5], v[{S}:{S+1}], v[{S+2}:{S+3}]")
e(f"v_pk_add_f32 v[6:7], v[{S+4}:{S+5}], v[{S+6}:{S+7}]")
e("v_pk_add_f32 v[4:5], v[4:5], v[6:7]")
e("v_add_f32 v7, v4, v5")
xlane("v_add_f32", 7, 8)
e("s_mov_b64 exec, 15")
e("ds_write2_b32 v29, v23, v7 offset0:0 offset1:32")
e("s_mov_b64 exec, -1")
vload(VP[0], VP[1])
w3(1)
e("s_waitcnt lgkmcnt(0)")
e("s_barrier")
vload(VP[1], VP[2])
w3(2)
def mlcomb():
    e("ds_read_b128 v[8:11], v24")
    e("ds_read_b128 v[12:15], v24 offset:16")
    e(f"ds_read_b128 v[{DD}:{DD+3}], v24 offset:128")
    e(f"ds_read_b128 v[{DD+4}:{DD+7}], v24 offset:144")
    e("s_waitcnt lgkmcnt(0)")
    e("v_max3_f32 v6, v8, v9, v10")
    e("v_max3_f32 v7, v11, v12, v13")
    e("v_max3_f32 v6, v6, v14, v15")
    e("v_max_f32 v6, v6, v7")
    for k in range(8): e(f"v_sub_f32 v{8+k}, v{8+k}, v6")
    for k in range(8): e(f"v_exp_f32 v{8+k}, v{8+k}")
    e(f"v_mul_f32 v7, v8, v{DD}")
    for k in range(1, 8): e(f"v_fmac_f32 v7, v{8+k}, v{DD+k}")
mlcomb()
e("v_sub_f32 v23, v23, v6")
e("v_rcp_f32 v8, v7")
e("v_exp_f32 v23, v23")
e(f"v_lshrrev_b32 v4, 2, v{vI}")
e("v_mul_f32 v23, v23, v8")
for k in range(8): e(f"v_mul_f32 v{S+k}, v23, v{S+k}")
for k in range(4): e(f"v_cvt_pk_bf16_f32 v{S+k}, v{S+2*k}, v{S+2*k+1}")
PM = DD + 20
for k in range(16): e(f"v_mov_b32 v{PM+k}, 0")
for cq in range(4):
    m = 0x000F000F << (4*cq)
    e(f"s_mov_b32 exec_lo, {m:#x}")
    e(f"s_mov_b32 exec_hi, {m:#x}")
    for k in range(0, 4, 2): e(f"v_pk_mov_b32 v[{PM+4*cq+k}:{PM+4*cq+k+1}], v[{S+k}:{S+k+1}], v[{S+k}:{S+k+1}] op_sel:[0,1]")
e("s_mov_b64 exec, -1")
e(f"v_mov_b32 v7, s{sTAG}")
ts(8)
vload(VP[2], 8)
w3(3)
e(f"s_cmp_lg_u32 s{sROLE}, 0")
for j in range(4):
    if E3: e(f"s_waitcnt vmcnt({6-2*j})")
    else: vwait(6-2*j, f"L_vw{j}")
    if j == 3: ts(9)
    for q in range(4):
        a, b = VR + 8*j + q, VR + 8*j + 4 + q
        e(f"v_perm_b32 v{TT+8*q+j}, v{b}, v{a}, s{sPL}")
        e(f"v_perm_b32 v{TT+8*q+4+j}, v{b}, v{a}, s{sPH}")
for cc in range(8): mfma(DD+4*(cc>>2), TT+4*cc, PM+4*(cc&3), None if (cc&3) == 0 else DD+4*(cc>>2))
e("s_nop 3")
e(f"ds_write_b128 v30, v[{DD}:{DD+3}]")
e("s_nop 2")
e(f"ds_write_b128 v30, v[{DD+4}:{DD+7}] offset:1024")
e("s_waitcnt lgkmcnt(0)")
e("s_barrier")
for k in range(4): e(f"ds_read2st64_b32 v[{8+2*k}:{9+2*k}], v31 offset0:{16*k} offset1:{16*k+8}")
e("s_waitcnt lgkmcnt(0)")
e("v_pk_add_f32 v[8:9], v[8:9], v[10:11]")
e("v_pk_add_f32 v[12:13], v[12:13], v[14:15]")
e("v_pk_add_f32 v[8:9], v[8:9], v[12:13]")
e("v_add_f32 v10, v8, v9")
e("v_add_f32 v11, v8, v9")
e("s_nop 1")
e("v_permlane16_swap_b32 v10, v11")
e("s_mov_b32 exec_lo, 0x0000FFFF")
e("s_mov_b32 exec_hi, 0x0000FFFF")
e("v_cvt_pk_bf16_f32 v6, v10, v11")
def ostoreB():
    e("s_mov_b32 exec_lo, 0x0000FFFF")
    e("s_mov_b32 exec_hi, 0x0000FFFF")
    e(f"global_store_dwordx2 v20, v[6:7], s[{sWS}:{sWS+1}] sc1")
    e("s_mov_b64 exec, -1")
if LOC: e(f"global_store_dwordx2 v20, v[6:7], s[{sWA}:{sWA+1}]")
else: e(f"global_store_dwordx2 v20, v[6:7], s[{sWS}:{sWS+1}] sc1")
e("s_mov_b64 exec, -1")
ts(10)
def trread():
    for ks in range(4):
        for hh in range(2): e(f"ds_read_b64_tr_b16 v[{TT+4*ks+2*hh}:{TT+4*ks+2*hh+1}], v27 offset:{ks*8192+hh*1024}")
if E3: trread()
O = VR
e(f"s_cmp_lt_u32 s{sID}, 128")
e("s_cbranch_scc1 L_lo")
def lissue():
    for s_ in range(2): e(f"global_load_dwordx4 v[{O+4*s_}:{O+3+4*s_}], v57, s[{sP}:{sP+1}] offset:{s_*16} sc1")
def oissue(j):
    for s_ in range(4): e(f"global_load_dwordx2 v[{WR+8*j+2*s_}:{WR+8*j+2*s_+1}], v56, s[{sP}:{sP+1}] offset:{s_*512} sc1")
def ocont(j):
    R = WR+8*j
    for k in range(4):
        e(f"v_and_b32 v{R+2*k+1}, 0xffff0000, v{R+2*k}")
        e(f"v_lshlrev_b32 v{R+2*k}, 16, v{R+2*k}")
    e(f"v_pk_mul_f32 v[12:13], v[{R}:{R+1}], v[8:9] op_sel_hi:[1,0]")
    e(f"v_pk_mul_f32 v[14:15], v[{R+2}:{R+3}], v[8:9] op_sel:[0,1] op_sel_hi:[1,1]")
    e(f"v_pk_fma_f32 v[12:13], v[{R+4}:{R+5}], v[10:11], v[12:13] op_sel_hi:[1,0,1]")
    e(f"v_pk_fma_f32 v[14:15], v[{R+6}:{R+7}], v[10:11], v[14:15] op_sel:[0,1,0] op_sel_hi:[1,1,1]")
OD = opt["opipe"]
if opt["slse"]:
    PRE = 1
    oissue(0)
    e(f"s_lshl_b32 s{sT0}, s{sW}, 4")
    e(f"s_add_u32 s{sT0}, s{sT0}, {HB}")
    e(f"v_mov_b32 v4, s{sT0}")
    e("ds_read_b128 v[8:11], v4")
    e("s_waitcnt lgkmcnt(0)")
else:
    lab("L_lpoll")
    lissue()
    PRE = opt["opre"]
    if PRE: oissue(0)
    e(f"s_waitcnt vmcnt({4*PRE})")
    tagcheck([O+1+2*k for k in range(4)], 4, 5, "L_lpoll", "L_lp", opt["lsleep"], ostoreB)
    if LOC: e(f"s_mov_b64 s[{sP}:{sP+1}], s[{sWA}:{sWA+1}]")
    if not PRE: oissue(0); PRE = 1
    e(f"v_max3_f32 v4, v{O}, v{O+2}, v{O+4}")
    e(f"v_max_f32 v4, v4, v{O+6}")
    for k in range(4): e(f"v_sub_f32 v{8+k}, v{O+2*k}, v4")
    for k in range(4): e(f"v_exp_f32 v{8+k}, v{8+k}")
    e("s_nop 0")
    e("v_pk_add_f32 v[4:5], v[8:9], v[10:11]")
    e("v_add_f32 v4, v4, v5")
    e("v_rcp_f32 v4, v4")
    e("s_nop 0")
    for k in range(4): e(f"v_mul_f32 v{8+k}, v{8+k}, v4")
ppoll("L_op", OD, 4, oissue, lambda j: [WR+8*j+1+2*k for k in range(4)], ocont, opt["osleep"], PRE, ostoreB)
ts(11)
e("v_pk_add_f32 v[12:13], v[12:13], v[14:15]")
e("v_cvt_pk_bf16_f32 v12, v12, v13")
e("ds_write_b32 v58, v12")
if LOC: ostoreB()
e("s_waitcnt lgkmcnt(0)")
if not E3: lab("L_mf")
e("s_barrier")
if E3: lab("L_mf")
for ks in range(4): e(f"ds_read_b128 v[{DD+4*ks}:{DD+4*ks+3}], v28 offset:{ks*64}")
if not E3: trread()
e(f"v_mov_b32 v13, s{sTAG}")
e(f"v_mov_b32 v15, s{sTAG}")
for ks in range(4):
    e(f"s_waitcnt lgkmcnt({3-ks if E3 else 6-2*ks})")
    mfma(8, TT+4*ks, DD+4*ks, None if ks == 0 else 8)
e("s_nop 7")
e(f"v_cndmask_b32 v12, v8, v10, s[{sM2}:{sM2+1}]")
e(f"v_cndmask_b32 v14, v9, v11, s[{sM2}:{sM2+1}]")
e(f"global_store_dwordx4 v26, v[12:15], s[{sWS}:{sWS+1}] sc1")
e(f"s_cmp_lt_u32 s{sID}, 128")
e("s_cbranch_scc1 L_final")
ts(12)
if DIAG:
    e(f"s_cmp_lg_u32 s{sW}, 0")
    e("s_cbranch_scc1 L_end")
    dump_ts(0, 13)
e("s_endpgm")
lab("L_lo")
if LOC: ostoreB()
e(f"s_cmp_ge_u32 s{sID}, 56")
e("s_cbranch_scc1 L_final")
if not E3: e(f"s_waitcnt vmcnt({1+(LOC>0)})")
e("s_branch L_mf")
lab("L_final")
e(f"s_cmp_lg_u32 s{sW}, 0")
e("s_cbranch_scc1 L_end")
e(f"s_lshl_b32 s{sT0}, s{sID}, 13")
e(f"s_add_u32 s{sT0}, s{sT0}, 4096")
e(f"v_lshl_add_u32 v16, v{vL}, 4, s{sT0}")
base(sB, sWS, WS_DP)
base(sB2, sWS, WS_SP)
e(f"s_lshl_b32 s{sT0}, s{sID}, 6")
e(f"v_lshl_add_u32 v17, v{vI}, 2, s{sT0}")
e(f"global_load_dword v18, v17, s[{sX}:{sX+1}]")
def fsum(R, n):
    e(f"v_add_f32 v8, v{R}, v{R+4}")
    e(f"v_add_f32 v9, v{R+2}, v{R+6}")
    e(f"v_add_f32 v10, v{R+8}, v{R+12}")
    e(f"v_add_f32 v11, v{R+10}, v{R+14}")
    for j in range(4, n):
        e(f"v_add_f32 v{8+2*(j&1)}, v{8+2*(j&1)}, v{R+4*j}")
        e(f"v_add_f32 v{9+2*(j&1)}, v{9+2*(j&1)}, v{R+4*j+2}")
def fred():
    e("v_pk_add_f32 v[8:9], v[8:9], v[10:11]")
    e("s_nop 1")
    e("v_permlane32_swap_b32 v8, v9")
    e("s_nop 0")
    e("v_add_f32 v8, v8, v9")
    e("v_mov_b32 v9, v8")
    e("s_nop 1")
    e("v_permlane16_swap_b32 v8, v9")
    e("s_nop 0")
    e("v_add_f32 v8, v8, v9")
    rbf(8)
e(f"v_mov_b32 v{DD+12}, 0")
e(f"v_mov_b32 v{DD+13}, s{sTAG}")
e(f"v_mov_b32 v{DD+14}, 0")
e(f"v_mov_b32 v{DD+15}, s{sTAG}")
if opt["fpre"]:
    c("cheap pre-wait: every workgroup has published its lse")
    e(f"v_lshlrev_b32 v6, 10, v{vG}")
    e(f"v_lshl_add_u32 v6, v{vI}, 4, v6")
    e(f"v_add_u32 v6, {WS_LSE + 4096}, v6")
    lab("L_fpoll")
    for u in range(2): e(f"global_load_dwordx4 v[{WR+4*u}:{WR+4*u+3}], v6, s[{sWS}:{sWS+1}] offset:{u*4096-4096} sc1")
    e("s_waitcnt vmcnt(0)")
    tagcheck([WR+1+2*k for k in range(4)], 4, 5, "L_fpoll", "L_fp", opt["fsleep"])
lab("L_dpoll")
for j in range(4):
    if j == 3: e("s_mov_b32 exec_hi, 0")
    e(f"global_load_dwordx4 v[{DD+4*j}:{DD+4*j+3}], v16, s[{sB}:{sB+1}] offset:{j*1024-4096} sc1")
e("s_mov_b32 exec_hi, -1")
def sissue(j):
    for k in range(8): e(f"global_load_dwordx4 v[{WR+32*j+4*k}:{WR+32*j+4*k+3}], v16, s[{sB2}:{sB2+1}] offset:{k*1024-4096} sc1")
sissue(0)
e("s_waitcnt vmcnt(8)")
tagcheck([DD+1+2*k for k in range(8)], 4, 5, "L_dpoll", "L_dp")
SD = opt["spipe"]
fsum(DD, 4)
fred()
ts(11)
c("g = bf16(silu(d)); x half for this lane")
e("v_mul_f32 v10, 0xbfb8aa3b, v8")
e("v_exp_f32 v10, v10")
e("v_lshlrev_b32 v19, 16, v18")
e("v_add_f32 v10, 1.0, v10")
e("v_rcp_f32 v10, v10")
e("v_and_b32 v18, 0xffff0000, v18")
e("v_mul_f32 v20, v8, v10")
rbf(20)
e("s_mov_b32 exec_hi, 0")
e("v_mov_b32 v18, v19")
e("s_mov_b32 exec_hi, -1")
e(f"v_lshrrev_b32 v4, 5, v{vL}")
e("v_lshl_add_u32 v17, v4, 1, v17")
ppoll("L_sp", SD, 8, sissue, lambda j: [WR+32*j+1+2*k for k in range(16)], lambda j: fsum(WR+32*j, 8), opt["ssleep"], 1)
fred()
e("v_mul_f32 v8, v8, v20")
rbf(8)
e("v_add_f32 v8, v8, v18")
e("v_cvt_pk_bf16_f32 v8, v8, v8")
e("s_mov_b32 exec_lo, 0xffff")
e("s_mov_b32 exec_hi, 0xffff")
e(f"global_store_short v17, v8, s[{sOUT}:{sOUT+1}]" + ["", " sc1", " sc0 sc1", " nt"][opt.get("osc", 0)])
ts(12)
e(f"s_cmp_lg_u32 s{sID}, 0")
e("s_cbranch_scc1 L_fin2")
e("s_mov_b64 exec, 1")
e("v_mov_b32 v4, 0")
e(f"v_mov_b32 v5, s{sTAG}")
e(f"global_store_dword v4, v5, s[{sWS}:{sWS+1}]" + ["", " sc1", " sc0 sc1", " nt"][opt.get("osc", 0)])
lab("L_fin2")
dump_ts(0, 13)
lab("L_end")
e("s_endpgm")
lab("L_service")
if opt["prio"]: e(f"s_setprio {opt['prio']}")
e("v_mov_b32 v8, 0")
e(f"v_and_b32 v4, 31, v{vL}")
e("v_lshlrev_b32 v4, 2, v4")
e(f"v_add_u32 v4, {ZB}, v4")
e("ds_write_b32 v4, v8")
locinit()
if LOC > 1:
    c("bring the lines of the local o / lse copies of this head into L2")
    e(f"s_cmp_lt_u32 s{sID}, 128")
    e("s_cbranch_scc1 L_nopt")
    e(f"s_lshl_b32 s{sT0}, s{sU_}, 12")
    e(f"s_add_u32 s{sT0}, s{sT0}, {WS_OP}")
    e(f"v_lshl_add_u32 v5, v{vL}, 6, s{sT0}")
    e(f"global_load_dword v6, v5, s[{sWA}:{sWA+1}]")
    e(f"s_lshl_b32 s{sT0}, s{sU_}, 6")
    e(f"s_add_u32 s{sT0}, s{sT0}, {WS_LSE}")
    e(f"v_mov_b32 v5, s{sT0}")
    e(f"global_load_dword v7, v5, s[{sWA}:{sWA+1}]")
    lab("L_nopt")
c("q source: Y + b*YROW + hkv*2048 + lane*16 (+1024)")
e(f"s_lshr_b32 s{sT0}, s{sA}, 5")
e(f"s_mul_i32 s{sT0}, s{sT0}, {YROW}")
e(f"s_bfe_u32 s{sT1}, s{sA}, 0x30002")
e(f"s_lshl_b32 s{sT1}, s{sT1}, 11")
e(f"s_add_u32 s{sT0}, s{sT0}, s{sT1}")
e(f"s_add_u32 s{sT0}, s{sT0}, {WS_Y}")
e(f"v_lshl_add_u32 v16, v{vL}, 4, s{sT0}")
base(sB, sWA, f"s{sT0}")
if opt["qpt"]:
    for u in range(2): e(f"global_load_dwordx4 v[{WR+4*u}:{WR+4*u+3}], v16, s[{sWA}:{sWA+1}] offset:{u*1024}")
e(f"v_lshrrev_b32 v4, 5, v{vL}")
e("v_mul_u32_u24 v17, 272, v4")
e(f"v_and_b32 v4, 31, v{vL}")
e("v_lshl_add_u32 v17, v4, 3, v17")
e(f"v_add_u32 v17, {QB}, v17")
c("h source v26..v29, h dest v20")
e(f"s_lshr_b32 s{sT0}, s{sU_}, 2")
e(f"s_lshl_b32 s{sT0}, s{sT0}, 9")
e(f"s_add_u32 s{sT0}, s{sT0}, {WS_Y + 16384 + 3584}")
e(f"v_lshrrev_b32 v5, 5, v{vL}")
e(f"v_mul_u32_u24 v26, {YROW}, v5")
e(f"v_lshl_add_u32 v26, v4, 4, v26")
e(f"v_add_u32 v26, s{sT0}, v26")
for j in range(1, 4): e(f"v_add_u32 v{26+j}, {2*j*YROW}, v26")
e(f"v_add_u32 v20, {OB - QB}, v17")
c("slab read v21, Y publish v22, ml read v24, lse publish v25")
e(f"v_lshlrev_b32 v21, 4, v{vL}")
e(f"v_add_u32 v21, {P1S}, v21")
e(f"v_and_b32 v4, 7, v{vI}")
e(f"v_mul_u32_u24 v22, {YROW}, v4")
e(f"v_lshrrev_b32 v4, 3, v{vI}")
e("v_lshl_add_u32 v22, v4, 6, v22")
e(f"v_lshl_add_u32 v22, v{vG}, 4, v22")
e(f"s_lshl_b32 s{sT0}, s{sTILE}, 7")
e(f"s_add_u32 s{sT0}, s{sT0}, {WS_Y}")
e(f"v_add_u32 v22, s{sT0}, v22")
e(f"v_and_b32 v4, 3, v{vI}")
e("v_lshlrev_b32 v24, 5, v4")
e(f"v_add_u32 v24, {MB}, v24")
e(f"s_bfe_u32 s{sT0}, s{sA}, 0x30002")
e(f"s_lshl_b32 s{sT0}, s{sT0}, 10")
e(f"s_and_b32 s{sT1}, s{sID}, 0xe0")
e(f"s_add_u32 s{sT0}, s{sT0}, s{sT1}")
e(f"s_and_b32 s{sT1}, s{sA}, 3")
e(f"s_lshl_b32 s{sT1}, s{sT1}, 3")
e(f"s_add_u32 s{sT0}, s{sT0}, s{sT1}")
e(f"s_add_u32 s{sT0}, s{sT0}, {WS_LSE}")
e(f"v_lshl_add_u32 v25, v4, 8, s{sT0}")
e("s_waitcnt lgkmcnt(0)")
tagfix()
e(f"v_mov_b32 v13, s{sTAG}")
e(f"v_mov_b32 v15, s{sTAG}")
e(f"s_cmp_ge_u32 s{sID}, 240")
e("s_cbranch_scc1 L_sv1")
e("s_barrier")
e("s_barrier")
for p in range(8): e(f"ds_read_b128 v[{TT+4*p}:{TT+4*p+3}], v21 offset:{p*1024}")
for p in range(4):
    e(f"s_waitcnt lgkmcnt({3-p})")
    for k in (0, 2): e(f"v_pk_add_f32 v[{TT+4*p+k}:{TT+4*p+k+1}], v[{TT+4*p+k}:{TT+4*p+k+1}], v[{TT+16+4*p+k}:{TT+16+4*p+k+1}]")
for p in range(2):
    for k in (0, 2): e(f"v_pk_add_f32 v[{TT+4*p+k}:{TT+4*p+k+1}], v[{TT+4*p+k}:{TT+4*p+k+1}], v[{TT+8+4*p+k}:{TT+8+4*p+k+1}]")
for k in (0, 2): e(f"v_pk_add_f32 v[{TT+k}:{TT+k+1}], v[{TT+k}:{TT+k+1}], v[{TT+4+k}:{TT+4+k+1}]")
e(f"v_cvt_pk_bf16_f32 v12, v{TT}, v{TT+1}")
e(f"v_cvt_pk_bf16_f32 v14, v{TT+2}, v{TT+3}")
QL = LOC and opt["qloc"]
if QL: e(f"global_store_dwordx4 v22, v[12:15], s[{sWA}:{sWA+1}]")
e(f"global_store_dwordx4 v22, v[12:15], s[{sWS}:{sWS+1}] sc1")
if opt.get("b2b"): e("s_barrier")
lab("L_sv1")
ts(2)
D = opt["qpipe"]
def qissue(j):
    for u in range(2): e(f"global_load_dwordx4 v[{WR+8*j+4*u}:{WR+8*j+4*u+3}], v16, s[{sP if QL else sWS}:{(sP if QL else sWS)+1}] offset:{u*1024} sc1")
def qwrite(j):
    e(f"ds_write2_b32 v17, v{WR+8*j}, v{WR+8*j+2} offset0:0 offset1:1")
    e(f"ds_write2_b32 v17, v{WR+8*j+4}, v{WR+8*j+6} offset0:136 offset1:137")
if opt["qdelay"]: e(f"s_sleep {opt['qdelay']}")
if opt["sq"]:
    c("scalar pre-wait: one tag of each of the 16 producers")
    e(f"s_mov_b32 s{sT2}, 40")
    lab("L_sq")
    for p in range(16): e(f"s_load_dword s{4+p}, s[{sB}:{sB+1}], {128*p+4} glc")
    e("s_waitcnt lgkmcnt(0)")
    e(f"s_xor_b32 s{sT0}, s4, s{sTAG}")
    for p in range(1, 16):
        e(f"s_xor_b32 s{sT1}, s{4+p}, s{sTAG}")
        e(f"s_or_b32 s{sT0}, s{sT0}, s{sT1}")
    e("s_cbranch_scc0 L_sqok")
    e(f"s_sub_u32 s{sT2}, s{sT2}, 1")
    if opt["sq"] > 1: e(f"s_sleep {opt['sq']}")
    e(f"s_cmp_gt_i32 s{sT2}, 0")
    e("s_cbranch_scc1 L_sq")
    lab("L_sqok")
    ts(1)
ppoll("L_qp", D, 2, qissue, lambda j: [WR+8*j+1+2*k for k in range(4)], qwrite, opt["qsleep"], 0, True)
ts(4)
def hissue():
    for u in range(4):
        e(f"global_load_dwordx4 v[{VR+8*u}:{VR+8*u+3}], v{26+u}, s[{sWS}:{sWS+1}] offset:-3584 sc1")
        e(f"global_load_dwordx4 v[{VR+8*u+4}:{VR+8*u+7}], v{26+u}, s[{sWS}:{sWS+1}] offset:3584 sc1")
e("s_waitcnt lgkmcnt(0)")
e("s_barrier")
e(f"s_cmp_ge_u32 s{sID}, 56")
e("s_cbranch_scc1 L_sv2")
hissue()
lab("L_sv2")
e("s_barrier")
mlcomb()
e("v_log_f32 v7, v7")
e(f"v_mov_b32 v9, s{sTAG}")
e("v_add_f32 v8, v6, v7")
e("s_mov_b64 exec, 15")
if LOC: e(f"global_store_dwordx2 v25, v[8:9], s[{sWA}:{sWA+1}]")
e(f"global_store_dwordx2 v25, v[8:9], s[{sWS}:{sWS+1}] sc1")
e("s_mov_b64 exec, -1")
ts(3)
if opt["slse"]:
    e(f"s_cmp_lt_u32 s{sID}, 128")
    e("s_cbranch_scc1 L_sv4")
    c("split weights of this head: lanes 0..31 = (b, split)")
    e(f"s_mov_b64 s[{sP}:{sP+1}], s[{sWA}:{sWA+1}]")
    e(f"s_lshr_b32 s{sT0}, s{sU_}, 2")
    e(f"s_lshl_b32 s{sT0}, s{sT0}, 8")
    e(f"s_add_u32 s{sT0}, s{sT0}, {WS_LSE}")
    e(f"v_and_b32 v6, 31, v{vL}")
    e(f"v_lshl_add_u32 v16, v6, 3, s{sT0}")
    e(f"v_lshlrev_b32 v17, 2, v6")
    e(f"v_add_u32 v17, {HB}, v17")
    lab("L_slp")
    e(f"global_load_dwordx2 v[8:9], v16, s[{sP}:{sP+1}] sc1")
    e("s_waitcnt vmcnt(0)")
    tagcheck([9, 9], 4, 5, "L_slp", "L_sl", opt["lsleep"], True)
    e("v_mov_b32 v10, v8")
    for m in ["quad_perm:[1,0,3,2]", "quad_perm:[2,3,0,1]"]:
        e("s_nop 1")
        e(f"v_max_f32_dpp v10, v10, v10 {m} row_mask:0xf bank_mask:0xf")
    e("v_sub_f32 v8, v8, v10")
    e("v_exp_f32 v8, v8")
    e("s_nop 0")
    e("v_mov_b32 v10, v8")
    for m in ["quad_perm:[1,0,3,2]", "quad_perm:[2,3,0,1]"]:
        e("s_nop 1")
        e(f"v_add_f32_dpp v10, v10, v10 {m} row_mask:0xf bank_mask:0xf")
    e("v_rcp_f32 v10, v10")
    e("s_nop 0")
    e("v_mul_f32 v8, v8, v10")
    e("ds_write_b32 v17, v8")
    e("s_branch L_sv5")
    lab("L_sv4")
e(f"s_cmp_ge_u32 s{sID}, 56")
e("s_cbranch_scc1 L_sv3")
e(f"s_waitcnt vmcnt({1+(LOC>0)})")
e("s_branch L_hchk")
lab("L_hpoll")
hissue()
e("s_waitcnt vmcnt(0)")
lab("L_hchk")
tagcheck([VR+1+2*k for k in range(16)], 4, 5, "L_hpoll", "L_hp")
for u in range(4):
    for k in range(2):
        g_, u_ = VR+8*u+2*k, VR+8*u+4+2*k
        e(f"v_lshlrev_b32 v4, 16, v{g_}")
        e(f"v_and_b32 v5, 0xffff0000, v{g_}")
        e(f"v_lshlrev_b32 v6, 16, v{u_}")
        e(f"v_and_b32 v7, 0xffff0000, v{u_}")
        e("v_max_f32 v4, 0, v4")
        e("v_max_f32 v5, 0, v5")
        e("v_mul_f32 v4, v4, v6")
        e("v_mul_f32 v5, v5, v7")
        e(f"v_cvt_pk_bf16_f32 v{8+2*u+k}, v4, v5")
for u in range(4): e(f"ds_write_b64 v20, v[{8+2*u}:{9+2*u}] offset:{u*544}")
lab("L_sv5")
ts(5)
e("s_waitcnt lgkmcnt(0)")
e("s_barrier")
lab("L_sv3")
if DIAG:
    e(f"s_mov_b32 s{sTS+12}, s{sCNT}")
    dump_ts(1, 7)
e("s_endpgm")

hdr = open("cdna_kernels/%s.s.ref" % NAME).read().split("; Override launch")[0]
out = hdr + f"; @launch grid=(256,1,1) block=(576,1,1) lds={LDS}\n"
out += f""".amdgcn_target "amdgcn-amd-amdhsa--gfx950"
.text
.globl {NAME}_kernel
.p2align 8
.type {NAME}_kernel,@function
{NAME}_kernel:
""" + "\n".join(L) + f"""
.section .rodata,"a"
.p2align 6
.amdhsa_kernel {NAME}_kernel
  .amdhsa_next_free_vgpr 164
  .amdhsa_next_free_sgpr 96
  .amdhsa_accum_offset 164
  .amdhsa_group_segment_fixed_size 0
  .amdhsa_kernarg_size 96
  .amdhsa_user_sgpr_count 2
  .amdhsa_user_sgpr_kernarg_segment_ptr 1
  .amdhsa_system_sgpr_workgroup_id_x 1
.end_amdhsa_kernel
"""
open(sys.argv[1], "w").write(out)
```

```python
import sys
NAME = "recurrent_scan__sliding_block_cached__glu_gated_reglu__decode"
opt = dict(diag=0, nt=1, spin=5000, sleep=4, prio=3, th=63, qpipe=1, qsleep=4, k1=4, b2b=1, opipe=1, osleep=1, spipe=1, ssleep=4, kprio=2, vs=4, va=8, vb=8, vc=8, wa=0, wb=0, wc=0, rot=3, opre=0, fpre=1, fsleep=8, lsleep=1, sq=0, qdelay=24, e3=0, loc=1, lm=15, qloc=1, qpt=0, slse=0, wd=0, fdelay=0, dsep=0)
for a in sys.argv[2:]:
    k, v = a.split("="); opt[k] = int(v)
DIAG = opt["diag"]; NT = " nt" if opt["nt"] else ""
L = []
def e(s): L.append("    " + s)
def lab(s): L.append(s + ":")
def c(s): L.append("    ; " + s)
WS_Y, WS_LSE, WS_OP, WS_SP, WS_DP, WS_DIAG = 0x1000, 0x40000, 0x50000, 0x100000, 0x200000, 0x400000
YROW = 30720
W1 = 65536; SLAB = W1; SLAB2 = W1 + 16384; P1S = W1 + 32768; XN = P1S + 8192; QB = XN + 8320; HB = QB + 1088; OB = HB + 2176
MB = OB + 2176; LB = MB + 128; ZB = LB + 128; W3 = (ZB + 128 + 1023) & ~1023; LDS = W3 + 32768
sX, sK, sV, sWQ, sWO, sG, sU, sD, sOUT, sWS = 4, 6, 8, 10, 12, 16, 18, 20, 22, 26
sID, sW, sTAG, sROLE = 28, 29, 30, 31
sB = 32
sB2 = 34
sSTR, sT0, sT1, sT2, sCNT = 36, 37, 38, 39, 40
sPL, sPH = 41, 42
sM = 44
sM2 = 46
sU_ = 48
sWA, sP = 54, 56
sTS = 64
vL, vG, vI = 1, 2, 3
WR, VR, TT, DD = 32, 64, 96, 128
nts = [0]
def ts(k):
    if DIAG: e(f"s_memrealtime s[{sTS+2*k}:{sTS+2*k+1}]")
def dump_ts(slot, n):
    if not DIAG: return
    e("s_waitcnt lgkmcnt(0)")
    if DIAG == 3:
        if slot: return
        nts[0] += 1
        e(f"s_cmp_lg_u32 s{sID}, {opt.get('swg', 0)}")
        e("s_cbranch_scc1 L_end")
        e(f"s_sub_u32 s{sT0}, s{sTS+2*opt['sk']}, s{sTS}")
        e(f"s_mul_i32 s{sT0}, s{sT0}, 10")
        e(f"s_add_u32 s{sT0}, s{sT0}, 3000")
        e(f"s_min_u32 s{sT0}, s{sT0}, 40000")
        lab(f"L_spin{nts[0]}")
        e("s_memrealtime s[4:5]")
        e("s_waitcnt lgkmcnt(0)")
        e(f"s_sub_u32 s4, s4, s{sTS}")
        e(f"s_cmp_lt_u32 s4, s{sT0}")
        e(f"s_cbranch_scc1 L_spin{nts[0]}")
        return
    if DIAG == 2:
        if slot: return
        e("s_mov_b64 exec, 1")
        e("v_mov_b32 v4, 0")
        e(f"s_not_b32 s{sT0}, s{sTS}")
        e(f"v_mov_b32 v5, s{sT0}")
        e("global_atomic_umax v4, v5, s[24:25] sc1")
        for k in range(n):
            e(f"v_mov_b32 v5, s{sTS+2*k}")
            e(f"s_cmp_lt_u32 s{sID}, 240")
            e(f"s_cbranch_scc0 L_dd{nts[0]}_{k}")
            e(f"global_atomic_umax v4, v5, s[24:25] offset:{4*k+4} sc1")
            lab(f"L_dd{nts[0]}_{k}")
        nts[0] += 1
        return
    e(f"s_lshl_b32 s{sT0}, s{sID}, 8")
    e(f"s_add_u32 s{sT0}, s{sT0}, {WS_DIAG + slot*64}")
    e(f"v_mov_b32 v4, s{sT0}")
    e("s_mov_b64 exec, 1")
    for k in range(n):
        e(f"v_mov_b32 v5, s{sTS+2*k}")
        e(f"global_store_dword v4, v5, s[{sWS}:{sWS+1}] offset:{4*k}")
    e("s_getreg_b32 s37, hwreg(HW_REG_XCC_ID)")
    e("v_mov_b32 v5, s37")
    e(f"global_store_dword v4, v5, s[{sWS}:{sWS+1}] offset:60")
    e("s_getreg_b32 s37, hwreg(HW_REG_HW_ID)")
    e("v_mov_b32 v5, s37")
    e(f"global_store_dword v4, v5, s[{sWS}:{sWS+1}] offset:56")
def base(dst, src, off):
    e(f"s_add_u32 s{dst}, s{src}, {off}")
    e(f"s_addc_u32 s{dst+1}, s{src+1}, 0")
def transpose(src, dst):
    for q in range(4):
        for j in range(4):
            a, b = src + 8*j + q, src + 8*j + 4 + q
            e(f"v_perm_b32 v{dst+8*q+j}, v{b}, v{a}, s{sPL}")
            e(f"v_perm_b32 v{dst+8*q+4+j}, v{b}, v{a}, s{sPH}")
def mfma(d, a, b, cc):
    cs = "0" if cc is None else f"v[{cc}:{cc+3}]"
    e(f"v_mfma_f32_16x16x32_bf16 v[{d}:{d+3}], v[{a}:{a+3}], v[{b}:{b+3}], {cs}")
def xlane(op, v, t, full=False):
    if full:
        for m in ["quad_perm:[1,0,3,2]", "quad_perm:[2,3,0,1]", "row_half_mirror", "row_mirror"]:
            e("s_nop 1")
            e(f"{op}_dpp v{v}, v{v}, v{v} {m} row_mask:0xf bank_mask:0xf")
    for sw in ["v_permlane16_swap_b32", "v_permlane32_swap_b32"]:
        e(f"v_mov_b32 v{t}, v{v}")
        e("s_nop 1")
        e(f"{sw} v{v}, v{t}")
        e("s_nop 0")
        e(f"{op} v{v}, v{v}, v{t}")
def rbf(v):
    e(f"v_cvt_pk_bf16_f32 v{v}, v{v}, v{v}")
    e(f"v_and_b32 v{v}, 0xffff0000, v{v}")
def locinit():
    base(sWA, sWS, 0x300000 if opt["loc"] else 0)
    e(f"s_mov_b64 s[{sP}:{sP+1}], s[{sWA}:{sWA+1}]")
def locsel(f):
    if not opt["loc"]: return
    e(f"s_and_b32 s{sT0}, s{sCNT}, {opt['lm']}")
    e(f"s_cselect_b64 s[{sP}:{sP+1}], s[{sWA}:{sWA+1}], s[{sWS}:{sWS+1}]")
    if f is not True:
        nts[0] += 1
        e(f"s_cbranch_scc1 L_ls{nts[0]}")
        f()
        lab(f"L_ls{nts[0]}")
def tagcheck(regs, t0, t1, lfail_loop, name, sl=None, loc=False):
    sl = opt["sleep"] if sl is None else sl
    e(f"v_min3_u32 v{t0}, v{regs[0]}, v{regs[1]}, v{regs[1]}")
    e(f"v_max3_u32 v{t1}, v{regs[0]}, v{regs[1]}, v{regs[1]}")
    for k in range(2, len(regs), 2):
        e(f"v_min3_u32 v{t0}, v{t0}, v{regs[k]}, v{regs[k+1]}")
        e(f"v_max3_u32 v{t1}, v{t1}, v{regs[k]}, v{regs[k+1]}")
    e(f"v_cmp_ne_u32 vcc, s{sTAG}, v{t0}")
    e(f"v_cmp_ne_u32 s[{sM}:{sM+1}], s{sTAG}, v{t1}")
    e(f"s_or_b64 vcc, vcc, s[{sM}:{sM+1}]")
    e(f"s_cbranch_scc0 {name}_ok")
    e(f"s_sub_u32 s{sCNT}, s{sCNT}, 1")
    if loc: locsel(loc)
    if sl: e(f"s_sleep {sl}")
    e(f"s_cmp_gt_i32 s{sCNT}, 0")
    e(f"s_cbranch_scc1 {lfail_loop}")
    lab(f"{name}_ok")
def tagcmp(regs, okl):
    e(f"v_min_u32 v4, v{regs[0]}, v{regs[1]}")
    e(f"v_max_u32 v5, v{regs[0]}, v{regs[1]}")
    for k in range(2, len(regs), 2):
        e(f"v_min3_u32 v4, v4, v{regs[k]}, v{regs[k+1]}")
        e(f"v_max3_u32 v5, v5, v{regs[k]}, v{regs[k+1]}")
    e(f"v_cmp_ne_u32 vcc, s{sTAG}, v4")
    e(f"v_cmp_ne_u32 s[{sM}:{sM+1}], s{sTAG}, v5")
    e(f"s_or_b64 vcc, vcc, s[{sM}:{sM+1}]")
    e(f"s_cbranch_scc0 {okl}")
def ppoll(name, D, n, issue, tags, cont, sl, pre=0, loc=False):
    if pre == D: e(f"s_branch {name}_in")
    for j in range(pre, D-1):
        issue(j)
        if sl: e(f"s_sleep {sl}")
    lab(name)
    for j in range(D):
        issue((j+D-1) % D)
        if j == 0 and pre == D: lab(f"{name}_in")
        e(f"s_waitcnt vmcnt({n*(D-1)})")
        tagcmp(tags(j), f"{name}_{j}")
        if sl: e(f"s_sleep {sl}")
    e(f"s_sub_u32 s{sCNT}, s{sCNT}, 1")
    if loc: locsel(loc)
    e(f"s_cmp_gt_i32 s{sCNT}, 0")
    e(f"s_cbranch_scc1 {name}")
    for j in range(D-1, -1, -1):
        lab(f"{name}_{j}")
        cont(j)
        if j: e(f"s_branch {name}_done")
    lab(f"{name}_done")
TH = opt["th"]; K1 = opt["k1"]
def thr():
    if TH < 63: e(f"s_waitcnt vmcnt({TH-1})")
def tagfix():
    e(f"s_mul_i32 s{sTAG}, s{sTAG}, 0x9E3779B1")
    e(f"s_add_u32 s{sTAG}, s{sTAG}, 0x7F4A7C15")
def kdma(lo, hi):
    for jj in range(lo, hi):
        if jj == 4:
            e(f"s_add_u32 s{sT2}, s{sKM}, 4096")
            e(f"s_mov_b32 m0, s{sT2}")
            for q in range(4): e(f"v_xor_b32 v{16+q}, 0x1000, v{16+q}")
        if lo and opt.get("thk"): thr()
        e(f"global_load_lds_dwordx4 v{16+(jj&3)}, s[{sK}:{sK+1}] offset:{(jj&3)*1024}{NT}")
sKM, sTILE, sHB, sA = 49, 50, 51, 52
LOC = opt["loc"]
sSP = 53; E3 = opt["e3"]
WP = [0, opt["wa"], opt["wb"], opt["wc"], 4]
def w3(p):
    if WP[p] == WP[p+1]: return
    e(f"s_cmp_lg_u32 s{sROLE}, 0")
    e(f"s_cbranch_scc0 L_now3{p}")
    for jj in range(WP[p], WP[p+1]):
        e(f"global_load_lds_dwordx4 v25, s[{sB2}:{sB2+1}] offset:{jj*1024}{NT}")
        if jj < 3: e(f"v_add_u32 v25, 3072, v25")
        if jj == 1: e("v_xor_b32 v25, 0x80, v25")
    lab(f"L_now3{p}")
def w3addr():
    c("phase-3 role: wo (id>=128) or down (id<56); W3 dma base sB2, voff v25; tr addr v27; operand addr v28; publish v26")
    e(f"s_sub_u32 s{sT1}, s{sID}, 56")
    e(f"s_cmp_lt_u32 s{sT1}, 72")
    e(f"s_cselect_b32 s{sROLE}, 0, 1")
    e(f"s_cmp_lt_u32 s{sID}, 128")
    e(f"s_cselect_b64 s[{sB2}:{sB2+1}], s[{sD}:{sD+1}], s[{sWO}:{sWO+1}]")
    e(f"s_mov_b32 s{sSP}, {WS_SP}")
    e(f"s_cselect_b32 s{sSP}, {WS_DP}, s{sSP}")
    e(f"s_lshr_b32 s{sT1}, s{sU_}, 2")
    e(f"s_lshl_b32 s{sT0}, s{sT1}, 17")
    e(f"s_lshl_b32 s{sT1}, s{sT1}, 8")
    e(f"s_add_u32 s{sSP}, s{sSP}, s{sT1}")
    e(f"s_lshl_b32 s{sT1}, s{sW}, 14")
    e(f"s_add_u32 s{sT0}, s{sT0}, s{sT1}")
    e(f"s_and_b32 s{sT1}, s{sU_}, 3")
    e(f"s_lshl_b32 s{sT2}, s{sT1}, 8")
    e(f"s_add_u32 s{sT0}, s{sT0}, s{sT2}")
    base(sB2, sB2, f"s{sT0}")
    e(f"v_lshlrev_b32 v4, 1, v{vG}")
    e(f"v_xor_b32 v4, v4, v{vI}")
    e("v_lshlrev_b32 v4, 4, v4")
    e(f"v_lshl_add_u32 v25, v{vG}, 10, v4")
    e(f"s_lshl_b32 s{sT2}, s{sW}, 12")
    e(f"s_add_u32 s{sT2}, s{sT2}, {W3}")
    e(f"s_mov_b32 m0, s{sT2}")
def vwait(n, nm):
    e(f"s_cbranch_scc1 {nm}")
    e(f"s_waitcnt vmcnt({n})")
    lab(nm)
    e(f"s_waitcnt vmcnt({n+4})")
e("s_load_dwordx16 s[4:19], s[0:1], 0")
e("s_load_dwordx8 s[20:27], s[0:1], 64")
ts(0)
e("s_cmp_ge_u32 s2, 256")
e("s_cbranch_scc1 L_end")
e(f"s_mov_b32 s{sID}, s2")
e("v_lshrrev_b32 v4, 6, v0")
e(f"v_and_b32 v{vL}, 63, v0")
e(f"v_readfirstlane_b32 s{sW}, v4")
e(f"v_bfe_u32 v{vG}, v0, 4, 2")
e(f"v_and_b32 v{vI}, 15, v0")
e(f"s_mov_b32 s{sCNT}, {opt['spin']}")
c("phase-1 tile T = (id&~15) | (id&7)<<1 | (id>>3)&1")
e(f"s_and_b32 s{sT0}, s{sID}, 7")
e(f"s_lshl_b32 s{sT0}, s{sT0}, 1")
e(f"s_bfe_u32 s{sT1}, s{sID}, 0x10003")
e(f"s_or_b32 s{sT0}, s{sT0}, s{sT1}")
e(f"s_and_b32 s{sT1}, s{sID}, 0xf0")
e(f"s_or_b32 s{sTILE}, s{sT0}, s{sT1}")
c("X = (id&7)<<4 | (id>>3)&15 : q tile (id<128) or wo unit (id>=128); attention id A = b<<5 | (id&7)<<2 | (id>>3)&3")
e(f"s_and_b32 s{sT0}, s{sID}, 7")
e(f"s_bfe_u32 s{sT1}, s{sID}, 0x40003")
e(f"s_lshl4_add_u32 s{sT2}, s{sT0}, s{sT1}")
e(f"s_and_b32 s{sT1}, s{sT1}, 3")
e(f"s_lshl2_add_u32 s{sT0}, s{sT0}, s{sT1}")
e(f"s_and_b32 s{sT1}, s{sID}, 0xe0")
e(f"s_or_b32 s{sA}, s{sT0}, s{sT1}")
e(f"s_cmp_lt_u32 s{sID}, 128")
if opt["qloc"]: e(f"s_cselect_b32 s{sTILE}, s{sT2}, s{sTILE}")
e(f"s_cselect_b32 s{sU_}, s{sID}, s{sT2}")
e(f"s_movk_i32 s{sSTR}, 3584")
e(f"s_cmp_lt_u32 s{sID}, 128")
e(f"s_cselect_b32 s{sSTR}, 8192, s{sSTR}")
e(f"v_lshrrev_b32 v4, 2, v{vL}")
e(f"v_mul_u32_u24 v12, s{sSTR}, v4")
e(f"v_and_b32 v4, 3, v{vL}")
e("v_lshl_add_u32 v12, v4, 4, v12")
e(f"s_lshl_b32 s{sT0}, s{sW}, 10")
e(f"v_lshl_add_u32 v13, v{vL}, 4, s{sT0}")
e(f"s_lshl_b32 s{sKM}, s{sW}, 13")
e(f"s_lshl_b32 s{sT2}, s{sW}, 12")
e(f"s_add_u32 s{sT2}, s{sT2}, {W1}")
e(f"s_mov_b32 m0, s{sT2}")
e(f"s_lshl_b32 s{sT1}, s{sW}, 6")
e(f"s_mul_i32 s{sT1}, s{sT1}, s{sSTR}")
e(f"s_cmp_lt_u32 s{sTILE}, 184")
e(f"s_cselect_b32 s{sT0}, 0, 56")
e(f"s_and_b32 s{sT2}, s{sTILE}, 127")
e(f"s_sub_u32 s{sT0}, s{sT2}, s{sT0}")
e(f"s_lshl_b32 s{sT0}, s{sT0}, 6")
e(f"s_add_u32 s{sT1}, s{sT1}, s{sT0}")
e(f"s_lshl_b32 s{sT2}, s{sSTR}, 4")
e(f"s_sub_u32 s{sT2}, s{sT2}, 1024")
e("s_waitcnt lgkmcnt(0)")
ts(1)
e(f"s_load_dword s{sTAG}, s[{sWS}:{sWS+1}], 0")
e(f"s_cmp_eq_u32 s{sW}, 8")
e("s_cbranch_scc1 L_service")
e(f"s_cmp_ge_u32 s{sID}, 240")
e("s_cbranch_scc1 L_now1")
if opt.get("wprio"): e("s_setprio 2")
e(f"global_load_dwordx4 v[8:11], v13, s[{sX}:{sX+1}]")
e(f"s_cmp_lt_u32 s{sTILE}, 184")
e(f"s_cselect_b64 s[{sB}:{sB+1}], s[{sG}:{sG+1}], s[{sU}:{sU+1}]")
e(f"s_cmp_lt_u32 s{sID}, 128")
e(f"s_cselect_b64 s[{sB}:{sB+1}], s[{sWQ}:{sWQ+1}], s[{sB}:{sB+1}]")
base(sB, sB, f"s{sT1}")
for jj in range(4):
    e(f"global_load_lds_dwordx4 v12, s[{sB}:{sB+1}] offset:{jj*1024}{NT}")
    if jj < 3: e(f"v_add_u32 v12, s{sT2}, v12")
lab("L_now1")
if E3 == 2:
    if opt.get("wprio"): e("s_setprio 0")
    w3addr(); WP = [0, 4, 4, 4, 4]; w3(0); WP = [4]*5
c("KV slice offset: (id>>2)<<20 + 786432 + (id&3)<<16 + wave<<13")
e(f"s_lshr_b32 s{sT0}, s{sA}, 2")
e(f"s_lshl_b32 s{sT0}, s{sT0}, 20")
e(f"s_and_b32 s{sT1}, s{sA}, 3")
e(f"s_lshl_b32 s{sT1}, s{sT1}, 16")
e(f"s_add_u32 s{sT0}, s{sT0}, s{sT1}")
e(f"s_add_u32 s{sT0}, s{sT0}, 786432")
base(sK, sK, f"s{sT0}")
base(sV, sV, f"s{sT0}")
e(f"v_xor_b32 v16, v{vI}, v{vG}")
e("v_lshlrev_b32 v16, 4, v16")
e(f"v_lshl_add_u32 v16, v{vG}, 8, v16")
c("first 4 KB block of this wave: (2w + (w>>2)) ^ r ; the second one is ^1 (spreads the HBM stacks)")
e(f"s_lshr_b32 s{sHB}, s{sW}, 2")
e(f"s_lshl_b32 s{sT1}, s{sW}, 1")
e(f"s_or_b32 s{sHB}, s{sHB}, s{sT1}")
if opt["rot"]:
    e(f"s_bfe_u32 s{sT1}, s{sID}, {0x30000 + opt['rot']:#x}")
    e(f"s_xor_b32 s{sHB}, s{sHB}, s{sT1}")
e(f"s_lshl_b32 s{sHB}, s{sHB}, 12")
e(f"v_or_b32 v16, s{sHB}, v16")
e("v_xor_b32 v17, 64, v16")
e("v_xor_b32 v18, 0x80, v16")
e("v_xor_b32 v19, 0xc0, v16")
e(f"s_mov_b32 m0, s{sKM}")
ts(2)
e(f"s_cmp_ge_u32 s{sID}, 240")
e("s_cbranch_scc1 L_p1skip0")
c("layernorm of row w")
if E3 == 2:
    e(f"s_cmp_lg_u32 s{sROLE}, 0")
    vwait(4, "L_xw")
else: e(f"s_waitcnt vmcnt(4)")
ts(3)
for k in range(4):
    e(f"v_lshlrev_b32 v{TT+2*k}, 16, v{8+k}")
    e(f"v_and_b32 v{TT+2*k+1}, 0xffff0000, v{8+k}")
e(f"v_pk_add_f32 v[4:5], v[{TT}:{TT+1}], v[{TT+2}:{TT+3}]")
e(f"v_pk_add_f32 v[6:7], v[{TT+4}:{TT+5}], v[{TT+6}:{TT+7}]")
e("v_pk_add_f32 v[4:5], v[4:5], v[6:7]")
e("v_add_f32 v4, v4, v5")
xlane("v_add_f32", 4, 5, full=True)
e("v_mul_f32 v4, 0x3b000000, v4")
e(f"v_sub_f32 v5, v{TT}, v4")
e("v_mul_f32 v6, v5, v5")
for k in range(1, 8):
    e(f"v_sub_f32 v5, v{TT+k}, v4")
    e("v_fmac_f32 v6, v5, v5")
xlane("v_add_f32", 6, 5, full=True)
e("v_mul_f32 v6, 0x3b000000, v6")
rbf(4); rbf(6)
e("v_add_f32 v6, 0x3727c5ac, v6")
rbf(6)
e("v_sqrt_f32 v6, v6")
e("s_nop 0")
rbf(6)
e("v_rcp_f32 v6, v6")
for k in range(8): e(f"v_sub_f32 v{TT+k}, v{TT+k}, v4")
for k in range(4):
    e(f"v_cvt_pk_bf16_f32 v{8+k}, v{TT+2*k}, v{TT+2*k+1}")
    e(f"v_lshlrev_b32 v{TT+2*k}, 16, v{8+k}")
    e(f"v_and_b32 v{TT+2*k+1}, 0xffff0000, v{8+k}")
    e(f"v_mul_f32 v{TT+2*k}, v{TT+2*k}, v6")
    e(f"v_mul_f32 v{TT+2*k+1}, v{TT+2*k+1}, v6")
    e(f"v_cvt_pk_bf16_f32 v{8+k}, v{TT+2*k}, v{TT+2*k+1}")
e(f"s_mul_i32 s{sT0}, s{sW}, 1040")
e(f"s_add_u32 s{sT0}, s{sT0}, {XN}")
e(f"v_lshl_add_u32 v4, v{vL}, 4, s{sT0}")
e("ds_write_b128 v4, v[8:11]")
c("xn operand addresses (v6,v7), W tr-read address (v5), slab address (v4)")
e(f"v_and_b32 v5, 7, v{vI}")
e("v_mul_u32_u24 v4, 1040, v5")
e(f"v_lshl_add_u32 v4, v{vG}, 4, v4")
e(f"s_lshl_b32 s{sT0}, s{sW}, 7")
e(f"s_add_u32 s{sT0}, s{sT0}, {XN}")
e(f"v_add_u32 v4, s{sT0}, v4")
e(f"v_mov_b32 v5, {ZB}")
e(f"v_cmp_gt_u32 vcc, 8, v{vI}")
e(f"s_lshl_b32 s{sT0}, s{sW}, 12")
e(f"s_add_u32 s{sT0}, s{sT0}, {W1}")
e("v_cndmask_b32 v6, v5, v4, vcc")
e("v_cndmask_b32 v7, v4, v5, vcc")
e(f"v_lshrrev_b32 v4, 2, v{vI}")
e(f"v_lshl_add_u32 v4, v{vG}, 3, v4")
e(f"v_and_b32 v5, 3, v{vI}")
e("v_lshlrev_b32 v5, 3, v5")
e("v_lshl_add_u32 v5, v4, 6, v5")
e(f"v_add_u32 v5, s{sT0}, v5")
e(f"s_lshl_b32 s{sT0}, s{sW}, 10")
e(f"s_add_u32 s{sT0}, s{sT0}, {P1S}")
e(f"v_lshl_add_u32 v4, v{vL}, 4, s{sT0}")
e("s_waitcnt lgkmcnt(0)")
e("s_barrier")
for ks in range(2):
    for ct in range(2): e(f"ds_read_b128 v[{DD+8*ks+4*ct}:{DD+8*ks+4*ct+3}], v{6+ct} offset:{ks*64}")
kdma(0, K1)
if E3 == 2:
    e(f"s_cmp_lg_u32 s{sROLE}, 0")
    vwait(K1, "L_ww")
else: e(f"s_waitcnt vmcnt({K1})")
ts(4)
for ks in range(2):
    for ct in range(2):
        for hh in range(2):
            r = TT+8*ks+4*ct+2*hh
            e(f"ds_read_b64_tr_b16 v[{r}:{r+1}], v5 offset:{ks*2048+hh*256+ct*32}")
e("s_waitcnt lgkmcnt(0)")
for n in range(4): mfma(8, TT+4*n, DD+4*n, None if n == 0 else 8)
e("s_nop 7")
e("ds_write_b128 v4, v[8:11]")
e("s_waitcnt lgkmcnt(0)")
e("s_barrier")
if opt.get("b2b"): e("s_barrier")
e("s_branch L_p1skip")
lab("L_p1skip0")
kdma(0, K1)
lab("L_p1skip")
ts(5)
if opt.get("kprio"): e(f"s_setprio {opt['kprio']}")
kdma(K1, 8) if K1 else (kdma(0, 1), kdma(1, 8))
if opt.get("kprio"): e("s_setprio 0")
e(f"v_lshlrev_b32 v59, 10, v{vG}")
e(f"v_lshl_add_u32 v59, v{vI}, 4, v59")
e(f"v_or_b32 v59, s{sHB}, v59")
e(f"v_xor_b32 v60, 0x1000, v59")
VS = opt["vs"]; VP = [opt["va"], opt["vb"], opt["vc"], 8]
def vload(lo, hi):
    for j in range(lo, hi):
        e(f"global_load_dwordx4 v[{VR+4*j}:{VR+4*j+3}], v{59+(j>>2)}, s[{sV}:{sV+1}] offset:{(j&3)*256}{NT}")
if E3 < 2: w3addr()
if E3 == 1: WP = [0, 4, 4, 4, 4]; w3(0); WP = [4]*5
vload(0, VS)
ts(6)
c("address precompute")
e(f"s_mov_b32 s{sPL}, 0x05040100")
e(f"s_mov_b32 s{sPH}, 0x07060302")
e("s_waitcnt lgkmcnt(0)")
tagfix()
locinit()
e(f"s_and_b32 s{sT1}, s{sU_}, 3")
e(f"s_lshl_b32 s{sT1}, s{sT1}, 15")
e(f"s_add_u32 s{sSP}, s{sSP}, s{sT1}")
e(f"s_lshr_b32 s{sT1}, s{sW}, 1")
e(f"s_lshl_b32 s{sT1}, s{sT1}, 13")
e(f"s_add_u32 s{sSP}, s{sSP}, s{sT1}")
e(f"s_and_b32 s{sT1}, s{sW}, 1")
e(f"s_lshl_b32 s{sT1}, s{sT1}, 7")
e(f"s_add_u32 s{sSP}, s{sSP}, s{sT1}")
e(f"v_and_b32 v4, 7, v{vI}")
e(f"v_lshl_add_u32 v26, v4, 17, s{sSP}")
e(f"v_lshl_add_u32 v26, v{vG}, 5, v26")
e(f"v_lshrrev_b32 v5, 3, v{vI}")
e("v_lshl_add_u32 v26, v5, 4, v26")
e("v_mul_u32_u24 v28, 272, v4")
e(f"v_lshl_add_u32 v28, v{vG}, 4, v28")
e(f"v_add_u32 v28, {OB}, v28")
e(f"v_lshrrev_b32 v4, 2, v{vI}")
e(f"v_bfe_u32 v5, v{vI}, 1, 1")
e(f"s_lshl_b32 s{sT1}, s{sW}, 1")
e(f"v_or_b32 v5, s{sT1}, v5")
e("v_lshlrev_b32 v6, 1, v4")
e("v_xor_b32 v5, v5, v6")
e(f"v_and_b32 v6, 1, v{vG}")
e("v_lshlrev_b32 v6, 3, v6")
e("v_xor_b32 v5, v5, v6")
e(f"v_lshl_add_u32 v4, v{vG}, 3, v4")
e("v_lshlrev_b32 v4, 8, v4")
e("v_lshl_add_u32 v27, v5, 4, v4")
e(f"v_and_b32 v4, 1, v{vI}")
e("v_lshl_add_u32 v27, v4, 3, v27")
e(f"v_add_u32 v27, {W3}, v27")
e(f"v_cmp_lt_u32 s[{sM2}:{sM2+1}], 7, v{vI}")
e(f"v_xor_b32 v16, v{vI}, v{vG}")
e("v_lshlrev_b32 v16, 4, v16")
e(f"v_lshl_add_u32 v16, v{vI}, 8, v16")
e(f"v_add_u32 v16, s{sKM}, v16")
e("v_xor_b32 v17, 64, v16")
e("v_xor_b32 v18, 0x80, v16")
e("v_xor_b32 v19, 0xc0, v16")
e(f"v_and_b32 v22, 3, v{vI}")
e("v_mul_u32_u24 v23, 272, v22")
e(f"v_lshl_add_u32 v23, v{vG}, 4, v23")
e(f"v_add_u32 v23, {QB}, v23")
e(f"v_lshlrev_b32 v4, 5, v22")
e(f"s_lshl_b32 s{sT2}, s{sW}, 2")
e(f"v_add_u32 v24, {MB}, v4")
e(f"v_add_u32 v29, s{sT2}, v24")
e(f"s_lshr_b32 s{sT0}, s{sU_}, 2")
e(f"s_lshl_b32 s{sT0}, s{sT0}, 3")
e(f"s_add_u32 s{sT0}, s{sT0}, s{sW}")
e(f"s_lshl_b32 s{sT1}, s{sT0}, 5")
e(f"s_add_u32 s{sT1}, s{sT1}, {WS_LSE}")
e(f"v_mov_b32 v57, s{sT1}")
e(f"s_lshl_b32 s{sT1}, s{sT0}, 11")
e(f"s_add_u32 s{sT1}, s{sT1}, {WS_OP}")
e(f"v_lshl_add_u32 v56, v{vL}, 3, s{sT1}")
c("obuf write address: b*272 + (16g+4r+2a+e2)*4, lane=(a,g,e2,r)")
e(f"v_bfe_u32 v4, v{vL}, 3, 2")
e("v_lshlrev_b32 v58, 6, v4")
e(f"v_and_b32 v4, 3, v{vL}")
e("v_lshl_add_u32 v58, v4, 4, v58")
e(f"v_lshrrev_b32 v4, 5, v{vL}")
e("v_lshl_add_u32 v58, v4, 3, v58")
e(f"v_and_b32 v4, 4, v{vL}")
e(f"s_mul_i32 s{sT0}, s{sW}, 272")
e(f"s_add_u32 s{sT0}, s{sT0}, {OB}")
e(f"v_add3_u32 v58, v58, v4, s{sT0}")
c("PV slab write v30, read v31, o publish v20")
e(f"s_lshl_b32 s{sT0}, s{sW}, 11")
e(f"s_add_u32 s{sT0}, s{sT0}, {SLAB}")
e(f"v_lshl_add_u32 v30, v{vL}, 4, s{sT0}")
e(f"v_lshlrev_b32 v31, 2, v0")
e(f"v_add_u32 v31, {SLAB}, v31")
e(f"v_bfe_u32 v4, v{vL}, 2, 2")
e("v_lshlrev_b32 v20, 14, v4")
e(f"v_lshrrev_b32 v4, 5, v{vL}")
e("v_lshl_add_u32 v20, v4, 5, v20")
e(f"v_and_b32 v4, 3, v{vL}")
e("v_lshl_add_u32 v20, v4, 3, v20")
e(f"s_bfe_u32 s{sT0}, s{sA}, 0x30002")
e(f"s_lshl_b32 s{sT0}, s{sT0}, 16")
e(f"s_lshr_b32 s{sT1}, s{sA}, 5")
e(f"s_lshl_b32 s{sT1}, s{sT1}, 11")
e(f"s_add_u32 s{sT0}, s{sT0}, s{sT1}")
e(f"s_and_b32 s{sT1}, s{sA}, 3")
e(f"s_lshl_b32 s{sT1}, s{sT1}, 9")
e(f"s_add_u32 s{sT0}, s{sT0}, s{sT1}")
e(f"s_lshl_b32 s{sT1}, s{sW}, 6")
e(f"s_add_u32 s{sT0}, s{sT0}, s{sT1}")
e(f"s_add_u32 s{sT0}, s{sT0}, {WS_OP}")
e(f"v_add_u32 v20, s{sT0}, v20")
if E3 == 1:
    e(f"s_cmp_lg_u32 s{sROLE}, 0")
    vwait(VS, "L_kw")
else: e(f"s_waitcnt vmcnt({VS})")
for t in range(2):
    for cc in range(4): e(f"ds_read_b128 v[{TT+16*t+4*cc}:{TT+16*t+4*cc+3}], v{16+cc} offset:{t*4096}")
e(f"s_mov_b32 s{sT0}, 0x3db504f3")
e(f"s_mov_b32 s{sT1}, 0x3fb8aa3b")
e("s_barrier")
ts(7)
for cc in range(4): e(f"ds_read_b128 v[{DD+4*cc}:{DD+4*cc+3}], v23 offset:{cc*64}")
e("s_waitcnt lgkmcnt(0)")
S = DD + 16
for cc in range(4):
    for t in range(2): mfma(S+4*t, TT+16*t+4*cc, DD+4*cc, None if cc == 0 else S+4*t)
vload(VS, VP[0])
w3(0)
e("s_nop 7")
for k in range(4): e(f"v_cvt_pk_bf16_f32 v{8+k}, v{S+2*k}, v{S+2*k+1}")
for k in range(4):
    e(f"v_lshlrev_b32 v{S+2*k}, 16, v{8+k}")
    e(f"v_and_b32 v{S+2*k+1}, 0xffff0000, v{8+k}")
for k in range(8): e(f"v_mul_f32 v{S+k}, s{sT0}, v{S+k}")
for k in range(4): e(f"v_cvt_pk_bf16_f32 v{8+k}, v{S+2*k}, v{S+2*k+1}")
for k in range(4):
    e(f"v_lshlrev_b32 v{S+2*k}, 16, v{8+k}")
    e(f"v_and_b32 v{S+2*k+1}, 0xffff0000, v{8+k}")
e(f"v_max3_f32 v6, v{S}, v{S+1}, v{S+2}")
e(f"v_max3_f32 v7, v{S+3}, v{S+4}, v{S+5}")
e(f"v_max3_f32 v6, v6, v{S+6}, v{S+7}")
e(f"v_max_f32 v6, v6, v7")
xlane("v_max_f32", 6, 7)
e(f"v_mul_f32 v23, s{sT1}, v6")
for k in range(8): e(f"v_fma_f32 v{S+k}, v{S+k}, s{sT1}, -v23")
for k in range(8): e(f"v_exp_f32 v{S+k}, v{S+k}")
e("s_nop 0")
e(f"v_pk_add_f32 v[4:5], v[{S}:{S+1}], v[{S+2}:{S+3}]")
e(f"v_pk_add_f32 v[6:7], v[{S+4}:{S+5}], v[{S+6}:{S+7}]")
e("v_pk_add_f32 v[4:5], v[4:5], v[6:7]")
e("v_add_f32 v7, v4, v5")
xlane("v_add_f32", 7, 8)
e("s_mov_b64 exec, 15")
e("ds_write2_b32 v29, v23, v7 offset0:0 offset1:32")
e("s_mov_b64 exec, -1")
vload(VP[0], VP[1])
w3(1)
e("s_waitcnt lgkmcnt(0)")
e("s_barrier")
vload(VP[1], VP[2])
w3(2)
def mlcomb():
    e("ds_read_b128 v[8:11], v24")
    e("ds_read_b128 v[12:15], v24 offset:16")
    e(f"ds_read_b128 v[{DD}:{DD+3}], v24 offset:128")
    e(f"ds_read_b128 v[{DD+4}:{DD+7}], v24 offset:144")
    e("s_waitcnt lgkmcnt(0)")
    e("v_max3_f32 v6, v8, v9, v10")
    e("v_max3_f32 v7, v11, v12, v13")
    e("v_max3_f32 v6, v6, v14, v15")
    e("v_max_f32 v6, v6, v7")
    for k in range(8): e(f"v_sub_f32 v{8+k}, v{8+k}, v6")
    for k in range(8): e(f"v_exp_f32 v{8+k}, v{8+k}")
    e(f"v_mul_f32 v7, v8, v{DD}")
    for k in range(1, 8): e(f"v_fmac_f32 v7, v{8+k}, v{DD+k}")
mlcomb()
e("v_sub_f32 v23, v23, v6")
e("v_rcp_f32 v8, v7")
e("v_exp_f32 v23, v23")
e(f"v_lshrrev_b32 v4, 2, v{vI}")
e("v_mul_f32 v23, v23, v8")
for k in range(8): e(f"v_mul_f32 v{S+k}, v23, v{S+k}")
for k in range(4): e(f"v_cvt_pk_bf16_f32 v{S+k}, v{S+2*k}, v{S+2*k+1}")
PM = DD + 20
for k in range(16): e(f"v_mov_b32 v{PM+k}, 0")
for cq in range(4):
    m = 0x000F000F << (4*cq)
    e(f"s_mov_b32 exec_lo, {m:#x}")
    e(f"s_mov_b32 exec_hi, {m:#x}")
    for k in range(0, 4, 2): e(f"v_pk_mov_b32 v[{PM+4*cq+k}:{PM+4*cq+k+1}], v[{S+k}:{S+k+1}], v[{S+k}:{S+k+1}] op_sel:[0,1]")
e("s_mov_b64 exec, -1")
e(f"v_mov_b32 v7, s{sTAG}")
ts(8)
vload(VP[2], 8)
WD = opt["wd"]
if not WD: w3(3)
e(f"s_cmp_lg_u32 s{sROLE}, 0")
for j in range(4):
    if WD == 2 and j == 3:
        w3(3); vwait(0, "L_vw3")
    elif E3 or WD: e(f"s_waitcnt vmcnt({6-2*j})")
    else: vwait(6-2*j, f"L_vw{j}")
    if j == 3: ts(9)
    for q in range(4):
        a, b = VR + 8*j + q, VR + 8*j + 4 + q
        e(f"v_perm_b32 v{TT+8*q+j}, v{b}, v{a}, s{sPL}")
        e(f"v_perm_b32 v{TT+8*q+4+j}, v{b}, v{a}, s{sPH}")
for cc in range(8): mfma(DD+4*(cc>>2), TT+4*cc, PM+4*(cc&3), None if (cc&3) == 0 else DD+4*(cc>>2))
e("s_nop 3")
e(f"ds_write_b128 v30, v[{DD}:{DD+3}]")
e("s_nop 2")
e(f"ds_write_b128 v30, v[{DD+4}:{DD+7}] offset:1024")
e("s_waitcnt lgkmcnt(0)")
e("s_barrier")
for k in range(4): e(f"ds_read2st64_b32 v[{8+2*k}:{9+2*k}], v31 offset0:{16*k} offset1:{16*k+8}")
e("s_waitcnt lgkmcnt(0)")
e("v_pk_add_f32 v[8:9], v[8:9], v[10:11]")
e("v_pk_add_f32 v[12:13], v[12:13], v[14:15]")
e("v_pk_add_f32 v[8:9], v[8:9], v[12:13]")
e("v_add_f32 v10, v8, v9")
e("v_add_f32 v11, v8, v9")
e("s_nop 1")
e("v_permlane16_swap_b32 v10, v11")
e("s_mov_b32 exec_lo, 0x0000FFFF")
e("s_mov_b32 exec_hi, 0x0000FFFF")
e("v_cvt_pk_bf16_f32 v6, v10, v11")
def ostoreB():
    e("s_mov_b32 exec_lo, 0x0000FFFF")
    e("s_mov_b32 exec_hi, 0x0000FFFF")
    e(f"global_store_dwordx2 v20, v[6:7], s[{sWS}:{sWS+1}] sc1")
    e("s_mov_b64 exec, -1")
if LOC: e(f"global_store_dwordx2 v20, v[6:7], s[{sWA}:{sWA+1}]")
else: e(f"global_store_dwordx2 v20, v[6:7], s[{sWS}:{sWS+1}] sc1")
e("s_mov_b64 exec, -1")
ts(10)
if WD == 1: w3(3)
def trread():
    for ks in range(4):
        for hh in range(2): e(f"ds_read_b64_tr_b16 v[{TT+4*ks+2*hh}:{TT+4*ks+2*hh+1}], v27 offset:{ks*8192+hh*1024}")
if E3: trread()
O = VR
e(f"s_cmp_lt_u32 s{sID}, 128")
e("s_cbranch_scc1 L_lo")
def lissue():
    for s_ in range(2): e(f"global_load_dwordx4 v[{O+4*s_}:{O+3+4*s_}], v57, s[{sP}:{sP+1}] offset:{s_*16} sc1")
def oissue(j):
    for s_ in range(4): e(f"global_load_dwordx2 v[{WR+8*j+2*s_}:{WR+8*j+2*s_+1}], v56, s[{sP}:{sP+1}] offset:{s_*512} sc1")
def ocont(j):
    R = WR+8*j
    for k in range(4):
        e(f"v_and_b32 v{R+2*k+1}, 0xffff0000, v{R+2*k}")
        e(f"v_lshlrev_b32 v{R+2*k}, 16, v{R+2*k}")
    e(f"v_pk_mul_f32 v[12:13], v[{R}:{R+1}], v[8:9] op_sel_hi:[1,0]")
    e(f"v_pk_mul_f32 v[14:15], v[{R+2}:{R+3}], v[8:9] op_sel:[0,1] op_sel_hi:[1,1]")
    e(f"v_pk_fma_f32 v[12:13], v[{R+4}:{R+5}], v[10:11], v[12:13] op_sel_hi:[1,0,1]")
    e(f"v_pk_fma_f32 v[14:15], v[{R+6}:{R+7}], v[10:11], v[14:15] op_sel:[0,1,0] op_sel_hi:[1,1,1]")
OD = opt["opipe"]
if opt["slse"]:
    PRE = 1
    oissue(0)
    e(f"s_lshl_b32 s{sT0}, s{sW}, 4")
    e(f"s_add_u32 s{sT0}, s{sT0}, {HB}")
    e(f"v_mov_b32 v4, s{sT0}")
    e("ds_read_b128 v[8:11], v4")
    e("s_waitcnt lgkmcnt(0)")
else:
    lab("L_lpoll")
    lissue()
    PRE = opt["opre"]
    if PRE: oissue(0)
    e(f"s_waitcnt vmcnt({4*PRE})")
    tagcheck([O+1+2*k for k in range(4)], 4, 5, "L_lpoll", "L_lp", opt["lsleep"], ostoreB)
    if LOC: e(f"s_mov_b64 s[{sP}:{sP+1}], s[{sWA}:{sWA+1}]")
    if not PRE: oissue(0); PRE = 1
    e(f"v_max3_f32 v4, v{O}, v{O+2}, v{O+4}")
    e(f"v_max_f32 v4, v4, v{O+6}")
    for k in range(4): e(f"v_sub_f32 v{8+k}, v{O+2*k}, v4")
    for k in range(4): e(f"v_exp_f32 v{8+k}, v{8+k}")
    e("s_nop 0")
    e("v_pk_add_f32 v[4:5], v[8:9], v[10:11]")
    e("v_add_f32 v4, v4, v5")
    e("v_rcp_f32 v4, v4")
    e("s_nop 0")
    for k in range(4): e(f"v_mul_f32 v{8+k}, v{8+k}, v4")
ppoll("L_op", OD, 4, oissue, lambda j: [WR+8*j+1+2*k for k in range(4)], ocont, opt["osleep"], PRE, ostoreB)
ts(11)
e("v_pk_add_f32 v[12:13], v[12:13], v[14:15]")
e("v_cvt_pk_bf16_f32 v12, v12, v13")
e("ds_write_b32 v58, v12")
if LOC: ostoreB()
e("s_waitcnt lgkmcnt(0)")
if not E3: lab("L_mf")
e("s_barrier")
if E3: lab("L_mf")
for ks in range(4): e(f"ds_read_b128 v[{DD+4*ks}:{DD+4*ks+3}], v28 offset:{ks*64}")
if not E3: trread()
e(f"v_mov_b32 v13, s{sTAG}")
e(f"v_mov_b32 v15, s{sTAG}")
for ks in range(4):
    e(f"s_waitcnt lgkmcnt({3-ks if E3 else 6-2*ks})")
    mfma(8, TT+4*ks, DD+4*ks, None if ks == 0 else 8)
e("s_nop 7")
e(f"v_cndmask_b32 v12, v8, v10, s[{sM2}:{sM2+1}]")
e(f"v_cndmask_b32 v14, v9, v11, s[{sM2}:{sM2+1}]")
e(f"global_store_dwordx4 v26, v[12:15], s[{sWS}:{sWS+1}] sc1")
e(f"s_cmp_lt_u32 s{sID}, 128")
e("s_cbranch_scc1 L_final")
ts(12)
if DIAG:
    e(f"s_cmp_lg_u32 s{sW}, 0")
    e("s_cbranch_scc1 L_end")
    dump_ts(0, 13)
e("s_endpgm")
lab("L_lo")
if LOC: ostoreB()
e(f"s_cmp_ge_u32 s{sID}, 56")
e("s_cbranch_scc1 L_final")
if not E3: e(f"s_waitcnt vmcnt({1 if WD == 1 else 1+(LOC>0)})")
e("s_branch L_mf")
lab("L_final")
e(f"s_cmp_lg_u32 s{sW}, 0")
e("s_cbranch_scc1 L_end")
e(f"s_lshl_b32 s{sT0}, s{sID}, 13")
e(f"s_add_u32 s{sT0}, s{sT0}, 4096")
e(f"v_lshl_add_u32 v16, v{vL}, 4, s{sT0}")
base(sB, sWS, WS_DP)
base(sB2, sWS, WS_SP)
e(f"s_lshl_b32 s{sT0}, s{sID}, 6")
e(f"v_lshl_add_u32 v17, v{vI}, 2, s{sT0}")
e(f"global_load_dword v18, v17, s[{sX}:{sX+1}]")
def fsum(R, n):
    e(f"v_add_f32 v8, v{R}, v{R+4}")
    e(f"v_add_f32 v9, v{R+2}, v{R+6}")
    e(f"v_add_f32 v10, v{R+8}, v{R+12}")
    e(f"v_add_f32 v11, v{R+10}, v{R+14}")
    for j in range(4, n):
        e(f"v_add_f32 v{8+2*(j&1)}, v{8+2*(j&1)}, v{R+4*j}")
        e(f"v_add_f32 v{9+2*(j&1)}, v{9+2*(j&1)}, v{R+4*j+2}")
def fred():
    e("v_pk_add_f32 v[8:9], v[8:9], v[10:11]")
    e("s_nop 1")
    e("v_permlane32_swap_b32 v8, v9")
    e("s_nop 0")
    e("v_add_f32 v8, v8, v9")
    e("v_mov_b32 v9, v8")
    e("s_nop 1")
    e("v_permlane16_swap_b32 v8, v9")
    e("s_nop 0")
    e("v_add_f32 v8, v8, v9")
    rbf(8)
e(f"v_mov_b32 v{DD+12}, 0")
e(f"v_mov_b32 v{DD+13}, s{sTAG}")
e(f"v_mov_b32 v{DD+14}, 0")
e(f"v_mov_b32 v{DD+15}, s{sTAG}")
if opt["fpre"]:
    c("cheap pre-wait: every workgroup has published its lse")
    e(f"v_lshlrev_b32 v6, 10, v{vG}")
    e(f"v_lshl_add_u32 v6, v{vI}, 4, v6")
    e(f"v_add_u32 v6, {WS_LSE + 4096}, v6")
    lab("L_fpoll")
    for u in range(2): e(f"global_load_dwordx4 v[{WR+4*u}:{WR+4*u+3}], v6, s[{sWS}:{sWS+1}] offset:{u*4096-4096} sc1")
    e("s_waitcnt vmcnt(0)")
    tagcheck([WR+1+2*k for k in range(4)], 4, 5, "L_fpoll", "L_fp", opt["fsleep"])
if opt["fdelay"]: e(f"s_sleep {opt['fdelay']}")
lab("L_dpoll")
for j in range(4):
    if j == 3: e("s_mov_b32 exec_hi, 0")
    e(f"global_load_dwordx4 v[{DD+4*j}:{DD+4*j+3}], v16, s[{sB}:{sB+1}] offset:{j*1024-4096} sc1")
e("s_mov_b32 exec_hi, -1")
def sissue(j):
    for k in range(8): e(f"global_load_dwordx4 v[{WR+32*j+4*k}:{WR+32*j+4*k+3}], v16, s[{sB2}:{sB2+1}] offset:{k*1024-4096} sc1")
if not opt["dsep"]: sissue(0)
e(f"s_waitcnt vmcnt({0 if opt['dsep'] else 8})")
tagcheck([DD+1+2*k for k in range(8)], 4, 5, "L_dpoll", "L_dp")
if opt["dsep"]: sissue(0)
SD = opt["spipe"]
fsum(DD, 4)
fred()
ts(11)
c("g = bf16(silu(d)); x half for this lane")
e("v_mul_f32 v10, 0xbfb8aa3b, v8")
e("v_exp_f32 v10, v10")
e("v_lshlrev_b32 v19, 16, v18")
e("v_add_f32 v10, 1.0, v10")
e("v_rcp_f32 v10, v10")
e("v_and_b32 v18, 0xffff0000, v18")
e("v_mul_f32 v20, v8, v10")
rbf(20)
e("s_mov_b32 exec_hi, 0")
e("v_mov_b32 v18, v19")
e("s_mov_b32 exec_hi, -1")
e(f"v_lshrrev_b32 v4, 5, v{vL}")
e("v_lshl_add_u32 v17, v4, 1, v17")
ppoll("L_sp", SD, 8, sissue, lambda j: [WR+32*j+1+2*k for k in range(16)], lambda j: fsum(WR+32*j, 8), opt["ssleep"], 1)
fred()
e("v_mul_f32 v8, v8, v20")
rbf(8)
e("v_add_f32 v8, v8, v18")
e("v_cvt_pk_bf16_f32 v8, v8, v8")
e("s_mov_b32 exec_lo, 0xffff")
e("s_mov_b32 exec_hi, 0xffff")
e(f"global_store_short v17, v8, s[{sOUT}:{sOUT+1}]" + ["", " sc1", " sc0 sc1", " nt"][opt.get("osc", 0)])
ts(12)
e(f"s_cmp_lg_u32 s{sID}, 0")
e("s_cbranch_scc1 L_fin2")
e("s_mov_b64 exec, 1")
e("v_mov_b32 v4, 0")
e(f"v_mov_b32 v5, s{sTAG}")
e(f"global_store_dword v4, v5, s[{sWS}:{sWS+1}]" + ["", " sc1", " sc0 sc1", " nt"][opt.get("osc", 0)])
lab("L_fin2")
dump_ts(0, 13)
lab("L_end")
e("s_endpgm")
lab("L_service")
if opt["prio"]: e(f"s_setprio {opt['prio']}")
e("v_mov_b32 v8, 0")
e(f"v_and_b32 v4, 31, v{vL}")
e("v_lshlrev_b32 v4, 2, v4")
e(f"v_add_u32 v4, {ZB}, v4")
e("ds_write_b32 v4, v8")
locinit()
if LOC > 1:
    c("bring the lines of the local o / lse copies of this head into L2")
    e(f"s_cmp_lt_u32 s{sID}, 128")
    e("s_cbranch_scc1 L_nopt")
    e(f"s_lshl_b32 s{sT0}, s{sU_}, 12")
    e(f"s_add_u32 s{sT0}, s{sT0}, {WS_OP}")
    e(f"v_lshl_add_u32 v5, v{vL}, 6, s{sT0}")
    e(f"global_load_dword v6, v5, s[{sWA}:{sWA+1}]")
    e(f"s_lshl_b32 s{sT0}, s{sU_}, 6")
    e(f"s_add_u32 s{sT0}, s{sT0}, {WS_LSE}")
    e(f"v_mov_b32 v5, s{sT0}")
    e(f"global_load_dword v7, v5, s[{sWA}:{sWA+1}]")
    lab("L_nopt")
c("q source: Y + b*YROW + hkv*2048 + lane*16 (+1024)")
e(f"s_lshr_b32 s{sT0}, s{sA}, 5")
e(f"s_mul_i32 s{sT0}, s{sT0}, {YROW}")
e(f"s_bfe_u32 s{sT1}, s{sA}, 0x30002")
e(f"s_lshl_b32 s{sT1}, s{sT1}, 11")
e(f"s_add_u32 s{sT0}, s{sT0}, s{sT1}")
e(f"s_add_u32 s{sT0}, s{sT0}, {WS_Y}")
e(f"v_lshl_add_u32 v16, v{vL}, 4, s{sT0}")
base(sB, sWA, f"s{sT0}")
if opt["qpt"]:
    for u in range(2): e(f"global_load_dwordx4 v[{WR+4*u}:{WR+4*u+3}], v16, s[{sWA}:{sWA+1}] offset:{u*1024}")
e(f"v_lshrrev_b32 v4, 5, v{vL}")
e("v_mul_u32_u24 v17, 272, v4")
e(f"v_and_b32 v4, 31, v{vL}")
e("v_lshl_add_u32 v17, v4, 3, v17")
e(f"v_add_u32 v17, {QB}, v17")
c("h source v26..v29, h dest v20")
e(f"s_lshr_b32 s{sT0}, s{sU_}, 2")
e(f"s_lshl_b32 s{sT0}, s{sT0}, 9")
e(f"s_add_u32 s{sT0}, s{sT0}, {WS_Y + 16384 + 3584}")
e(f"v_lshrrev_b32 v5, 5, v{vL}")
e(f"v_mul_u32_u24 v26, {YROW}, v5")
e(f"v_lshl_add_u32 v26, v4, 4, v26")
e(f"v_add_u32 v26, s{sT0}, v26")
for j in range(1, 4): e(f"v_add_u32 v{26+j}, {2*j*YROW}, v26")
e(f"v_add_u32 v20, {OB - QB}, v17")
c("slab read v21, Y publish v22, ml read v24, lse publish v25")
e(f"v_lshlrev_b32 v21, 4, v{vL}")
e(f"v_add_u32 v21, {P1S}, v21")
e(f"v_and_b32 v4, 7, v{vI}")
e(f"v_mul_u32_u24 v22, {YROW}, v4")
e(f"v_lshrrev_b32 v4, 3, v{vI}")
e("v_lshl_add_u32 v22, v4, 6, v22")
e(f"v_lshl_add_u32 v22, v{vG}, 4, v22")
e(f"s_lshl_b32 s{sT0}, s{sTILE}, 7")
e(f"s_add_u32 s{sT0}, s{sT0}, {WS_Y}")
e(f"v_add_u32 v22, s{sT0}, v22")
e(f"v_and_b32 v4, 3, v{vI}")
e("v_lshlrev_b32 v24, 5, v4")
e(f"v_add_u32 v24, {MB}, v24")
e(f"s_bfe_u32 s{sT0}, s{sA}, 0x30002")
e(f"s_lshl_b32 s{sT0}, s{sT0}, 10")
e(f"s_and_b32 s{sT1}, s{sID}, 0xe0")
e(f"s_add_u32 s{sT0}, s{sT0}, s{sT1}")
e(f"s_and_b32 s{sT1}, s{sA}, 3")
e(f"s_lshl_b32 s{sT1}, s{sT1}, 3")
e(f"s_add_u32 s{sT0}, s{sT0}, s{sT1}")
e(f"s_add_u32 s{sT0}, s{sT0}, {WS_LSE}")
e(f"v_lshl_add_u32 v25, v4, 8, s{sT0}")
e("s_waitcnt lgkmcnt(0)")
tagfix()
e(f"v_mov_b32 v13, s{sTAG}")
e(f"v_mov_b32 v15, s{sTAG}")
e(f"s_cmp_ge_u32 s{sID}, 240")
e("s_cbranch_scc1 L_sv1")
e("s_barrier")
e("s_barrier")
for p in range(8): e(f"ds_read_b128 v[{TT+4*p}:{TT+4*p+3}], v21 offset:{p*1024}")
for p in range(4):
    e(f"s_waitcnt lgkmcnt({3-p})")
    for k in (0, 2): e(f"v_pk_add_f32 v[{TT+4*p+k}:{TT+4*p+k+1}], v[{TT+4*p+k}:{TT+4*p+k+1}], v[{TT+16+4*p+k}:{TT+16+4*p+k+1}]")
for p in range(2):
    for k in (0, 2): e(f"v_pk_add_f32 v[{TT+4*p+k}:{TT+4*p+k+1}], v[{TT+4*p+k}:{TT+4*p+k+1}], v[{TT+8+4*p+k}:{TT+8+4*p+k+1}]")
for k in (0, 2): e(f"v_pk_add_f32 v[{TT+k}:{TT+k+1}], v[{TT+k}:{TT+k+1}], v[{TT+4+k}:{TT+4+k+1}]")
e(f"v_cvt_pk_bf16_f32 v12, v{TT}, v{TT+1}")
e(f"v_cvt_pk_bf16_f32 v14, v{TT+2}, v{TT+3}")
QL = LOC and opt["qloc"]
if QL: e(f"global_store_dwordx4 v22, v[12:15], s[{sWA}:{sWA+1}]")
e(f"global_store_dwordx4 v22, v[12:15], s[{sWS}:{sWS+1}] sc1")
if opt.get("b2b"): e("s_barrier")
lab("L_sv1")
ts(2)
D = opt["qpipe"]
def qissue(j):
    for u in range(2): e(f"global_load_dwordx4 v[{WR+8*j+4*u}:{WR+8*j+4*u+3}], v16, s[{sP if QL else sWS}:{(sP if QL else sWS)+1}] offset:{u*1024} sc1")
def qwrite(j):
    e(f"ds_write2_b32 v17, v{WR+8*j}, v{WR+8*j+2} offset0:0 offset1:1")
    e(f"ds_write2_b32 v17, v{WR+8*j+4}, v{WR+8*j+6} offset0:136 offset1:137")
if opt["qdelay"]: e(f"s_sleep {opt['qdelay']}")
if opt["sq"]:
    c("scalar pre-wait: one tag of each of the 16 producers")
    e(f"s_mov_b32 s{sT2}, 40")
    lab("L_sq")
    for p in range(16): e(f"s_load_dword s{4+p}, s[{sB}:{sB+1}], {128*p+4} glc")
    e("s_waitcnt lgkmcnt(0)")
    e(f"s_xor_b32 s{sT0}, s4, s{sTAG}")
    for p in range(1, 16):
        e(f"s_xor_b32 s{sT1}, s{4+p}, s{sTAG}")
        e(f"s_or_b32 s{sT0}, s{sT0}, s{sT1}")
    e("s_cbranch_scc0 L_sqok")
    e(f"s_sub_u32 s{sT2}, s{sT2}, 1")
    if opt["sq"] > 1: e(f"s_sleep {opt['sq']}")
    e(f"s_cmp_gt_i32 s{sT2}, 0")
    e("s_cbranch_scc1 L_sq")
    lab("L_sqok")
    ts(1)
ppoll("L_qp", D, 2, qissue, lambda j: [WR+8*j+1+2*k for k in range(4)], qwrite, opt["qsleep"], 0, True)
ts(4)
def hissue():
    for u in range(4):
        e(f"global_load_dwordx4 v[{VR+8*u}:{VR+8*u+3}], v{26+u}, s[{sWS}:{sWS+1}] offset:-3584 sc1")
        e(f"global_load_dwordx4 v[{VR+8*u+4}:{VR+8*u+7}], v{26+u}, s[{sWS}:{sWS+1}] offset:3584 sc1")
e("s_waitcnt lgkmcnt(0)")
e("s_barrier")
e(f"s_cmp_ge_u32 s{sID}, 56")
e("s_cbranch_scc1 L_sv2")
hissue()
lab("L_sv2")
if opt["slse"]:
    c("split weights of this head: lanes 0..31 = (b, split)")
    e(f"s_mov_b64 s[{sP}:{sP+1}], s[{sWA}:{sWA+1}]")
    e(f"s_lshr_b32 s{sT0}, s{sU_}, 2")
    e(f"s_lshl_b32 s{sT0}, s{sT0}, 8")
    e(f"s_add_u32 s{sT0}, s{sT0}, {WS_LSE}")
    e(f"v_and_b32 v6, 31, v{vL}")
    e(f"v_lshl_add_u32 v16, v6, 3, s{sT0}")
    e(f"v_lshlrev_b32 v17, 2, v6")
    e(f"v_add_u32 v17, {HB}, v17")
e("s_barrier")
mlcomb()
e("v_log_f32 v7, v7")
e(f"v_mov_b32 v9, s{sTAG}")
e("v_add_f32 v8, v6, v7")
e("s_mov_b64 exec, 15")
if LOC: e(f"global_store_dwordx2 v25, v[8:9], s[{sWA}:{sWA+1}]")
if opt["slse"]:
    e(f"s_cmp_lt_u32 s{sID}, 128")
    e("s_cbranch_scc1 L_sv6")
    e("s_mov_b64 exec, -1")
    e(f"global_load_dwordx2 v[12:13], v16, s[{sP}:{sP+1}] sc1")
    e("s_mov_b64 exec, 15")
    lab("L_sv6")
e(f"global_store_dwordx2 v25, v[8:9], s[{sWS}:{sWS+1}] sc1")
e("s_mov_b64 exec, -1")
ts(3)
if opt["slse"]:
    e(f"s_cmp_lt_u32 s{sID}, 128")
    e("s_cbranch_scc1 L_sv4")
    e("s_waitcnt vmcnt(1)")
    e("s_branch L_slc")
    lab("L_slp")
    e(f"global_load_dwordx2 v[12:13], v16, s[{sP}:{sP+1}] sc1")
    e("s_waitcnt vmcnt(0)")
    lab("L_slc")
    tagcheck([13, 13], 4, 5, "L_slp", "L_sl", opt["lsleep"], True)
    e("v_mov_b32 v10, v12")
    for m in ["quad_perm:[1,0,3,2]", "quad_perm:[2,3,0,1]"]:
        e("s_nop 1")
        e(f"v_max_f32_dpp v10, v10, v10 {m} row_mask:0xf bank_mask:0xf")
    e("v_sub_f32 v8, v12, v10")
    e("v_exp_f32 v8, v8")
    e("s_nop 0")
    e("v_mov_b32 v10, v8")
    for m in ["quad_perm:[1,0,3,2]", "quad_perm:[2,3,0,1]"]:
        e("s_nop 1")
        e(f"v_add_f32_dpp v10, v10, v10 {m} row_mask:0xf bank_mask:0xf")
    e("v_rcp_f32 v10, v10")
    e("s_nop 0")
    e("v_mul_f32 v8, v8, v10")
    e("ds_write_b32 v17, v8")
    e("s_branch L_sv5")
    lab("L_sv4")
e(f"s_cmp_ge_u32 s{sID}, 56")
e("s_cbranch_scc1 L_sv3")
e(f"s_waitcnt vmcnt({1+(LOC>0)})")
e("s_branch L_hchk")
lab("L_hpoll")
hissue()
e("s_waitcnt vmcnt(0)")
lab("L_hchk")
tagcheck([VR+1+2*k for k in range(16)], 4, 5, "L_hpoll", "L_hp")
for u in range(4):
    for k in range(2):
        g_, u_ = VR+8*u+2*k, VR+8*u+4+2*k
        e(f"v_lshlrev_b32 v4, 16, v{g_}")
        e(f"v_and_b32 v5, 0xffff0000, v{g_}")
        e(f"v_lshlrev_b32 v6, 16, v{u_}")
        e(f"v_and_b32 v7, 0xffff0000, v{u_}")
        e("v_max_f32 v4, 0, v4")
        e("v_max_f32 v5, 0, v5")
        e("v_mul_f32 v4, v4, v6")
        e("v_mul_f32 v5, v5, v7")
        e(f"v_cvt_pk_bf16_f32 v{8+2*u+k}, v4, v5")
for u in range(4): e(f"ds_write_b64 v20, v[{8+2*u}:{9+2*u}] offset:{u*544}")
lab("L_sv5")
ts(5)
e("s_waitcnt lgkmcnt(0)")
e("s_barrier")
lab("L_sv3")
if DIAG:
    e(f"s_mov_b32 s{sTS+12}, s{sCNT}")
    dump_ts(1, 7)
e("s_endpgm")

hdr = open("cdna_kernels/%s.s.ref" % NAME).read().split("; Override launch")[0]
out = hdr + f"; @launch grid=(256,1,1) block=(576,1,1) lds={LDS}\n"
out += f""".amdgcn_target "amdgcn-amd-amdhsa--gfx950"
.text
.globl {NAME}_kernel
.p2align 8
.type {NAME}_kernel,@function
{NAME}_kernel:
""" + "\n".join(L) + f"""
.section .rodata,"a"
.p2align 6
.amdhsa_kernel {NAME}_kernel
  .amdhsa_next_free_vgpr 164
  .amdhsa_next_free_sgpr 96
  .amdhsa_accum_offset 164
  .amdhsa_group_segment_fixed_size 0
  .amdhsa_kernarg_size 96
  .amdhsa_user_sgpr_count 2
  .amdhsa_user_sgpr_kernarg_segment_ptr 1
  .amdhsa_system_sgpr_workgroup_id_x 1
.end_amdhsa_kernel
"""
open(sys.argv[1], "w").write(out)
```

```python
import sys
NAME = "recurrent_scan__sliding_block_cached__glu_gated_reglu__decode"
opt = dict(diag=0, nt=1, spin=5000, sleep=4, prio=3, th=63, qpipe=1, qsleep=4, k1=4, b2b=1, opipe=1, osleep=1, spipe=1, ssleep=4, kprio=2, vs=4, va=8, vb=8, vc=8, wa=0, wb=0, wc=0, rot=3, opre=0, fpre=1, fsleep=8, lsleep=1, sq=0, qdelay=32, e3=0, loc=1, lm=15, qloc=1, qpt=0, slse=0, wd=0, fdelay=0, dsep=0, hold=0, v0=0)
for a in sys.argv[2:]:
    k, v = a.split("="); opt[k] = int(v)
DIAG = opt["diag"]; NT = " nt" if opt["nt"] else ""
L = []
def e(s): L.append("    " + s)
def lab(s): L.append(s + ":")
def c(s): L.append("    ; " + s)
WS_Y, WS_LSE, WS_OP, WS_SP, WS_DP, WS_DIAG = 0x1000, 0x40000, 0x50000, 0x100000, 0x200000, 0x400000
YROW = 30720
W1 = 65536; SLAB = W1; SLAB2 = W1 + 16384; P1S = W1 + 32768; XN = P1S + 8192; QB = XN + 8320; HB = QB + 1088; OB = HB + 2176
MB = OB + 2176; LB = MB + 128; ZB = LB + 128; W3 = (ZB + 128 + 1023) & ~1023; LDS = W3 + 32768
sX, sK, sV, sWQ, sWO, sG, sU, sD, sOUT, sWS = 4, 6, 8, 10, 12, 16, 18, 20, 22, 26
sID, sW, sTAG, sROLE = 28, 29, 30, 31
sB = 32
sB2 = 34
sSTR, sT0, sT1, sT2, sCNT = 36, 37, 38, 39, 40
sPL, sPH = 41, 42
sM = 44
sM2 = 46
sU_ = 48
sWA, sP = 54, 56
sTS = 64
vL, vG, vI = 1, 2, 3
WR, VR, TT, DD = 32, 64, 96, 128
nts = [0]
def ts(k):
    if DIAG: e(f"s_memrealtime s[{sTS+2*k}:{sTS+2*k+1}]")
def dump_ts(slot, n):
    if not DIAG: return
    e("s_waitcnt lgkmcnt(0)")
    if DIAG == 3:
        if slot: return
        nts[0] += 1
        e(f"s_cmp_lg_u32 s{sID}, {opt.get('swg', 0)}")
        e("s_cbranch_scc1 L_end")
        e(f"s_sub_u32 s{sT0}, s{sTS+2*opt['sk']}, s{sTS}")
        e(f"s_mul_i32 s{sT0}, s{sT0}, 10")
        e(f"s_add_u32 s{sT0}, s{sT0}, 3000")
        e(f"s_min_u32 s{sT0}, s{sT0}, 40000")
        lab(f"L_spin{nts[0]}")
        e("s_memrealtime s[4:5]")
        e("s_waitcnt lgkmcnt(0)")
        e(f"s_sub_u32 s4, s4, s{sTS}")
        e(f"s_cmp_lt_u32 s4, s{sT0}")
        e(f"s_cbranch_scc1 L_spin{nts[0]}")
        return
    if DIAG == 2:
        if slot: return
        e("s_mov_b64 exec, 1")
        e("v_mov_b32 v4, 0")
        e(f"s_not_b32 s{sT0}, s{sTS}")
        e(f"v_mov_b32 v5, s{sT0}")
        e("global_atomic_umax v4, v5, s[24:25] sc1")
        for k in range(n):
            e(f"v_mov_b32 v5, s{sTS+2*k}")
            e(f"s_cmp_lt_u32 s{sID}, 240")
            e(f"s_cbranch_scc0 L_dd{nts[0]}_{k}")
            e(f"global_atomic_umax v4, v5, s[24:25] offset:{4*k+4} sc1")
            lab(f"L_dd{nts[0]}_{k}")
        nts[0] += 1
        return
    e(f"s_lshl_b32 s{sT0}, s{sID}, 8")
    e(f"s_add_u32 s{sT0}, s{sT0}, {WS_DIAG + slot*64}")
    e(f"v_mov_b32 v4, s{sT0}")
    e("s_mov_b64 exec, 1")
    for k in range(n):
        e(f"v_mov_b32 v5, s{sTS+2*k}")
        e(f"global_store_dword v4, v5, s[{sWS}:{sWS+1}] offset:{4*k}")
    e("s_getreg_b32 s37, hwreg(HW_REG_XCC_ID)")
    e("v_mov_b32 v5, s37")
    e(f"global_store_dword v4, v5, s[{sWS}:{sWS+1}] offset:60")
    e("s_getreg_b32 s37, hwreg(HW_REG_HW_ID)")
    e("v_mov_b32 v5, s37")
    e(f"global_store_dword v4, v5, s[{sWS}:{sWS+1}] offset:56")
def base(dst, src, off):
    e(f"s_add_u32 s{dst}, s{src}, {off}")
    e(f"s_addc_u32 s{dst+1}, s{src+1}, 0")
def transpose(src, dst):
    for q in range(4):
        for j in range(4):
            a, b = src + 8*j + q, src + 8*j + 4 + q
            e(f"v_perm_b32 v{dst+8*q+j}, v{b}, v{a}, s{sPL}")
            e(f"v_perm_b32 v{dst+8*q+4+j}, v{b}, v{a}, s{sPH}")
def mfma(d, a, b, cc):
    cs = "0" if cc is None else f"v[{cc}:{cc+3}]"
    e(f"v_mfma_f32_16x16x32_bf16 v[{d}:{d+3}], v[{a}:{a+3}], v[{b}:{b+3}], {cs}")
def xlane(op, v, t, full=False):
    if full:
        for m in ["quad_perm:[1,0,3,2]", "quad_perm:[2,3,0,1]", "row_half_mirror", "row_mirror"]:
            e("s_nop 1")
            e(f"{op}_dpp v{v}, v{v}, v{v} {m} row_mask:0xf bank_mask:0xf")
    for sw in ["v_permlane16_swap_b32", "v_permlane32_swap_b32"]:
        e(f"v_mov_b32 v{t}, v{v}")
        e("s_nop 1")
        e(f"{sw} v{v}, v{t}")
        e("s_nop 0")
        e(f"{op} v{v}, v{v}, v{t}")
def rbf(v):
    e(f"v_cvt_pk_bf16_f32 v{v}, v{v}, v{v}")
    e(f"v_and_b32 v{v}, 0xffff0000, v{v}")
def locinit():
    base(sWA, sWS, 0x300000 if opt["loc"] else 0)
    e(f"s_mov_b64 s[{sP}:{sP+1}], s[{sWA}:{sWA+1}]")
def locsel(f):
    if not opt["loc"]: return
    e(f"s_and_b32 s{sT0}, s{sCNT}, {opt['lm']}")
    e(f"s_cselect_b64 s[{sP}:{sP+1}], s[{sWA}:{sWA+1}], s[{sWS}:{sWS+1}]")
    if f is not True:
        nts[0] += 1
        e(f"s_cbranch_scc1 L_ls{nts[0]}")
        f()
        lab(f"L_ls{nts[0]}")
def tagcheck(regs, t0, t1, lfail_loop, name, sl=None, loc=False):
    sl = opt["sleep"] if sl is None else sl
    e(f"v_min3_u32 v{t0}, v{regs[0]}, v{regs[1]}, v{regs[1]}")
    e(f"v_max3_u32 v{t1}, v{regs[0]}, v{regs[1]}, v{regs[1]}")
    for k in range(2, len(regs), 2):
        e(f"v_min3_u32 v{t0}, v{t0}, v{regs[k]}, v{regs[k+1]}")
        e(f"v_max3_u32 v{t1}, v{t1}, v{regs[k]}, v{regs[k+1]}")
    e(f"v_cmp_ne_u32 vcc, s{sTAG}, v{t0}")
    e(f"v_cmp_ne_u32 s[{sM}:{sM+1}], s{sTAG}, v{t1}")
    e(f"s_or_b64 vcc, vcc, s[{sM}:{sM+1}]")
    e(f"s_cbranch_scc0 {name}_ok")
    e(f"s_sub_u32 s{sCNT}, s{sCNT}, 1")
    if loc: locsel(loc)
    if sl: e(f"s_sleep {sl}")
    e(f"s_cmp_gt_i32 s{sCNT}, 0")
    e(f"s_cbranch_scc1 {lfail_loop}")
    lab(f"{name}_ok")
def tagcmp(regs, okl):
    e(f"v_min_u32 v4, v{regs[0]}, v{regs[1]}")
    e(f"v_max_u32 v5, v{regs[0]}, v{regs[1]}")
    for k in range(2, len(regs), 2):
        e(f"v_min3_u32 v4, v4, v{regs[k]}, v{regs[k+1]}")
        e(f"v_max3_u32 v5, v5, v{regs[k]}, v{regs[k+1]}")
    e(f"v_cmp_ne_u32 vcc, s{sTAG}, v4")
    e(f"v_cmp_ne_u32 s[{sM}:{sM+1}], s{sTAG}, v5")
    e(f"s_or_b64 vcc, vcc, s[{sM}:{sM+1}]")
    e(f"s_cbranch_scc0 {okl}")
def ppoll(name, D, n, issue, tags, cont, sl, pre=0, loc=False):
    if pre == D: e(f"s_branch {name}_in")
    for j in range(pre, D-1):
        issue(j)
        if sl: e(f"s_sleep {sl}")
    lab(name)
    for j in range(D):
        issue((j+D-1) % D)
        if j == 0 and pre == D: lab(f"{name}_in")
        e(f"s_waitcnt vmcnt({n*(D-1)})")
        tagcmp(tags(j), f"{name}_{j}")
        if sl: e(f"s_sleep {sl}")
    e(f"s_sub_u32 s{sCNT}, s{sCNT}, 1")
    if loc: locsel(loc)
    e(f"s_cmp_gt_i32 s{sCNT}, 0")
    e(f"s_cbranch_scc1 {name}")
    for j in range(D-1, -1, -1):
        lab(f"{name}_{j}")
        cont(j)
        if j: e(f"s_branch {name}_done")
    lab(f"{name}_done")
TH = opt["th"]; K1 = opt["k1"]
def thr():
    if TH < 63: e(f"s_waitcnt vmcnt({TH-1})")
def tagfix():
    e(f"s_mul_i32 s{sTAG}, s{sTAG}, 0x9E3779B1")
    e(f"s_add_u32 s{sTAG}, s{sTAG}, 0x7F4A7C15")
def kdma(lo, hi):
    for jj in range(lo, hi):
        if jj == 4:
            e(f"s_add_u32 s{sT2}, s{sKM}, 4096")
            e(f"s_mov_b32 m0, s{sT2}")
            for q in range(4): e(f"v_xor_b32 v{16+q}, 0x1000, v{16+q}")
        if lo and opt.get("thk"): thr()
        e(f"global_load_lds_dwordx4 v{16+(jj&3)}, s[{sK}:{sK+1}] offset:{(jj&3)*1024}{NT}")
sKM, sTILE, sHB, sA = 49, 50, 51, 52
LOC = opt["loc"]
sSP = 53; E3 = opt["e3"]
WP = [0, opt["wa"], opt["wb"], opt["wc"], 4]
def w3(p):
    if WP[p] == WP[p+1]: return
    e(f"s_cmp_lg_u32 s{sROLE}, 0")
    e(f"s_cbranch_scc0 L_now3{p}")
    for jj in range(WP[p], WP[p+1]):
        e(f"global_load_lds_dwordx4 v25, s[{sB2}:{sB2+1}] offset:{jj*1024}{NT}")
        if jj < 3: e(f"v_add_u32 v25, 3072, v25")
        if jj == 1: e("v_xor_b32 v25, 0x80, v25")
    lab(f"L_now3{p}")
def w3addr():
    c("phase-3 role: wo (id>=128) or down (id<56); W3 dma base sB2, voff v25; tr addr v27; operand addr v28; publish v26")
    e(f"s_sub_u32 s{sT1}, s{sID}, 56")
    e(f"s_cmp_lt_u32 s{sT1}, 72")
    e(f"s_cselect_b32 s{sROLE}, 0, 1")
    e(f"s_cmp_lt_u32 s{sID}, 128")
    e(f"s_cselect_b64 s[{sB2}:{sB2+1}], s[{sD}:{sD+1}], s[{sWO}:{sWO+1}]")
    e(f"s_mov_b32 s{sSP}, {WS_SP}")
    e(f"s_cselect_b32 s{sSP}, {WS_DP}, s{sSP}")
    e(f"s_lshr_b32 s{sT1}, s{sU_}, 2")
    e(f"s_lshl_b32 s{sT0}, s{sT1}, 17")
    e(f"s_lshl_b32 s{sT1}, s{sT1}, 8")
    e(f"s_add_u32 s{sSP}, s{sSP}, s{sT1}")
    e(f"s_lshl_b32 s{sT1}, s{sW}, 14")
    e(f"s_add_u32 s{sT0}, s{sT0}, s{sT1}")
    e(f"s_and_b32 s{sT1}, s{sU_}, 3")
    e(f"s_lshl_b32 s{sT2}, s{sT1}, 8")
    e(f"s_add_u32 s{sT0}, s{sT0}, s{sT2}")
    base(sB2, sB2, f"s{sT0}")
    e(f"v_lshlrev_b32 v4, 1, v{vG}")
    e(f"v_xor_b32 v4, v4, v{vI}")
    e("v_lshlrev_b32 v4, 4, v4")
    e(f"v_lshl_add_u32 v25, v{vG}, 10, v4")
    e(f"s_lshl_b32 s{sT2}, s{sW}, 12")
    e(f"s_add_u32 s{sT2}, s{sT2}, {W3}")
    e(f"s_mov_b32 m0, s{sT2}")
def vwait(n, nm):
    e(f"s_cbranch_scc1 {nm}")
    e(f"s_waitcnt vmcnt({n})")
    lab(nm)
    e(f"s_waitcnt vmcnt({n+4})")
e("s_load_dwordx16 s[4:19], s[0:1], 0")
e("s_load_dwordx8 s[20:27], s[0:1], 64")
ts(0)
e("s_cmp_ge_u32 s2, 256")
e("s_cbranch_scc1 L_end")
e(f"s_mov_b32 s{sID}, s2")
e("v_lshrrev_b32 v4, 6, v0")
e(f"v_and_b32 v{vL}, 63, v0")
e(f"v_readfirstlane_b32 s{sW}, v4")
e(f"v_bfe_u32 v{vG}, v0, 4, 2")
e(f"v_and_b32 v{vI}, 15, v0")
e(f"s_mov_b32 s{sCNT}, {opt['spin']}")
c("phase-1 tile T = (id&~15) | (id&7)<<1 | (id>>3)&1")
e(f"s_and_b32 s{sT0}, s{sID}, 7")
e(f"s_lshl_b32 s{sT0}, s{sT0}, 1")
e(f"s_bfe_u32 s{sT1}, s{sID}, 0x10003")
e(f"s_or_b32 s{sT0}, s{sT0}, s{sT1}")
e(f"s_and_b32 s{sT1}, s{sID}, 0xf0")
e(f"s_or_b32 s{sTILE}, s{sT0}, s{sT1}")
c("X = (id&7)<<4 | (id>>3)&15 : q tile (id<128) or wo unit (id>=128); attention id A = b<<5 | (id&7)<<2 | (id>>3)&3")
e(f"s_and_b32 s{sT0}, s{sID}, 7")
e(f"s_bfe_u32 s{sT1}, s{sID}, 0x40003")
e(f"s_lshl4_add_u32 s{sT2}, s{sT0}, s{sT1}")
e(f"s_and_b32 s{sT1}, s{sT1}, 3")
e(f"s_lshl2_add_u32 s{sT0}, s{sT0}, s{sT1}")
e(f"s_and_b32 s{sT1}, s{sID}, 0xe0")
e(f"s_or_b32 s{sA}, s{sT0}, s{sT1}")
e(f"s_cmp_lt_u32 s{sID}, 128")
if opt["qloc"]: e(f"s_cselect_b32 s{sTILE}, s{sT2}, s{sTILE}")
e(f"s_cselect_b32 s{sU_}, s{sID}, s{sT2}")
e(f"s_movk_i32 s{sSTR}, 3584")
e(f"s_cmp_lt_u32 s{sID}, 128")
e(f"s_cselect_b32 s{sSTR}, 8192, s{sSTR}")
e(f"v_lshrrev_b32 v4, 2, v{vL}")
e(f"v_mul_u32_u24 v12, s{sSTR}, v4")
e(f"v_and_b32 v4, 3, v{vL}")
e("v_lshl_add_u32 v12, v4, 4, v12")
e(f"s_lshl_b32 s{sT0}, s{sW}, 10")
e(f"v_lshl_add_u32 v13, v{vL}, 4, s{sT0}")
e(f"s_lshl_b32 s{sKM}, s{sW}, 13")
e(f"s_lshl_b32 s{sT2}, s{sW}, 12")
e(f"s_add_u32 s{sT2}, s{sT2}, {W1}")
e(f"s_mov_b32 m0, s{sT2}")
e(f"s_lshl_b32 s{sT1}, s{sW}, 6")
e(f"s_mul_i32 s{sT1}, s{sT1}, s{sSTR}")
e(f"s_cmp_lt_u32 s{sTILE}, 184")
e(f"s_cselect_b32 s{sT0}, 0, 56")
e(f"s_and_b32 s{sT2}, s{sTILE}, 127")
e(f"s_sub_u32 s{sT0}, s{sT2}, s{sT0}")
e(f"s_lshl_b32 s{sT0}, s{sT0}, 6")
e(f"s_add_u32 s{sT1}, s{sT1}, s{sT0}")
e(f"s_lshl_b32 s{sT2}, s{sSTR}, 4")
e(f"s_sub_u32 s{sT2}, s{sT2}, 1024")
e("s_waitcnt lgkmcnt(0)")
ts(1)
e(f"s_load_dword s{sTAG}, s[{sWS}:{sWS+1}], 0")
e(f"s_cmp_eq_u32 s{sW}, 8")
e("s_cbranch_scc1 L_service")
e(f"s_cmp_ge_u32 s{sID}, 240")
e("s_cbranch_scc1 L_now1")
if opt.get("wprio"): e("s_setprio 2")
e(f"global_load_dwordx4 v[8:11], v13, s[{sX}:{sX+1}]")
e(f"s_cmp_lt_u32 s{sTILE}, 184")
e(f"s_cselect_b64 s[{sB}:{sB+1}], s[{sG}:{sG+1}], s[{sU}:{sU+1}]")
e(f"s_cmp_lt_u32 s{sID}, 128")
e(f"s_cselect_b64 s[{sB}:{sB+1}], s[{sWQ}:{sWQ+1}], s[{sB}:{sB+1}]")
base(sB, sB, f"s{sT1}")
for jj in range(4):
    e(f"global_load_lds_dwordx4 v12, s[{sB}:{sB+1}] offset:{jj*1024}{NT}")
    if jj < 3: e(f"v_add_u32 v12, s{sT2}, v12")
lab("L_now1")
if E3 == 2:
    if opt.get("wprio"): e("s_setprio 0")
    w3addr(); WP = [0, 4, 4, 4, 4]; w3(0); WP = [4]*5
c("KV slice offset: (id>>2)<<20 + 786432 + (id&3)<<16 + wave<<13")
e(f"s_lshr_b32 s{sT0}, s{sA}, 2")
e(f"s_lshl_b32 s{sT0}, s{sT0}, 20")
e(f"s_and_b32 s{sT1}, s{sA}, 3")
e(f"s_lshl_b32 s{sT1}, s{sT1}, 16")
e(f"s_add_u32 s{sT0}, s{sT0}, s{sT1}")
e(f"s_add_u32 s{sT0}, s{sT0}, 786432")
base(sK, sK, f"s{sT0}")
base(sV, sV, f"s{sT0}")
e(f"v_xor_b32 v16, v{vI}, v{vG}")
e("v_lshlrev_b32 v16, 4, v16")
e(f"v_lshl_add_u32 v16, v{vG}, 8, v16")
c("first 4 KB block of this wave: (2w + (w>>2)) ^ r ; the second one is ^1 (spreads the HBM stacks)")
e(f"s_lshr_b32 s{sHB}, s{sW}, 2")
e(f"s_lshl_b32 s{sT1}, s{sW}, 1")
e(f"s_or_b32 s{sHB}, s{sHB}, s{sT1}")
if opt["rot"]:
    e(f"s_bfe_u32 s{sT1}, s{sID}, {0x30000 + opt['rot']:#x}")
    e(f"s_xor_b32 s{sHB}, s{sHB}, s{sT1}")
e(f"s_lshl_b32 s{sHB}, s{sHB}, 12")
e(f"v_or_b32 v16, s{sHB}, v16")
e("v_xor_b32 v17, 64, v16")
e("v_xor_b32 v18, 0x80, v16")
e("v_xor_b32 v19, 0xc0, v16")
e(f"s_mov_b32 m0, s{sKM}")
ts(2)
e(f"s_cmp_ge_u32 s{sID}, 240")
e("s_cbranch_scc1 L_p1skip0")
c("layernorm of row w")
if E3 == 2:
    e(f"s_cmp_lg_u32 s{sROLE}, 0")
    vwait(4, "L_xw")
else: e(f"s_waitcnt vmcnt(4)")
ts(3)
for k in range(4):
    e(f"v_lshlrev_b32 v{TT+2*k}, 16, v{8+k}")
    e(f"v_and_b32 v{TT+2*k+1}, 0xffff0000, v{8+k}")
e(f"v_pk_add_f32 v[4:5], v[{TT}:{TT+1}], v[{TT+2}:{TT+3}]")
e(f"v_pk_add_f32 v[6:7], v[{TT+4}:{TT+5}], v[{TT+6}:{TT+7}]")
e("v_pk_add_f32 v[4:5], v[4:5], v[6:7]")
e("v_add_f32 v4, v4, v5")
xlane("v_add_f32", 4, 5, full=True)
e("v_mul_f32 v4, 0x3b000000, v4")
e(f"v_sub_f32 v5, v{TT}, v4")
e("v_mul_f32 v6, v5, v5")
for k in range(1, 8):
    e(f"v_sub_f32 v5, v{TT+k}, v4")
    e("v_fmac_f32 v6, v5, v5")
xlane("v_add_f32", 6, 5, full=True)
e("v_mul_f32 v6, 0x3b000000, v6")
rbf(4); rbf(6)
e("v_add_f32 v6, 0x3727c5ac, v6")
rbf(6)
e("v_sqrt_f32 v6, v6")
e("s_nop 0")
rbf(6)
e("v_rcp_f32 v6, v6")
for k in range(8): e(f"v_sub_f32 v{TT+k}, v{TT+k}, v4")
for k in range(4):
    e(f"v_cvt_pk_bf16_f32 v{8+k}, v{TT+2*k}, v{TT+2*k+1}")
    e(f"v_lshlrev_b32 v{TT+2*k}, 16, v{8+k}")
    e(f"v_and_b32 v{TT+2*k+1}, 0xffff0000, v{8+k}")
    e(f"v_mul_f32 v{TT+2*k}, v{TT+2*k}, v6")
    e(f"v_mul_f32 v{TT+2*k+1}, v{TT+2*k+1}, v6")
    e(f"v_cvt_pk_bf16_f32 v{8+k}, v{TT+2*k}, v{TT+2*k+1}")
e(f"s_mul_i32 s{sT0}, s{sW}, 1040")
e(f"s_add_u32 s{sT0}, s{sT0}, {XN}")
e(f"v_lshl_add_u32 v4, v{vL}, 4, s{sT0}")
e("ds_write_b128 v4, v[8:11]")
c("xn operand addresses (v6,v7), W tr-read address (v5), slab address (v4)")
e(f"v_and_b32 v5, 7, v{vI}")
e("v_mul_u32_u24 v4, 1040, v5")
e(f"v_lshl_add_u32 v4, v{vG}, 4, v4")
e(f"s_lshl_b32 s{sT0}, s{sW}, 7")
e(f"s_add_u32 s{sT0}, s{sT0}, {XN}")
e(f"v_add_u32 v4, s{sT0}, v4")
e(f"v_mov_b32 v5, {ZB}")
e(f"v_cmp_gt_u32 vcc, 8, v{vI}")
e(f"s_lshl_b32 s{sT0}, s{sW}, 12")
e(f"s_add_u32 s{sT0}, s{sT0}, {W1}")
e("v_cndmask_b32 v6, v5, v4, vcc")
e("v_cndmask_b32 v7, v4, v5, vcc")
e(f"v_lshrrev_b32 v4, 2, v{vI}")
e(f"v_lshl_add_u32 v4, v{vG}, 3, v4")
e(f"v_and_b32 v5, 3, v{vI}")
e("v_lshlrev_b32 v5, 3, v5")
e("v_lshl_add_u32 v5, v4, 6, v5")
e(f"v_add_u32 v5, s{sT0}, v5")
e(f"s_lshl_b32 s{sT0}, s{sW}, 10")
e(f"s_add_u32 s{sT0}, s{sT0}, {P1S}")
e(f"v_lshl_add_u32 v4, v{vL}, 4, s{sT0}")
e("s_waitcnt lgkmcnt(0)")
e("s_barrier")
for ks in range(2):
    for ct in range(2): e(f"ds_read_b128 v[{DD+8*ks+4*ct}:{DD+8*ks+4*ct+3}], v{6+ct} offset:{ks*64}")
kdma(0, K1)
if E3 == 2:
    e(f"s_cmp_lg_u32 s{sROLE}, 0")
    vwait(K1, "L_ww")
else: e(f"s_waitcnt vmcnt({K1})")
ts(4)
for ks in range(2):
    for ct in range(2):
        for hh in range(2):
            r = TT+8*ks+4*ct+2*hh
            e(f"ds_read_b64_tr_b16 v[{r}:{r+1}], v5 offset:{ks*2048+hh*256+ct*32}")
e("s_waitcnt lgkmcnt(0)")
for n in range(4): mfma(8, TT+4*n, DD+4*n, None if n == 0 else 8)
e("s_nop 7")
e("ds_write_b128 v4, v[8:11]")
e("s_waitcnt lgkmcnt(0)")
e("s_barrier")
if opt.get("b2b"): e("s_barrier")
e("s_branch L_p1skip")
lab("L_p1skip0")
kdma(0, K1)
lab("L_p1skip")
ts(5)
if opt.get("kprio"): e(f"s_setprio {opt['kprio']}")
kdma(K1, 8) if K1 else (kdma(0, 1), kdma(1, 8))
if opt.get("kprio"): e("s_setprio 0")
e(f"v_lshlrev_b32 v59, 10, v{vG}")
e(f"v_lshl_add_u32 v59, v{vI}, 4, v59")
e(f"v_or_b32 v59, s{sHB}, v59")
e(f"v_xor_b32 v60, 0x1000, v59")
VS = opt["vs"]; VP = [opt["va"], opt["vb"], opt["vc"], 8]
def vload(lo, hi):
    for j in range(lo, hi):
        e(f"global_load_dwordx4 v[{VR+4*j}:{VR+4*j+3}], v{59+(j>>2)}, s[{sV}:{sV+1}] offset:{(j&3)*256}{NT}")
if E3 < 2: w3addr()
if E3 == 1: WP = [0, 4, 4, 4, 4]; w3(0); WP = [4]*5
V0 = opt["v0"] if opt["hold"] else VS
vload(0, V0)
if not opt["hold"]: ts(6)
c("address precompute")
e(f"s_mov_b32 s{sPL}, 0x05040100")
e(f"s_mov_b32 s{sPH}, 0x07060302")
e("s_waitcnt lgkmcnt(0)")
tagfix()
locinit()
e(f"s_and_b32 s{sT1}, s{sU_}, 3")
e(f"s_lshl_b32 s{sT1}, s{sT1}, 15")
e(f"s_add_u32 s{sSP}, s{sSP}, s{sT1}")
e(f"s_lshr_b32 s{sT1}, s{sW}, 1")
e(f"s_lshl_b32 s{sT1}, s{sT1}, 13")
e(f"s_add_u32 s{sSP}, s{sSP}, s{sT1}")
e(f"s_and_b32 s{sT1}, s{sW}, 1")
e(f"s_lshl_b32 s{sT1}, s{sT1}, 7")
e(f"s_add_u32 s{sSP}, s{sSP}, s{sT1}")
e(f"v_and_b32 v4, 7, v{vI}")
e(f"v_lshl_add_u32 v26, v4, 17, s{sSP}")
e(f"v_lshl_add_u32 v26, v{vG}, 5, v26")
e(f"v_lshrrev_b32 v5, 3, v{vI}")
e("v_lshl_add_u32 v26, v5, 4, v26")
e("v_mul_u32_u24 v28, 272, v4")
e(f"v_lshl_add_u32 v28, v{vG}, 4, v28")
e(f"v_add_u32 v28, {OB}, v28")
e(f"v_lshrrev_b32 v4, 2, v{vI}")
e(f"v_bfe_u32 v5, v{vI}, 1, 1")
e(f"s_lshl_b32 s{sT1}, s{sW}, 1")
e(f"v_or_b32 v5, s{sT1}, v5")
e("v_lshlrev_b32 v6, 1, v4")
e("v_xor_b32 v5, v5, v6")
e(f"v_and_b32 v6, 1, v{vG}")
e("v_lshlrev_b32 v6, 3, v6")
e("v_xor_b32 v5, v5, v6")
e(f"v_lshl_add_u32 v4, v{vG}, 3, v4")
e("v_lshlrev_b32 v4, 8, v4")
e("v_lshl_add_u32 v27, v5, 4, v4")
e(f"v_and_b32 v4, 1, v{vI}")
e("v_lshl_add_u32 v27, v4, 3, v27")
e(f"v_add_u32 v27, {W3}, v27")
e(f"v_cmp_lt_u32 s[{sM2}:{sM2+1}], 7, v{vI}")
e(f"v_xor_b32 v16, v{vI}, v{vG}")
e("v_lshlrev_b32 v16, 4, v16")
e(f"v_lshl_add_u32 v16, v{vI}, 8, v16")
e(f"v_add_u32 v16, s{sKM}, v16")
e("v_xor_b32 v17, 64, v16")
e("v_xor_b32 v18, 0x80, v16")
e("v_xor_b32 v19, 0xc0, v16")
e(f"v_and_b32 v22, 3, v{vI}")
e("v_mul_u32_u24 v23, 272, v22")
e(f"v_lshl_add_u32 v23, v{vG}, 4, v23")
e(f"v_add_u32 v23, {QB}, v23")
e(f"v_lshlrev_b32 v4, 5, v22")
e(f"s_lshl_b32 s{sT2}, s{sW}, 2")
e(f"v_add_u32 v24, {MB}, v4")
e(f"v_add_u32 v29, s{sT2}, v24")
e(f"s_lshr_b32 s{sT0}, s{sU_}, 2")
e(f"s_lshl_b32 s{sT0}, s{sT0}, 3")
e(f"s_add_u32 s{sT0}, s{sT0}, s{sW}")
e(f"s_lshl_b32 s{sT1}, s{sT0}, 5")
e(f"s_add_u32 s{sT1}, s{sT1}, {WS_LSE}")
e(f"v_mov_b32 v57, s{sT1}")
e(f"s_lshl_b32 s{sT1}, s{sT0}, 11")
e(f"s_add_u32 s{sT1}, s{sT1}, {WS_OP}")
e(f"v_lshl_add_u32 v56, v{vL}, 3, s{sT1}")
c("obuf write address: b*272 + (16g+4r+2a+e2)*4, lane=(a,g,e2,r)")
e(f"v_bfe_u32 v4, v{vL}, 3, 2")
e("v_lshlrev_b32 v58, 6, v4")
e(f"v_and_b32 v4, 3, v{vL}")
e("v_lshl_add_u32 v58, v4, 4, v58")
e(f"v_lshrrev_b32 v4, 5, v{vL}")
e("v_lshl_add_u32 v58, v4, 3, v58")
e(f"v_and_b32 v4, 4, v{vL}")
e(f"s_mul_i32 s{sT0}, s{sW}, 272")
e(f"s_add_u32 s{sT0}, s{sT0}, {OB}")
e(f"v_add3_u32 v58, v58, v4, s{sT0}")
c("PV slab write v30, read v31, o publish v20")
e(f"s_lshl_b32 s{sT0}, s{sW}, 11")
e(f"s_add_u32 s{sT0}, s{sT0}, {SLAB}")
e(f"v_lshl_add_u32 v30, v{vL}, 4, s{sT0}")
e(f"v_lshlrev_b32 v31, 2, v0")
e(f"v_add_u32 v31, {SLAB}, v31")
e(f"v_bfe_u32 v4, v{vL}, 2, 2")
e("v_lshlrev_b32 v20, 14, v4")
e(f"v_lshrrev_b32 v4, 5, v{vL}")
e("v_lshl_add_u32 v20, v4, 5, v20")
e(f"v_and_b32 v4, 3, v{vL}")
e("v_lshl_add_u32 v20, v4, 3, v20")
e(f"s_bfe_u32 s{sT0}, s{sA}, 0x30002")
e(f"s_lshl_b32 s{sT0}, s{sT0}, 16")
e(f"s_lshr_b32 s{sT1}, s{sA}, 5")
e(f"s_lshl_b32 s{sT1}, s{sT1}, 11")
e(f"s_add_u32 s{sT0}, s{sT0}, s{sT1}")
e(f"s_and_b32 s{sT1}, s{sA}, 3")
e(f"s_lshl_b32 s{sT1}, s{sT1}, 9")
e(f"s_add_u32 s{sT0}, s{sT0}, s{sT1}")
e(f"s_lshl_b32 s{sT1}, s{sW}, 6")
e(f"s_add_u32 s{sT0}, s{sT0}, s{sT1}")
e(f"s_add_u32 s{sT0}, s{sT0}, {WS_OP}")
e(f"v_add_u32 v20, s{sT0}, v20")
if opt["hold"]:
    e("s_barrier")
    vload(V0, VS)
    ts(6)
if E3 == 1:
    e(f"s_cmp_lg_u32 s{sROLE}, 0")
    vwait(VS, "L_kw")
else: e(f"s_waitcnt vmcnt({VS})")
for t in range(2):
    for cc in range(4): e(f"ds_read_b128 v[{TT+16*t+4*cc}:{TT+16*t+4*cc+3}], v{16+cc} offset:{t*4096}")
e(f"s_mov_b32 s{sT0}, 0x3db504f3")
e(f"s_mov_b32 s{sT1}, 0x3fb8aa3b")
e("s_barrier")
ts(7)
for cc in range(4): e(f"ds_read_b128 v[{DD+4*cc}:{DD+4*cc+3}], v23 offset:{cc*64}")
e("s_waitcnt lgkmcnt(0)")
S = DD + 16
for cc in range(4):
    for t in range(2): mfma(S+4*t, TT+16*t+4*cc, DD+4*cc, None if cc == 0 else S+4*t)
vload(VS, VP[0])
w3(0)
e("s_nop 7")
for k in range(4): e(f"v_cvt_pk_bf16_f32 v{8+k}, v{S+2*k}, v{S+2*k+1}")
for k in range(4):
    e(f"v_lshlrev_b32 v{S+2*k}, 16, v{8+k}")
    e(f"v_and_b32 v{S+2*k+1}, 0xffff0000, v{8+k}")
for k in range(8): e(f"v_mul_f32 v{S+k}, s{sT0}, v{S+k}")
for k in range(4): e(f"v_cvt_pk_bf16_f32 v{8+k}, v{S+2*k}, v{S+2*k+1}")
for k in range(4):
    e(f"v_lshlrev_b32 v{S+2*k}, 16, v{8+k}")
    e(f"v_and_b32 v{S+2*k+1}, 0xffff0000, v{8+k}")
e(f"v_max3_f32 v6, v{S}, v{S+1}, v{S+2}")
e(f"v_max3_f32 v7, v{S+3}, v{S+4}, v{S+5}")
e(f"v_max3_f32 v6, v6, v{S+6}, v{S+7}")
e(f"v_max_f32 v6, v6, v7")
xlane("v_max_f32", 6, 7)
e(f"v_mul_f32 v23, s{sT1}, v6")
for k in range(8): e(f"v_fma_f32 v{S+k}, v{S+k}, s{sT1}, -v23")
for k in range(8): e(f"v_exp_f32 v{S+k}, v{S+k}")
e("s_nop 0")
e(f"v_pk_add_f32 v[4:5], v[{S}:{S+1}], v[{S+2}:{S+3}]")
e(f"v_pk_add_f32 v[6:7], v[{S+4}:{S+5}], v[{S+6}:{S+7}]")
e("v_pk_add_f32 v[4:5], v[4:5], v[6:7]")
e("v_add_f32 v7, v4, v5")
xlane("v_add_f32", 7, 8)
e("s_mov_b64 exec, 15")
e("ds_write2_b32 v29, v23, v7 offset0:0 offset1:32")
e("s_mov_b64 exec, -1")
vload(VP[0], VP[1])
w3(1)
e("s_waitcnt lgkmcnt(0)")
e("s_barrier")
vload(VP[1], VP[2])
w3(2)
def mlcomb():
    e("ds_read_b128 v[8:11], v24")
    e("ds_read_b128 v[12:15], v24 offset:16")
    e(f"ds_read_b128 v[{DD}:{DD+3}], v24 offset:128")
    e(f"ds_read_b128 v[{DD+4}:{DD+7}], v24 offset:144")
    e("s_waitcnt lgkmcnt(0)")
    e("v_max3_f32 v6, v8, v9, v10")
    e("v_max3_f32 v7, v11, v12, v13")
    e("v_max3_f32 v6, v6, v14, v15")
    e("v_max_f32 v6, v6, v7")
    for k in range(8): e(f"v_sub_f32 v{8+k}, v{8+k}, v6")
    for k in range(8): e(f"v_exp_f32 v{8+k}, v{8+k}")
    e(f"v_mul_f32 v7, v8, v{DD}")
    for k in range(1, 8): e(f"v_fmac_f32 v7, v{8+k}, v{DD+k}")
mlcomb()
e("v_sub_f32 v23, v23, v6")
e("v_rcp_f32 v8, v7")
e("v_exp_f32 v23, v23")
e(f"v_lshrrev_b32 v4, 2, v{vI}")
e("v_mul_f32 v23, v23, v8")
for k in range(8): e(f"v_mul_f32 v{S+k}, v23, v{S+k}")
for k in range(4): e(f"v_cvt_pk_bf16_f32 v{S+k}, v{S+2*k}, v{S+2*k+1}")
PM = DD + 20
for k in range(16): e(f"v_mov_b32 v{PM+k}, 0")
for cq in range(4):
    m = 0x000F000F << (4*cq)
    e(f"s_mov_b32 exec_lo, {m:#x}")
    e(f"s_mov_b32 exec_hi, {m:#x}")
    for k in range(0, 4, 2): e(f"v_pk_mov_b32 v[{PM+4*cq+k}:{PM+4*cq+k+1}], v[{S+k}:{S+k+1}], v[{S+k}:{S+k+1}] op_sel:[0,1]")
e("s_mov_b64 exec, -1")
e(f"v_mov_b32 v7, s{sTAG}")
ts(8)
vload(VP[2], 8)
WD = opt["wd"]
if not WD: w3(3)
e(f"s_cmp_lg_u32 s{sROLE}, 0")
for j in range(4):
    if WD == 2 and j == 3:
        w3(3); vwait(0, "L_vw3")
    elif E3 or WD: e(f"s_waitcnt vmcnt({6-2*j})")
    else: vwait(6-2*j, f"L_vw{j}")
    if j == 3: ts(9)
    for q in range(4):
        a, b = VR + 8*j + q, VR + 8*j + 4 + q
        e(f"v_perm_b32 v{TT+8*q+j}, v{b}, v{a}, s{sPL}")
        e(f"v_perm_b32 v{TT+8*q+4+j}, v{b}, v{a}, s{sPH}")
for cc in range(8): mfma(DD+4*(cc>>2), TT+4*cc, PM+4*(cc&3), None if (cc&3) == 0 else DD+4*(cc>>2))
e("s_nop 3")
e(f"ds_write_b128 v30, v[{DD}:{DD+3}]")
e("s_nop 2")
e(f"ds_write_b128 v30, v[{DD+4}:{DD+7}] offset:1024")
e("s_waitcnt lgkmcnt(0)")
e("s_barrier")
for k in range(4): e(f"ds_read2st64_b32 v[{8+2*k}:{9+2*k}], v31 offset0:{16*k} offset1:{16*k+8}")
e("s_waitcnt lgkmcnt(0)")
e("v_pk_add_f32 v[8:9], v[8:9], v[10:11]")
e("v_pk_add_f32 v[12:13], v[12:13], v[14:15]")
e("v_pk_add_f32 v[8:9], v[8:9], v[12:13]")
e("v_add_f32 v10, v8, v9")
e("v_add_f32 v11, v8, v9")
e("s_nop 1")
e("v_permlane16_swap_b32 v10, v11")
e("s_mov_b32 exec_lo, 0x0000FFFF")
e("s_mov_b32 exec_hi, 0x0000FFFF")
e("v_cvt_pk_bf16_f32 v6, v10, v11")
def ostoreB():
    e("s_mov_b32 exec_lo, 0x0000FFFF")
    e("s_mov_b32 exec_hi, 0x0000FFFF")
    e(f"global_store_dwordx2 v20, v[6:7], s[{sWS}:{sWS+1}] sc1")
    e("s_mov_b64 exec, -1")
if LOC: e(f"global_store_dwordx2 v20, v[6:7], s[{sWA}:{sWA+1}]")
else: e(f"global_store_dwordx2 v20, v[6:7], s[{sWS}:{sWS+1}] sc1")
e("s_mov_b64 exec, -1")
ts(10)
if WD == 1: w3(3)
def trread():
    for ks in range(4):
        for hh in range(2): e(f"ds_read_b64_tr_b16 v[{TT+4*ks+2*hh}:{TT+4*ks+2*hh+1}], v27 offset:{ks*8192+hh*1024}")
if E3: trread()
O = VR
e(f"s_cmp_lt_u32 s{sID}, 128")
e("s_cbranch_scc1 L_lo")
def lissue():
    for s_ in range(2): e(f"global_load_dwordx4 v[{O+4*s_}:{O+3+4*s_}], v57, s[{sP}:{sP+1}] offset:{s_*16} sc1")
def oissue(j):
    for s_ in range(4): e(f"global_load_dwordx2 v[{WR+8*j+2*s_}:{WR+8*j+2*s_+1}], v56, s[{sP}:{sP+1}] offset:{s_*512} sc1")
def ocont(j):
    R = WR+8*j
    for k in range(4):
        e(f"v_and_b32 v{R+2*k+1}, 0xffff0000, v{R+2*k}")
        e(f"v_lshlrev_b32 v{R+2*k}, 16, v{R+2*k}")
    e(f"v_pk_mul_f32 v[12:13], v[{R}:{R+1}], v[8:9] op_sel_hi:[1,0]")
    e(f"v_pk_mul_f32 v[14:15], v[{R+2}:{R+3}], v[8:9] op_sel:[0,1] op_sel_hi:[1,1]")
    e(f"v_pk_fma_f32 v[12:13], v[{R+4}:{R+5}], v[10:11], v[12:13] op_sel_hi:[1,0,1]")
    e(f"v_pk_fma_f32 v[14:15], v[{R+6}:{R+7}], v[10:11], v[14:15] op_sel:[0,1,0] op_sel_hi:[1,1,1]")
OD = opt["opipe"]
if opt["slse"]:
    PRE = 1
    oissue(0)
    e(f"s_lshl_b32 s{sT0}, s{sW}, 4")
    e(f"s_add_u32 s{sT0}, s{sT0}, {HB}")
    e(f"v_mov_b32 v4, s{sT0}")
    e("ds_read_b128 v[8:11], v4")
    e("s_waitcnt lgkmcnt(0)")
else:
    lab("L_lpoll")
    lissue()
    PRE = opt["opre"]
    if PRE: oissue(0)
    e(f"s_waitcnt vmcnt({4*PRE})")
    tagcheck([O+1+2*k for k in range(4)], 4, 5, "L_lpoll", "L_lp", opt["lsleep"], ostoreB)
    if LOC: e(f"s_mov_b64 s[{sP}:{sP+1}], s[{sWA}:{sWA+1}]")
    if not PRE: oissue(0); PRE = 1
    e(f"v_max3_f32 v4, v{O}, v{O+2}, v{O+4}")
    e(f"v_max_f32 v4, v4, v{O+6}")
    for k in range(4): e(f"v_sub_f32 v{8+k}, v{O+2*k}, v4")
    for k in range(4): e(f"v_exp_f32 v{8+k}, v{8+k}")
    e("s_nop 0")
    e("v_pk_add_f32 v[4:5], v[8:9], v[10:11]")
    e("v_add_f32 v4, v4, v5")
    e("v_rcp_f32 v4, v4")
    e("s_nop 0")
    for k in range(4): e(f"v_mul_f32 v{8+k}, v{8+k}, v4")
ppoll("L_op", OD, 4, oissue, lambda j: [WR+8*j+1+2*k for k in range(4)], ocont, opt["osleep"], PRE, ostoreB)
ts(11)
e("v_pk_add_f32 v[12:13], v[12:13], v[14:15]")
e("v_cvt_pk_bf16_f32 v12, v12, v13")
e("ds_write_b32 v58, v12")
if LOC: ostoreB()
e("s_waitcnt lgkmcnt(0)")
if not E3: lab("L_mf")
e("s_barrier")
if E3: lab("L_mf")
for ks in range(4): e(f"ds_read_b128 v[{DD+4*ks}:{DD+4*ks+3}], v28 offset:{ks*64}")
if not E3: trread()
e(f"v_mov_b32 v13, s{sTAG}")
e(f"v_mov_b32 v15, s{sTAG}")
for ks in range(4):
    e(f"s_waitcnt lgkmcnt({3-ks if E3 else 6-2*ks})")
    mfma(8, TT+4*ks, DD+4*ks, None if ks == 0 else 8)
e("s_nop 7")
e(f"v_cndmask_b32 v12, v8, v10, s[{sM2}:{sM2+1}]")
e(f"v_cndmask_b32 v14, v9, v11, s[{sM2}:{sM2+1}]")
e(f"global_store_dwordx4 v26, v[12:15], s[{sWS}:{sWS+1}] sc1")
e(f"s_cmp_lt_u32 s{sID}, 128")
e("s_cbranch_scc1 L_final")
ts(12)
if DIAG:
    e(f"s_cmp_lg_u32 s{sW}, 0")
    e("s_cbranch_scc1 L_end")
    dump_ts(0, 13)
e("s_endpgm")
lab("L_lo")
if LOC: ostoreB()
e(f"s_cmp_ge_u32 s{sID}, 56")
e("s_cbranch_scc1 L_final")
if not E3: e(f"s_waitcnt vmcnt({1 if WD == 1 else 1+(LOC>0)})")
e("s_branch L_mf")
lab("L_final")
e(f"s_cmp_lg_u32 s{sW}, 0")
e("s_cbranch_scc1 L_end")
e(f"s_lshl_b32 s{sT0}, s{sID}, 13")
e(f"s_add_u32 s{sT0}, s{sT0}, 4096")
e(f"v_lshl_add_u32 v16, v{vL}, 4, s{sT0}")
base(sB, sWS, WS_DP)
base(sB2, sWS, WS_SP)
e(f"s_lshl_b32 s{sT0}, s{sID}, 6")
e(f"v_lshl_add_u32 v17, v{vI}, 2, s{sT0}")
e(f"global_load_dword v18, v17, s[{sX}:{sX+1}]")
def fsum(R, n):
    e(f"v_add_f32 v8, v{R}, v{R+4}")
    e(f"v_add_f32 v9, v{R+2}, v{R+6}")
    e(f"v_add_f32 v10, v{R+8}, v{R+12}")
    e(f"v_add_f32 v11, v{R+10}, v{R+14}")
    for j in range(4, n):
        e(f"v_add_f32 v{8+2*(j&1)}, v{8+2*(j&1)}, v{R+4*j}")
        e(f"v_add_f32 v{9+2*(j&1)}, v{9+2*(j&1)}, v{R+4*j+2}")
def fred():
    e("v_pk_add_f32 v[8:9], v[8:9], v[10:11]")
    e("s_nop 1")
    e("v_permlane32_swap_b32 v8, v9")
    e("s_nop 0")
    e("v_add_f32 v8, v8, v9")
    e("v_mov_b32 v9, v8")
    e("s_nop 1")
    e("v_permlane16_swap_b32 v8, v9")
    e("s_nop 0")
    e("v_add_f32 v8, v8, v9")
    rbf(8)
e(f"v_mov_b32 v{DD+12}, 0")
e(f"v_mov_b32 v{DD+13}, s{sTAG}")
e(f"v_mov_b32 v{DD+14}, 0")
e(f"v_mov_b32 v{DD+15}, s{sTAG}")
if opt["fpre"]:
    c("cheap pre-wait: every workgroup has published its lse")
    e(f"v_lshlrev_b32 v6, 10, v{vG}")
    e(f"v_lshl_add_u32 v6, v{vI}, 4, v6")
    e(f"v_add_u32 v6, {WS_LSE + 4096}, v6")
    lab("L_fpoll")
    for u in range(2): e(f"global_load_dwordx4 v[{WR+4*u}:{WR+4*u+3}], v6, s[{sWS}:{sWS+1}] offset:{u*4096-4096} sc1")
    e("s_waitcnt vmcnt(0)")
    tagcheck([WR+1+2*k for k in range(4)], 4, 5, "L_fpoll", "L_fp", opt["fsleep"])
if opt["fdelay"]: e(f"s_sleep {opt['fdelay']}")
lab("L_dpoll")
for j in range(4):
    if j == 3: e("s_mov_b32 exec_hi, 0")
    e(f"global_load_dwordx4 v[{DD+4*j}:{DD+4*j+3}], v16, s[{sB}:{sB+1}] offset:{j*1024-4096} sc1")
e("s_mov_b32 exec_hi, -1")
def sissue(j):
    for k in range(8): e(f"global_load_dwordx4 v[{WR+32*j+4*k}:{WR+32*j+4*k+3}], v16, s[{sB2}:{sB2+1}] offset:{k*1024-4096} sc1")
if not opt["dsep"]: sissue(0)
e(f"s_waitcnt vmcnt({0 if opt['dsep'] else 8})")
tagcheck([DD+1+2*k for k in range(8)], 4, 5, "L_dpoll", "L_dp")
if opt["dsep"]: sissue(0)
SD = opt["spipe"]
fsum(DD, 4)
fred()
ts(11)
c("g = bf16(silu(d)); x half for this lane")
e("v_mul_f32 v10, 0xbfb8aa3b, v8")
e("v_exp_f32 v10, v10")
e("v_lshlrev_b32 v19, 16, v18")
e("v_add_f32 v10, 1.0, v10")
e("v_rcp_f32 v10, v10")
e("v_and_b32 v18, 0xffff0000, v18")
e("v_mul_f32 v20, v8, v10")
rbf(20)
e("s_mov_b32 exec_hi, 0")
e("v_mov_b32 v18, v19")
e("s_mov_b32 exec_hi, -1")
e(f"v_lshrrev_b32 v4, 5, v{vL}")
e("v_lshl_add_u32 v17, v4, 1, v17")
ppoll("L_sp", SD, 8, sissue, lambda j: [WR+32*j+1+2*k for k in range(16)], lambda j: fsum(WR+32*j, 8), opt["ssleep"], 1)
fred()
e("v_mul_f32 v8, v8, v20")
rbf(8)
e("v_add_f32 v8, v8, v18")
e("v_cvt_pk_bf16_f32 v8, v8, v8")
e("s_mov_b32 exec_lo, 0xffff")
e("s_mov_b32 exec_hi, 0xffff")
e(f"global_store_short v17, v8, s[{sOUT}:{sOUT+1}]" + ["", " sc1", " sc0 sc1", " nt"][opt.get("osc", 0)])
ts(12)
e(f"s_cmp_lg_u32 s{sID}, 0")
e("s_cbranch_scc1 L_fin2")
e("s_mov_b64 exec, 1")
e("v_mov_b32 v4, 0")
e(f"v_mov_b32 v5, s{sTAG}")
e(f"global_store_dword v4, v5, s[{sWS}:{sWS+1}]" + ["", " sc1", " sc0 sc1", " nt"][opt.get("osc", 0)])
lab("L_fin2")
dump_ts(0, 13)
lab("L_end")
e("s_endpgm")
lab("L_service")
if opt["prio"]: e(f"s_setprio {opt['prio']}")
e("v_mov_b32 v8, 0")
e(f"v_and_b32 v4, 31, v{vL}")
e("v_lshlrev_b32 v4, 2, v4")
e(f"v_add_u32 v4, {ZB}, v4")
e("ds_write_b32 v4, v8")
locinit()
if LOC > 1:
    c("bring the lines of the local o / lse copies of this head into L2")
    e(f"s_cmp_lt_u32 s{sID}, 128")
    e("s_cbranch_scc1 L_nopt")
    e(f"s_lshl_b32 s{sT0}, s{sU_}, 12")
    e(f"s_add_u32 s{sT0}, s{sT0}, {WS_OP}")
    e(f"v_lshl_add_u32 v5, v{vL}, 6, s{sT0}")
    e(f"global_load_dword v6, v5, s[{sWA}:{sWA+1}]")
    e(f"s_lshl_b32 s{sT0}, s{sU_}, 6")
    e(f"s_add_u32 s{sT0}, s{sT0}, {WS_LSE}")
    e(f"v_mov_b32 v5, s{sT0}")
    e(f"global_load_dword v7, v5, s[{sWA}:{sWA+1}]")
    lab("L_nopt")
c("q source: Y + b*YROW + hkv*2048 + lane*16 (+1024)")
e(f"s_lshr_b32 s{sT0}, s{sA}, 5")
e(f"s_mul_i32 s{sT0}, s{sT0}, {YROW}")
e(f"s_bfe_u32 s{sT1}, s{sA}, 0x30002")
e(f"s_lshl_b32 s{sT1}, s{sT1}, 11")
e(f"s_add_u32 s{sT0}, s{sT0}, s{sT1}")
e(f"s_add_u32 s{sT0}, s{sT0}, {WS_Y}")
e(f"v_lshl_add_u32 v16, v{vL}, 4, s{sT0}")
base(sB, sWA, f"s{sT0}")
if opt["qpt"]:
    for u in range(2): e(f"global_load_dwordx4 v[{WR+4*u}:{WR+4*u+3}], v16, s[{sWA}:{sWA+1}] offset:{u*1024}")
e(f"v_lshrrev_b32 v4, 5, v{vL}")
e("v_mul_u32_u24 v17, 272, v4")
e(f"v_and_b32 v4, 31, v{vL}")
e("v_lshl_add_u32 v17, v4, 3, v17")
e(f"v_add_u32 v17, {QB}, v17")
c("h source v26..v29, h dest v20")
e(f"s_lshr_b32 s{sT0}, s{sU_}, 2")
e(f"s_lshl_b32 s{sT0}, s{sT0}, 9")
e(f"s_add_u32 s{sT0}, s{sT0}, {WS_Y + 16384 + 3584}")
e(f"v_lshrrev_b32 v5, 5, v{vL}")
e(f"v_mul_u32_u24 v26, {YROW}, v5")
e(f"v_lshl_add_u32 v26, v4, 4, v26")
e(f"v_add_u32 v26, s{sT0}, v26")
for j in range(1, 4): e(f"v_add_u32 v{26+j}, {2*j*YROW}, v26")
e(f"v_add_u32 v20, {OB - QB}, v17")
c("slab read v21, Y publish v22, ml read v24, lse publish v25")
e(f"v_lshlrev_b32 v21, 4, v{vL}")
e(f"v_add_u32 v21, {P1S}, v21")
e(f"v_and_b32 v4, 7, v{vI}")
e(f"v_mul_u32_u24 v22, {YROW}, v4")
e(f"v_lshrrev_b32 v4, 3, v{vI}")
e("v_lshl_add_u32 v22, v4, 6, v22")
e(f"v_lshl_add_u32 v22, v{vG}, 4, v22")
e(f"s_lshl_b32 s{sT0}, s{sTILE}, 7")
e(f"s_add_u32 s{sT0}, s{sT0}, {WS_Y}")
e(f"v_add_u32 v22, s{sT0}, v22")
e(f"v_and_b32 v4, 3, v{vI}")
e("v_lshlrev_b32 v24, 5, v4")
e(f"v_add_u32 v24, {MB}, v24")
e(f"s_bfe_u32 s{sT0}, s{sA}, 0x30002")
e(f"s_lshl_b32 s{sT0}, s{sT0}, 10")
e(f"s_and_b32 s{sT1}, s{sID}, 0xe0")
e(f"s_add_u32 s{sT0}, s{sT0}, s{sT1}")
e(f"s_and_b32 s{sT1}, s{sA}, 3")
e(f"s_lshl_b32 s{sT1}, s{sT1}, 3")
e(f"s_add_u32 s{sT0}, s{sT0}, s{sT1}")
e(f"s_add_u32 s{sT0}, s{sT0}, {WS_LSE}")
e(f"v_lshl_add_u32 v25, v4, 8, s{sT0}")
e("s_waitcnt lgkmcnt(0)")
tagfix()
e(f"v_mov_b32 v13, s{sTAG}")
e(f"v_mov_b32 v15, s{sTAG}")
e(f"s_cmp_ge_u32 s{sID}, 240")
e("s_cbranch_scc1 L_sv1")
e("s_barrier")
e("s_barrier")
for p in range(8): e(f"ds_read_b128 v[{TT+4*p}:{TT+4*p+3}], v21 offset:{p*1024}")
for p in range(4):
    e(f"s_waitcnt lgkmcnt({3-p})")
    for k in (0, 2): e(f"v_pk_add_f32 v[{TT+4*p+k}:{TT+4*p+k+1}], v[{TT+4*p+k}:{TT+4*p+k+1}], v[{TT+16+4*p+k}:{TT+16+4*p+k+1}]")
for p in range(2):
    for k in (0, 2): e(f"v_pk_add_f32 v[{TT+4*p+k}:{TT+4*p+k+1}], v[{TT+4*p+k}:{TT+4*p+k+1}], v[{TT+8+4*p+k}:{TT+8+4*p+k+1}]")
for k in (0, 2): e(f"v_pk_add_f32 v[{TT+k}:{TT+k+1}], v[{TT+k}:{TT+k+1}], v[{TT+4+k}:{TT+4+k+1}]")
e(f"v_cvt_pk_bf16_f32 v12, v{TT}, v{TT+1}")
e(f"v_cvt_pk_bf16_f32 v14, v{TT+2}, v{TT+3}")
QL = LOC and opt["qloc"]
if QL: e(f"global_store_dwordx4 v22, v[12:15], s[{sWA}:{sWA+1}]")
e(f"global_store_dwordx4 v22, v[12:15], s[{sWS}:{sWS+1}] sc1")
if opt.get("b2b"): e("s_barrier")
lab("L_sv1")
ts(2)
D = opt["qpipe"]
def qissue(j):
    for u in range(2): e(f"global_load_dwordx4 v[{WR+8*j+4*u}:{WR+8*j+4*u+3}], v16, s[{sP if QL else sWS}:{(sP if QL else sWS)+1}] offset:{u*1024} sc1")
def qwrite(j):
    e(f"ds_write2_b32 v17, v{WR+8*j}, v{WR+8*j+2} offset0:0 offset1:1")
    e(f"ds_write2_b32 v17, v{WR+8*j+4}, v{WR+8*j+6} offset0:136 offset1:137")
if opt["qdelay"]: e(f"s_sleep {opt['qdelay']}")
if opt["sq"]:
    c("scalar pre-wait: one tag of each of the 16 producers")
    e(f"s_mov_b32 s{sT2}, 40")
    lab("L_sq")
    for p in range(16): e(f"s_load_dword s{4+p}, s[{sB}:{sB+1}], {128*p+4} glc")
    e("s_waitcnt lgkmcnt(0)")
    e(f"s_xor_b32 s{sT0}, s4, s{sTAG}")
    for p in range(1, 16):
        e(f"s_xor_b32 s{sT1}, s{4+p}, s{sTAG}")
        e(f"s_or_b32 s{sT0}, s{sT0}, s{sT1}")
    e("s_cbranch_scc0 L_sqok")
    e(f"s_sub_u32 s{sT2}, s{sT2}, 1")
    if opt["sq"] > 1: e(f"s_sleep {opt['sq']}")
    e(f"s_cmp_gt_i32 s{sT2}, 0")
    e("s_cbranch_scc1 L_sq")
    lab("L_sqok")
    ts(1)
if opt["hold"]:
    qissue(0)
    e("s_barrier")
ppoll("L_qp", D, 2, qissue, lambda j: [WR+8*j+1+2*k for k in range(4)], qwrite, opt["qsleep"], opt["hold"], True)
ts(4)
def hissue():
    for u in range(4):
        e(f"global_load_dwordx4 v[{VR+8*u}:{VR+8*u+3}], v{26+u}, s[{sWS}:{sWS+1}] offset:-3584 sc1")
        e(f"global_load_dwordx4 v[{VR+8*u+4}:{VR+8*u+7}], v{26+u}, s[{sWS}:{sWS+1}] offset:3584 sc1")
e("s_waitcnt lgkmcnt(0)")
e("s_barrier")
e(f"s_cmp_ge_u32 s{sID}, 56")
e("s_cbranch_scc1 L_sv2")
hissue()
lab("L_sv2")
if opt["slse"]:
    c("split weights of this head: lanes 0..31 = (b, split)")
    e(f"s_mov_b64 s[{sP}:{sP+1}], s[{sWA}:{sWA+1}]")
    e(f"s_lshr_b32 s{sT0}, s{sU_}, 2")
    e(f"s_lshl_b32 s{sT0}, s{sT0}, 8")
    e(f"s_add_u32 s{sT0}, s{sT0}, {WS_LSE}")
    e(f"v_and_b32 v6, 31, v{vL}")
    e(f"v_lshl_add_u32 v16, v6, 3, s{sT0}")
    e(f"v_lshlrev_b32 v17, 2, v6")
    e(f"v_add_u32 v17, {HB}, v17")
e("s_barrier")
mlcomb()
e("v_log_f32 v7, v7")
e(f"v_mov_b32 v9, s{sTAG}")
e("v_add_f32 v8, v6, v7")
e("s_mov_b64 exec, 15")
if LOC: e(f"global_store_dwordx2 v25, v[8:9], s[{sWA}:{sWA+1}]")
if opt["slse"]:
    e(f"s_cmp_lt_u32 s{sID}, 128")
    e("s_cbranch_scc1 L_sv6")
    e("s_mov_b64 exec, -1")
    e(f"global_load_dwordx2 v[12:13], v16, s[{sP}:{sP+1}] sc1")
    e("s_mov_b64 exec, 15")
    lab("L_sv6")
e(f"global_store_dwordx2 v25, v[8:9], s[{sWS}:{sWS+1}] sc1")
e("s_mov_b64 exec, -1")
ts(3)
if opt["slse"]:
    e(f"s_cmp_lt_u32 s{sID}, 128")
    e("s_cbranch_scc1 L_sv4")
    e("s_waitcnt vmcnt(1)")
    e("s_branch L_slc")
    lab("L_slp")
    e(f"global_load_dwordx2 v[12:13], v16, s[{sP}:{sP+1}] sc1")
    e("s_waitcnt vmcnt(0)")
    lab("L_slc")
    tagcheck([13, 13], 4, 5, "L_slp", "L_sl", opt["lsleep"], True)
    e("v_mov_b32 v10, v12")
    for m in ["quad_perm:[1,0,3,2]", "quad_perm:[2,3,0,1]"]:
        e("s_nop 1")
        e(f"v_max_f32_dpp v10, v10, v10 {m} row_mask:0xf bank_mask:0xf")
    e("v_sub_f32 v8, v12, v10")
    e("v_exp_f32 v8, v8")
    e("s_nop 0")
    e("v_mov_b32 v10, v8")
    for m in ["quad_perm:[1,0,3,2]", "quad_perm:[2,3,0,1]"]:
        e("s_nop 1")
        e(f"v_add_f32_dpp v10, v10, v10 {m} row_mask:0xf bank_mask:0xf")
    e("v_rcp_f32 v10, v10")
    e("s_nop 0")
    e("v_mul_f32 v8, v8, v10")
    e("ds_write_b32 v17, v8")
    e("s_branch L_sv5")
    lab("L_sv4")
e(f"s_cmp_ge_u32 s{sID}, 56")
e("s_cbranch_scc1 L_sv3")
e(f"s_waitcnt vmcnt({1+(LOC>0)})")
e("s_branch L_hchk")
lab("L_hpoll")
hissue()
e("s_waitcnt vmcnt(0)")
lab("L_hchk")
tagcheck([VR+1+2*k for k in range(16)], 4, 5, "L_hpoll", "L_hp")
for u in range(4):
    for k in range(2):
        g_, u_ = VR+8*u+2*k, VR+8*u+4+2*k
        e(f"v_lshlrev_b32 v4, 16, v{g_}")
        e(f"v_and_b32 v5, 0xffff0000, v{g_}")
        e(f"v_lshlrev_b32 v6, 16, v{u_}")
        e(f"v_and_b32 v7, 0xffff0000, v{u_}")
        e("v_max_f32 v4, 0, v4")
        e("v_max_f32 v5, 0, v5")
        e("v_mul_f32 v4, v4, v6")
        e("v_mul_f32 v5, v5, v7")
        e(f"v_cvt_pk_bf16_f32 v{8+2*u+k}, v4, v5")
for u in range(4): e(f"ds_write_b64 v20, v[{8+2*u}:{9+2*u}] offset:{u*544}")
lab("L_sv5")
ts(5)
e("s_waitcnt lgkmcnt(0)")
e("s_barrier")
lab("L_sv3")
if DIAG:
    e(f"s_mov_b32 s{sTS+12}, s{sCNT}")
    dump_ts(1, 7)
e("s_endpgm")

hdr = open("cdna_kernels/%s.s.ref" % NAME).read().split("; Override launch")[0]
out = hdr + f"; @launch grid=(256,1,1) block=(576,1,1) lds={LDS}\n"
out += f""".amdgcn_target "amdgcn-amd-amdhsa--gfx950"
.text
.globl {NAME}_kernel
.p2align 8
.type {NAME}_kernel,@function
{NAME}_kernel:
""" + "\n".join(L) + f"""
.section .rodata,"a"
.p2align 6
.amdhsa_kernel {NAME}_kernel
  .amdhsa_next_free_vgpr 164
  .amdhsa_next_free_sgpr 96
  .amdhsa_accum_offset 164
  .amdhsa_group_segment_fixed_size 0
  .amdhsa_kernarg_size 96
  .amdhsa_user_sgpr_count 2
  .amdhsa_user_sgpr_kernarg_segment_ptr 1
  .amdhsa_system_sgpr_workgroup_id_x 1
.end_amdhsa_kernel
"""
open(sys.argv[1], "w").write(out)
```

```python
import sys
NAME = "recurrent_scan__sliding_block_cached__glu_gated_reglu__decode"
opt = dict(diag=0, nt=1, spin=5000, sleep=4, prio=3, th=63, qpipe=1, qsleep=4, k1=4, b2b=1, opipe=1, osleep=1, spipe=1, ssleep=4, kprio=2, vs=5, va=8, vb=8, vc=8, wa=0, wb=0, wc=0, rot=3, opre=0, fpre=1, fsleep=8, lsleep=1, sq=0, qdelay=36, e3=0, loc=1, lm=15, qloc=1, qpt=0, slse=0, wd=0, fdelay=0, dsep=0, hold=1, v0=2, w1nt=0, w3nt=0, knt=255, vnt=255)
for a in sys.argv[2:]:
    k, v = a.split("="); opt[k] = int(v)
DIAG = opt["diag"]; NT = ["", " nt", " sc1 nt", " sc0 sc1 nt", " sc1"][opt["nt"]]
L = []
def e(s): L.append("    " + s)
def lab(s): L.append(s + ":")
def c(s): L.append("    ; " + s)
WS_Y, WS_LSE, WS_OP, WS_SP, WS_DP, WS_DIAG = 0x1000, 0x40000, 0x50000, 0x100000, 0x200000, 0x400000
YROW = 30720
W1 = 65536; SLAB = W1; SLAB2 = W1 + 16384; P1S = W1 + 32768; XN = P1S + 8192; QB = XN + 8320; HB = QB + 1088; OB = HB + 2176
MB = OB + 2176; LB = MB + 128; ZB = LB + 128; W3 = (ZB + 128 + 1023) & ~1023; LDS = W3 + 32768
sX, sK, sV, sWQ, sWO, sG, sU, sD, sOUT, sWS = 4, 6, 8, 10, 12, 16, 18, 20, 22, 26
sID, sW, sTAG, sROLE = 28, 29, 30, 31
sB = 32
sB2 = 34
sSTR, sT0, sT1, sT2, sCNT = 36, 37, 38, 39, 40
sPL, sPH = 41, 42
sM = 44
sM2 = 46
sU_ = 48
sWA, sP = 54, 56
sTS = 64
vL, vG, vI = 1, 2, 3
WR, VR, TT, DD = 32, 64, 96, 128
nts = [0]
def ts(k):
    if DIAG: e(f"s_memrealtime s[{sTS+2*k}:{sTS+2*k+1}]")
def dump_ts(slot, n):
    if not DIAG: return
    e("s_waitcnt lgkmcnt(0)")
    if DIAG == 3:
        if slot: return
        nts[0] += 1
        e(f"s_cmp_lg_u32 s{sID}, {opt.get('swg', 0)}")
        e("s_cbranch_scc1 L_end")
        e(f"s_sub_u32 s{sT0}, s{sTS+2*opt['sk']}, s{sTS}")
        e(f"s_mul_i32 s{sT0}, s{sT0}, 10")
        e(f"s_add_u32 s{sT0}, s{sT0}, 3000")
        e(f"s_min_u32 s{sT0}, s{sT0}, 40000")
        lab(f"L_spin{nts[0]}")
        e("s_memrealtime s[4:5]")
        e("s_waitcnt lgkmcnt(0)")
        e(f"s_sub_u32 s4, s4, s{sTS}")
        e(f"s_cmp_lt_u32 s4, s{sT0}")
        e(f"s_cbranch_scc1 L_spin{nts[0]}")
        return
    if DIAG == 2:
        if slot: return
        e("s_mov_b64 exec, 1")
        e("v_mov_b32 v4, 0")
        e(f"s_not_b32 s{sT0}, s{sTS}")
        e(f"v_mov_b32 v5, s{sT0}")
        e("global_atomic_umax v4, v5, s[24:25] sc1")
        for k in range(n):
            e(f"v_mov_b32 v5, s{sTS+2*k}")
            e(f"s_cmp_lt_u32 s{sID}, 240")
            e(f"s_cbranch_scc0 L_dd{nts[0]}_{k}")
            e(f"global_atomic_umax v4, v5, s[24:25] offset:{4*k+4} sc1")
            lab(f"L_dd{nts[0]}_{k}")
        nts[0] += 1
        return
    e(f"s_lshl_b32 s{sT0}, s{sID}, 8")
    e(f"s_add_u32 s{sT0}, s{sT0}, {WS_DIAG + slot*64}")
    e(f"v_mov_b32 v4, s{sT0}")
    e("s_mov_b64 exec, 1")
    for k in range(n):
        e(f"v_mov_b32 v5, s{sTS+2*k}")
        e(f"global_store_dword v4, v5, s[{sWS}:{sWS+1}] offset:{4*k}")
    e("s_getreg_b32 s37, hwreg(HW_REG_XCC_ID)")
    e("v_mov_b32 v5, s37")
    e(f"global_store_dword v4, v5, s[{sWS}:{sWS+1}] offset:60")
    e("s_getreg_b32 s37, hwreg(HW_REG_HW_ID)")
    e("v_mov_b32 v5, s37")
    e(f"global_store_dword v4, v5, s[{sWS}:{sWS+1}] offset:56")
def base(dst, src, off):
    e(f"s_add_u32 s{dst}, s{src}, {off}")
    e(f"s_addc_u32 s{dst+1}, s{src+1}, 0")
def transpose(src, dst):
    for q in range(4):
        for j in range(4):
            a, b = src + 8*j + q, src + 8*j + 4 + q
            e(f"v_perm_b32 v{dst+8*q+j}, v{b}, v{a}, s{sPL}")
            e(f"v_perm_b32 v{dst+8*q+4+j}, v{b}, v{a}, s{sPH}")
def mfma(d, a, b, cc):
    cs = "0" if cc is None else f"v[{cc}:{cc+3}]"
    e(f"v_mfma_f32_16x16x32_bf16 v[{d}:{d+3}], v[{a}:{a+3}], v[{b}:{b+3}], {cs}")
def xlane(op, v, t, full=False):
    if full:
        for m in ["quad_perm:[1,0,3,2]", "quad_perm:[2,3,0,1]", "row_half_mirror", "row_mirror"]:
            e("s_nop 1")
            e(f"{op}_dpp v{v}, v{v}, v{v} {m} row_mask:0xf bank_mask:0xf")
    for sw in ["v_permlane16_swap_b32", "v_permlane32_swap_b32"]:
        e(f"v_mov_b32 v{t}, v{v}")
        e("s_nop 1")
        e(f"{sw} v{v}, v{t}")
        e("s_nop 0")
        e(f"{op} v{v}, v{v}, v{t}")
def rbf(v):
    e(f"v_cvt_pk_bf16_f32 v{v}, v{v}, v{v}")
    e(f"v_and_b32 v{v}, 0xffff0000, v{v}")
def locinit():
    base(sWA, sWS, 0x300000 if opt["loc"] else 0)
    e(f"s_mov_b64 s[{sP}:{sP+1}], s[{sWA}:{sWA+1}]")
def locsel(f):
    if not opt["loc"]: return
    e(f"s_and_b32 s{sT0}, s{sCNT}, {opt['lm']}")
    e(f"s_cselect_b64 s[{sP}:{sP+1}], s[{sWA}:{sWA+1}], s[{sWS}:{sWS+1}]")
    if f is not True:
        nts[0] += 1
        e(f"s_cbranch_scc1 L_ls{nts[0]}")
        f()
        lab(f"L_ls{nts[0]}")
def tagcheck(regs, t0, t1, lfail_loop, name, sl=None, loc=False):
    sl = opt["sleep"] if sl is None else sl
    e(f"v_min3_u32 v{t0}, v{regs[0]}, v{regs[1]}, v{regs[1]}")
    e(f"v_max3_u32 v{t1}, v{regs[0]}, v{regs[1]}, v{regs[1]}")
    for k in range(2, len(regs), 2):
        e(f"v_min3_u32 v{t0}, v{t0}, v{regs[k]}, v{regs[k+1]}")
        e(f"v_max3_u32 v{t1}, v{t1}, v{regs[k]}, v{regs[k+1]}")
    e(f"v_cmp_ne_u32 vcc, s{sTAG}, v{t0}")
    e(f"v_cmp_ne_u32 s[{sM}:{sM+1}], s{sTAG}, v{t1}")
    e(f"s_or_b64 vcc, vcc, s[{sM}:{sM+1}]")
    e(f"s_cbranch_scc0 {name}_ok")
    e(f"s_sub_u32 s{sCNT}, s{sCNT}, 1")
    if loc: locsel(loc)
    if sl: e(f"s_sleep {sl}")
    e(f"s_cmp_gt_i32 s{sCNT}, 0")
    e(f"s_cbranch_scc1 {lfail_loop}")
    lab(f"{name}_ok")
def tagcmp(regs, okl):
    e(f"v_min_u32 v4, v{regs[0]}, v{regs[1]}")
    e(f"v_max_u32 v5, v{regs[0]}, v{regs[1]}")
    for k in range(2, len(regs), 2):
        e(f"v_min3_u32 v4, v4, v{regs[k]}, v{regs[k+1]}")
        e(f"v_max3_u32 v5, v5, v{regs[k]}, v{regs[k+1]}")
    e(f"v_cmp_ne_u32 vcc, s{sTAG}, v4")
    e(f"v_cmp_ne_u32 s[{sM}:{sM+1}], s{sTAG}, v5")
    e(f"s_or_b64 vcc, vcc, s[{sM}:{sM+1}]")
    e(f"s_cbranch_scc0 {okl}")
def ppoll(name, D, n, issue, tags, cont, sl, pre=0, loc=False):
    if pre == D: e(f"s_branch {name}_in")
    for j in range(pre, D-1):
        issue(j)
        if sl: e(f"s_sleep {sl}")
    lab(name)
    for j in range(D):
        issue((j+D-1) % D)
        if j == 0 and pre == D: lab(f"{name}_in")
        e(f"s_waitcnt vmcnt({n*(D-1)})")
        tagcmp(tags(j), f"{name}_{j}")
        if sl: e(f"s_sleep {sl}")
    e(f"s_sub_u32 s{sCNT}, s{sCNT}, 1")
    if loc: locsel(loc)
    e(f"s_cmp_gt_i32 s{sCNT}, 0")
    e(f"s_cbranch_scc1 {name}")
    for j in range(D-1, -1, -1):
        lab(f"{name}_{j}")
        cont(j)
        if j: e(f"s_branch {name}_done")
    lab(f"{name}_done")
TH = opt["th"]; K1 = opt["k1"]
def thr():
    if TH < 63: e(f"s_waitcnt vmcnt({TH-1})")
def tagfix():
    e(f"s_mul_i32 s{sTAG}, s{sTAG}, 0x9E3779B1")
    e(f"s_add_u32 s{sTAG}, s{sTAG}, 0x7F4A7C15")
def kdma(lo, hi):
    for jj in range(lo, hi):
        if jj == 4:
            e(f"s_add_u32 s{sT2}, s{sKM}, 4096")
            e(f"s_mov_b32 m0, s{sT2}")
            for q in range(4): e(f"v_xor_b32 v{16+q}, 0x1000, v{16+q}")
        if lo and opt.get("thk"): thr()
        e(f"global_load_lds_dwordx4 v{16+(jj&3)}, s[{sK}:{sK+1}] offset:{(jj&3)*1024}" + (NT if (opt["knt"] >> jj) & 1 else ""))
sKM, sTILE, sHB, sA = 49, 50, 51, 52
LOC = opt["loc"]
sSP = 53; E3 = opt["e3"]
WP = [0, opt["wa"], opt["wb"], opt["wc"], 4]
def w3(p):
    if WP[p] == WP[p+1]: return
    e(f"s_cmp_lg_u32 s{sROLE}, 0")
    e(f"s_cbranch_scc0 L_now3{p}")
    for jj in range(WP[p], WP[p+1]):
        e(f"global_load_lds_dwordx4 v25, s[{sB2}:{sB2+1}] offset:{jj*1024}" + ["", " nt"][opt["w3nt"]])
        if jj < 3: e(f"v_add_u32 v25, 3072, v25")
        if jj == 1: e("v_xor_b32 v25, 0x80, v25")
    lab(f"L_now3{p}")
def w3addr():
    c("phase-3 role: wo (id>=128) or down (id<56); W3 dma base sB2, voff v25; tr addr v27; operand addr v28; publish v26")
    e(f"s_sub_u32 s{sT1}, s{sID}, 56")
    e(f"s_cmp_lt_u32 s{sT1}, 72")
    e(f"s_cselect_b32 s{sROLE}, 0, 1")
    e(f"s_cmp_lt_u32 s{sID}, 128")
    e(f"s_cselect_b64 s[{sB2}:{sB2+1}], s[{sD}:{sD+1}], s[{sWO}:{sWO+1}]")
    e(f"s_mov_b32 s{sSP}, {WS_SP}")
    e(f"s_cselect_b32 s{sSP}, {WS_DP}, s{sSP}")
    e(f"s_lshr_b32 s{sT1}, s{sU_}, 2")
    e(f"s_lshl_b32 s{sT0}, s{sT1}, 17")
    e(f"s_lshl_b32 s{sT1}, s{sT1}, 8")
    e(f"s_add_u32 s{sSP}, s{sSP}, s{sT1}")
    e(f"s_lshl_b32 s{sT1}, s{sW}, 14")
    e(f"s_add_u32 s{sT0}, s{sT0}, s{sT1}")
    e(f"s_and_b32 s{sT1}, s{sU_}, 3")
    e(f"s_lshl_b32 s{sT2}, s{sT1}, 8")
    e(f"s_add_u32 s{sT0}, s{sT0}, s{sT2}")
    base(sB2, sB2, f"s{sT0}")
    e(f"v_lshlrev_b32 v4, 1, v{vG}")
    e(f"v_xor_b32 v4, v4, v{vI}")
    e("v_lshlrev_b32 v4, 4, v4")
    e(f"v_lshl_add_u32 v25, v{vG}, 10, v4")
    e(f"s_lshl_b32 s{sT2}, s{sW}, 12")
    e(f"s_add_u32 s{sT2}, s{sT2}, {W3}")
    e(f"s_mov_b32 m0, s{sT2}")
def vwait(n, nm):
    e(f"s_cbranch_scc1 {nm}")
    e(f"s_waitcnt vmcnt({n})")
    lab(nm)
    e(f"s_waitcnt vmcnt({n+4})")
e("s_load_dwordx16 s[4:19], s[0:1], 0")
e("s_load_dwordx8 s[20:27], s[0:1], 64")
ts(0)
e("s_cmp_ge_u32 s2, 256")
e("s_cbranch_scc1 L_end")
e(f"s_mov_b32 s{sID}, s2")
e("v_lshrrev_b32 v4, 6, v0")
e(f"v_and_b32 v{vL}, 63, v0")
e(f"v_readfirstlane_b32 s{sW}, v4")
e(f"v_bfe_u32 v{vG}, v0, 4, 2")
e(f"v_and_b32 v{vI}, 15, v0")
e(f"s_mov_b32 s{sCNT}, {opt['spin']}")
c("phase-1 tile T = (id&~15) | (id&7)<<1 | (id>>3)&1")
e(f"s_and_b32 s{sT0}, s{sID}, 7")
e(f"s_lshl_b32 s{sT0}, s{sT0}, 1")
e(f"s_bfe_u32 s{sT1}, s{sID}, 0x10003")
e(f"s_or_b32 s{sT0}, s{sT0}, s{sT1}")
e(f"s_and_b32 s{sT1}, s{sID}, 0xf0")
e(f"s_or_b32 s{sTILE}, s{sT0}, s{sT1}")
c("X = (id&7)<<4 | (id>>3)&15 : q tile (id<128) or wo unit (id>=128); attention id A = b<<5 | (id&7)<<2 | (id>>3)&3")
e(f"s_and_b32 s{sT0}, s{sID}, 7")
e(f"s_bfe_u32 s{sT1}, s{sID}, 0x40003")
e(f"s_lshl4_add_u32 s{sT2}, s{sT0}, s{sT1}")
e(f"s_and_b32 s{sT1}, s{sT1}, 3")
e(f"s_lshl2_add_u32 s{sT0}, s{sT0}, s{sT1}")
e(f"s_and_b32 s{sT1}, s{sID}, 0xe0")
e(f"s_or_b32 s{sA}, s{sT0}, s{sT1}")
e(f"s_cmp_lt_u32 s{sID}, 128")
if opt["qloc"]: e(f"s_cselect_b32 s{sTILE}, s{sT2}, s{sTILE}")
e(f"s_cselect_b32 s{sU_}, s{sID}, s{sT2}")
e(f"s_movk_i32 s{sSTR}, 3584")
e(f"s_cmp_lt_u32 s{sID}, 128")
e(f"s_cselect_b32 s{sSTR}, 8192, s{sSTR}")
e(f"v_lshrrev_b32 v4, 2, v{vL}")
e(f"v_mul_u32_u24 v12, s{sSTR}, v4")
e(f"v_and_b32 v4, 3, v{vL}")
e("v_lshl_add_u32 v12, v4, 4, v12")
e(f"s_lshl_b32 s{sT0}, s{sW}, 10")
e(f"v_lshl_add_u32 v13, v{vL}, 4, s{sT0}")
e(f"s_lshl_b32 s{sKM}, s{sW}, 13")
e(f"s_lshl_b32 s{sT2}, s{sW}, 12")
e(f"s_add_u32 s{sT2}, s{sT2}, {W1}")
e(f"s_mov_b32 m0, s{sT2}")
e(f"s_lshl_b32 s{sT1}, s{sW}, 6")
e(f"s_mul_i32 s{sT1}, s{sT1}, s{sSTR}")
e(f"s_cmp_lt_u32 s{sTILE}, 184")
e(f"s_cselect_b32 s{sT0}, 0, 56")
e(f"s_and_b32 s{sT2}, s{sTILE}, 127")
e(f"s_sub_u32 s{sT0}, s{sT2}, s{sT0}")
e(f"s_lshl_b32 s{sT0}, s{sT0}, 6")
e(f"s_add_u32 s{sT1}, s{sT1}, s{sT0}")
e(f"s_lshl_b32 s{sT2}, s{sSTR}, 4")
e(f"s_sub_u32 s{sT2}, s{sT2}, 1024")
e("s_waitcnt lgkmcnt(0)")
ts(1)
e(f"s_load_dword s{sTAG}, s[{sWS}:{sWS+1}], 0")
e(f"s_cmp_eq_u32 s{sW}, 8")
e("s_cbranch_scc1 L_service")
e(f"s_cmp_ge_u32 s{sID}, 240")
e("s_cbranch_scc1 L_now1")
if opt.get("wprio"): e("s_setprio 2")
e(f"global_load_dwordx4 v[8:11], v13, s[{sX}:{sX+1}]")
e(f"s_cmp_lt_u32 s{sTILE}, 184")
e(f"s_cselect_b64 s[{sB}:{sB+1}], s[{sG}:{sG+1}], s[{sU}:{sU+1}]")
e(f"s_cmp_lt_u32 s{sID}, 128")
e(f"s_cselect_b64 s[{sB}:{sB+1}], s[{sWQ}:{sWQ+1}], s[{sB}:{sB+1}]")
base(sB, sB, f"s{sT1}")
for jj in range(4):
    e(f"global_load_lds_dwordx4 v12, s[{sB}:{sB+1}] offset:{jj*1024}" + ["", " nt", " sc1", " sc0 sc1", " sc1 nt", " sc0"][opt["w1nt"]])
    if jj < 3: e(f"v_add_u32 v12, s{sT2}, v12")
lab("L_now1")
if E3 == 2:
    if opt.get("wprio"): e("s_setprio 0")
    w3addr(); WP = [0, 4, 4, 4, 4]; w3(0); WP = [4]*5
c("KV slice offset: (id>>2)<<20 + 786432 + (id&3)<<16 + wave<<13")
e(f"s_lshr_b32 s{sT0}, s{sA}, 2")
e(f"s_lshl_b32 s{sT0}, s{sT0}, 20")
e(f"s_and_b32 s{sT1}, s{sA}, 3")
e(f"s_lshl_b32 s{sT1}, s{sT1}, 16")
e(f"s_add_u32 s{sT0}, s{sT0}, s{sT1}")
e(f"s_add_u32 s{sT0}, s{sT0}, 786432")
base(sK, sK, f"s{sT0}")
base(sV, sV, f"s{sT0}")
e(f"v_xor_b32 v16, v{vI}, v{vG}")
e("v_lshlrev_b32 v16, 4, v16")
e(f"v_lshl_add_u32 v16, v{vG}, 8, v16")
c("first 4 KB block of this wave: (2w + (w>>2)) ^ r ; the second one is ^1 (spreads the HBM stacks)")
e(f"s_lshr_b32 s{sHB}, s{sW}, 2")
e(f"s_lshl_b32 s{sT1}, s{sW}, 1")
e(f"s_or_b32 s{sHB}, s{sHB}, s{sT1}")
if opt["rot"]:
    e(f"s_bfe_u32 s{sT1}, s{sID}, {0x30000 + opt['rot']:#x}")
    e(f"s_xor_b32 s{sHB}, s{sHB}, s{sT1}")
e(f"s_lshl_b32 s{sHB}, s{sHB}, 12")
e(f"v_or_b32 v16, s{sHB}, v16")
e("v_xor_b32 v17, 64, v16")
e("v_xor_b32 v18, 0x80, v16")
e("v_xor_b32 v19, 0xc0, v16")
e(f"s_mov_b32 m0, s{sKM}")
ts(2)
e(f"s_cmp_ge_u32 s{sID}, 240")
e("s_cbranch_scc1 L_p1skip0")
c("layernorm of row w")
if E3 == 2:
    e(f"s_cmp_lg_u32 s{sROLE}, 0")
    vwait(4, "L_xw")
else: e(f"s_waitcnt vmcnt(4)")
ts(3)
for k in range(4):
    e(f"v_lshlrev_b32 v{TT+2*k}, 16, v{8+k}")
    e(f"v_and_b32 v{TT+2*k+1}, 0xffff0000, v{8+k}")
e(f"v_pk_add_f32 v[4:5], v[{TT}:{TT+1}], v[{TT+2}:{TT+3}]")
e(f"v_pk_add_f32 v[6:7], v[{TT+4}:{TT+5}], v[{TT+6}:{TT+7}]")
e("v_pk_add_f32 v[4:5], v[4:5], v[6:7]")
e("v_add_f32 v4, v4, v5")
xlane("v_add_f32", 4, 5, full=True)
e("v_mul_f32 v4, 0x3b000000, v4")
e(f"v_sub_f32 v5, v{TT}, v4")
e("v_mul_f32 v6, v5, v5")
for k in range(1, 8):
    e(f"v_sub_f32 v5, v{TT+k}, v4")
    e("v_fmac_f32 v6, v5, v5")
xlane("v_add_f32", 6, 5, full=True)
e("v_mul_f32 v6, 0x3b000000, v6")
rbf(4); rbf(6)
e("v_add_f32 v6, 0x3727c5ac, v6")
rbf(6)
e("v_sqrt_f32 v6, v6")
e("s_nop 0")
rbf(6)
e("v_rcp_f32 v6, v6")
for k in range(8): e(f"v_sub_f32 v{TT+k}, v{TT+k}, v4")
for k in range(4):
    e(f"v_cvt_pk_bf16_f32 v{8+k}, v{TT+2*k}, v{TT+2*k+1}")
    e(f"v_lshlrev_b32 v{TT+2*k}, 16, v{8+k}")
    e(f"v_and_b32 v{TT+2*k+1}, 0xffff0000, v{8+k}")
    e(f"v_mul_f32 v{TT+2*k}, v{TT+2*k}, v6")
    e(f"v_mul_f32 v{TT+2*k+1}, v{TT+2*k+1}, v6")
    e(f"v_cvt_pk_bf16_f32 v{8+k}, v{TT+2*k}, v{TT+2*k+1}")
e(f"s_mul_i32 s{sT0}, s{sW}, 1040")
e(f"s_add_u32 s{sT0}, s{sT0}, {XN}")
e(f"v_lshl_add_u32 v4, v{vL}, 4, s{sT0}")
e("ds_write_b128 v4, v[8:11]")
c("xn operand addresses (v6,v7), W tr-read address (v5), slab address (v4)")
e(f"v_and_b32 v5, 7, v{vI}")
e("v_mul_u32_u24 v4, 1040, v5")
e(f"v_lshl_add_u32 v4, v{vG}, 4, v4")
e(f"s_lshl_b32 s{sT0}, s{sW}, 7")
e(f"s_add_u32 s{sT0}, s{sT0}, {XN}")
e(f"v_add_u32 v4, s{sT0}, v4")
e(f"v_mov_b32 v5, {ZB}")
e(f"v_cmp_gt_u32 vcc, 8, v{vI}")
e(f"s_lshl_b32 s{sT0}, s{sW}, 12")
e(f"s_add_u32 s{sT0}, s{sT0}, {W1}")
e("v_cndmask_b32 v6, v5, v4, vcc")
e("v_cndmask_b32 v7, v4, v5, vcc")
e(f"v_lshrrev_b32 v4, 2, v{vI}")
e(f"v_lshl_add_u32 v4, v{vG}, 3, v4")
e(f"v_and_b32 v5, 3, v{vI}")
e("v_lshlrev_b32 v5, 3, v5")
e("v_lshl_add_u32 v5, v4, 6, v5")
e(f"v_add_u32 v5, s{sT0}, v5")
e(f"s_lshl_b32 s{sT0}, s{sW}, 10")
e(f"s_add_u32 s{sT0}, s{sT0}, {P1S}")
e(f"v_lshl_add_u32 v4, v{vL}, 4, s{sT0}")
e("s_waitcnt lgkmcnt(0)")
e("s_barrier")
for ks in range(2):
    for ct in range(2): e(f"ds_read_b128 v[{DD+8*ks+4*ct}:{DD+8*ks+4*ct+3}], v{6+ct} offset:{ks*64}")
kdma(0, K1)
if E3 == 2:
    e(f"s_cmp_lg_u32 s{sROLE}, 0")
    vwait(K1, "L_ww")
else: e(f"s_waitcnt vmcnt({K1})")
ts(4)
for ks in range(2):
    for ct in range(2):
        for hh in range(2):
            r = TT+8*ks+4*ct+2*hh
            e(f"ds_read_b64_tr_b16 v[{r}:{r+1}], v5 offset:{ks*2048+hh*256+ct*32}")
e("s_waitcnt lgkmcnt(0)")
for n in range(4): mfma(8, TT+4*n, DD+4*n, None if n == 0 else 8)
e("s_nop 7")
e("ds_write_b128 v4, v[8:11]")
e("s_waitcnt lgkmcnt(0)")
e("s_barrier")
if opt.get("b2b"): e("s_barrier")
e("s_branch L_p1skip")
lab("L_p1skip0")
kdma(0, K1)
lab("L_p1skip")
ts(5)
if opt.get("kprio"): e(f"s_setprio {opt['kprio']}")
kdma(K1, 8) if K1 else (kdma(0, 1), kdma(1, 8))
if opt.get("kprio"): e("s_setprio 0")
e(f"v_lshlrev_b32 v59, 10, v{vG}")
e(f"v_lshl_add_u32 v59, v{vI}, 4, v59")
e(f"v_or_b32 v59, s{sHB}, v59")
e(f"v_xor_b32 v60, 0x1000, v59")
VS = opt["vs"]; VP = [opt["va"], opt["vb"], opt["vc"], 8]
def vload(lo, hi):
    for j in range(lo, hi):
        e(f"global_load_dwordx4 v[{VR+4*j}:{VR+4*j+3}], v{59+(j>>2)}, s[{sV}:{sV+1}] offset:{(j&3)*256}" + (NT if (opt["vnt"] >> j) & 1 else ""))
if E3 < 2: w3addr()
if E3 == 1: WP = [0, 4, 4, 4, 4]; w3(0); WP = [4]*5
V0 = opt["v0"] if opt["hold"] else VS
vload(0, V0)
if not opt["hold"]: ts(6)
c("address precompute")
e(f"s_mov_b32 s{sPL}, 0x05040100")
e(f"s_mov_b32 s{sPH}, 0x07060302")
e("s_waitcnt lgkmcnt(0)")
tagfix()
locinit()
e(f"s_and_b32 s{sT1}, s{sU_}, 3")
e(f"s_lshl_b32 s{sT1}, s{sT1}, 15")
e(f"s_add_u32 s{sSP}, s{sSP}, s{sT1}")
e(f"s_lshr_b32 s{sT1}, s{sW}, 1")
e(f"s_lshl_b32 s{sT1}, s{sT1}, 13")
e(f"s_add_u32 s{sSP}, s{sSP}, s{sT1}")
e(f"s_and_b32 s{sT1}, s{sW}, 1")
e(f"s_lshl_b32 s{sT1}, s{sT1}, 7")
e(f"s_add_u32 s{sSP}, s{sSP}, s{sT1}")
e(f"v_and_b32 v4, 7, v{vI}")
e(f"v_lshl_add_u32 v26, v4, 17, s{sSP}")
e(f"v_lshl_add_u32 v26, v{vG}, 5, v26")
e(f"v_lshrrev_b32 v5, 3, v{vI}")
e("v_lshl_add_u32 v26, v5, 4, v26")
e("v_mul_u32_u24 v28, 272, v4")
e(f"v_lshl_add_u32 v28, v{vG}, 4, v28")
e(f"v_add_u32 v28, {OB}, v28")
e(f"v_lshrrev_b32 v4, 2, v{vI}")
e(f"v_bfe_u32 v5, v{vI}, 1, 1")
e(f"s_lshl_b32 s{sT1}, s{sW}, 1")
e(f"v_or_b32 v5, s{sT1}, v5")
e("v_lshlrev_b32 v6, 1, v4")
e("v_xor_b32 v5, v5, v6")
e(f"v_and_b32 v6, 1, v{vG}")
e("v_lshlrev_b32 v6, 3, v6")
e("v_xor_b32 v5, v5, v6")
e(f"v_lshl_add_u32 v4, v{vG}, 3, v4")
e("v_lshlrev_b32 v4, 8, v4")
e("v_lshl_add_u32 v27, v5, 4, v4")
e(f"v_and_b32 v4, 1, v{vI}")
e("v_lshl_add_u32 v27, v4, 3, v27")
e(f"v_add_u32 v27, {W3}, v27")
e(f"v_cmp_lt_u32 s[{sM2}:{sM2+1}], 7, v{vI}")
e(f"v_xor_b32 v16, v{vI}, v{vG}")
e("v_lshlrev_b32 v16, 4, v16")
e(f"v_lshl_add_u32 v16, v{vI}, 8, v16")
e(f"v_add_u32 v16, s{sKM}, v16")
e("v_xor_b32 v17, 64, v16")
e("v_xor_b32 v18, 0x80, v16")
e("v_xor_b32 v19, 0xc0, v16")
e(f"v_and_b32 v22, 3, v{vI}")
e("v_mul_u32_u24 v23, 272, v22")
e(f"v_lshl_add_u32 v23, v{vG}, 4, v23")
e(f"v_add_u32 v23, {QB}, v23")
e(f"v_lshlrev_b32 v4, 5, v22")
e(f"s_lshl_b32 s{sT2}, s{sW}, 2")
e(f"v_add_u32 v24, {MB}, v4")
e(f"v_add_u32 v29, s{sT2}, v24")
e(f"s_lshr_b32 s{sT0}, s{sU_}, 2")
e(f"s_lshl_b32 s{sT0}, s{sT0}, 3")
e(f"s_add_u32 s{sT0}, s{sT0}, s{sW}")
e(f"s_lshl_b32 s{sT1}, s{sT0}, 5")
e(f"s_add_u32 s{sT1}, s{sT1}, {WS_LSE}")
e(f"v_mov_b32 v57, s{sT1}")
e(f"s_lshl_b32 s{sT1}, s{sT0}, 11")
e(f"s_add_u32 s{sT1}, s{sT1}, {WS_OP}")
e(f"v_lshl_add_u32 v56, v{vL}, 3, s{sT1}")
c("obuf write address: b*272 + (16g+4r+2a+e2)*4, lane=(a,g,e2,r)")
e(f"v_bfe_u32 v4, v{vL}, 3, 2")
e("v_lshlrev_b32 v58, 6, v4")
e(f"v_and_b32 v4, 3, v{vL}")
e("v_lshl_add_u32 v58, v4, 4, v58")
e(f"v_lshrrev_b32 v4, 5, v{vL}")
e("v_lshl_add_u32 v58, v4, 3, v58")
e(f"v_and_b32 v4, 4, v{vL}")
e(f"s_mul_i32 s{sT0}, s{sW}, 272")
e(f"s_add_u32 s{sT0}, s{sT0}, {OB}")
e(f"v_add3_u32 v58, v58, v4, s{sT0}")
c("PV slab write v30, read v31, o publish v20")
e(f"s_lshl_b32 s{sT0}, s{sW}, 11")
e(f"s_add_u32 s{sT0}, s{sT0}, {SLAB}")
e(f"v_lshl_add_u32 v30, v{vL}, 4, s{sT0}")
e(f"v_lshlrev_b32 v31, 2, v0")
e(f"v_add_u32 v31, {SLAB}, v31")
e(f"v_bfe_u32 v4, v{vL}, 2, 2")
e("v_lshlrev_b32 v20, 14, v4")
e(f"v_lshrrev_b32 v4, 5, v{vL}")
e("v_lshl_add_u32 v20, v4, 5, v20")
e(f"v_and_b32 v4, 3, v{vL}")
e("v_lshl_add_u32 v20, v4, 3, v20")
e(f"s_bfe_u32 s{sT0}, s{sA}, 0x30002")
e(f"s_lshl_b32 s{sT0}, s{sT0}, 16")
e(f"s_lshr_b32 s{sT1}, s{sA}, 5")
e(f"s_lshl_b32 s{sT1}, s{sT1}, 11")
e(f"s_add_u32 s{sT0}, s{sT0}, s{sT1}")
e(f"s_and_b32 s{sT1}, s{sA}, 3")
e(f"s_lshl_b32 s{sT1}, s{sT1}, 9")
e(f"s_add_u32 s{sT0}, s{sT0}, s{sT1}")
e(f"s_lshl_b32 s{sT1}, s{sW}, 6")
e(f"s_add_u32 s{sT0}, s{sT0}, s{sT1}")
e(f"s_add_u32 s{sT0}, s{sT0}, {WS_OP}")
e(f"v_add_u32 v20, s{sT0}, v20")
if opt["hold"]:
    e("s_barrier")
    vload(V0, VS)
    ts(6)
if E3 == 1:
    e(f"s_cmp_lg_u32 s{sROLE}, 0")
    vwait(VS, "L_kw")
else: e(f"s_waitcnt vmcnt({VS})")
for t in range(2):
    for cc in range(4): e(f"ds_read_b128 v[{TT+16*t+4*cc}:{TT+16*t+4*cc+3}], v{16+cc} offset:{t*4096}")
e(f"s_mov_b32 s{sT0}, 0x3db504f3")
e(f"s_mov_b32 s{sT1}, 0x3fb8aa3b")
e("s_barrier")
ts(7)
for cc in range(4): e(f"ds_read_b128 v[{DD+4*cc}:{DD+4*cc+3}], v23 offset:{cc*64}")
e("s_waitcnt lgkmcnt(0)")
S = DD + 16
for cc in range(4):
    for t in range(2): mfma(S+4*t, TT+16*t+4*cc, DD+4*cc, None if cc == 0 else S+4*t)
vload(VS, VP[0])
w3(0)
e("s_nop 7")
for k in range(4): e(f"v_cvt_pk_bf16_f32 v{8+k}, v{S+2*k}, v{S+2*k+1}")
for k in range(4):
    e(f"v_lshlrev_b32 v{S+2*k}, 16, v{8+k}")
    e(f"v_and_b32 v{S+2*k+1}, 0xffff0000, v{8+k}")
for k in range(8): e(f"v_mul_f32 v{S+k}, s{sT0}, v{S+k}")
for k in range(4): e(f"v_cvt_pk_bf16_f32 v{8+k}, v{S+2*k}, v{S+2*k+1}")
for k in range(4):
    e(f"v_lshlrev_b32 v{S+2*k}, 16, v{8+k}")
    e(f"v_and_b32 v{S+2*k+1}, 0xffff0000, v{8+k}")
e(f"v_max3_f32 v6, v{S}, v{S+1}, v{S+2}")
e(f"v_max3_f32 v7, v{S+3}, v{S+4}, v{S+5}")
e(f"v_max3_f32 v6, v6, v{S+6}, v{S+7}")
e(f"v_max_f32 v6, v6, v7")
xlane("v_max_f32", 6, 7)
e(f"v_mul_f32 v23, s{sT1}, v6")
for k in range(8): e(f"v_fma_f32 v{S+k}, v{S+k}, s{sT1}, -v23")
for k in range(8): e(f"v_exp_f32 v{S+k}, v{S+k}")
e("s_nop 0")
e(f"v_pk_add_f32 v[4:5], v[{S}:{S+1}], v[{S+2}:{S+3}]")
e(f"v_pk_add_f32 v[6:7], v[{S+4}:{S+5}], v[{S+6}:{S+7}]")
e("v_pk_add_f32 v[4:5], v[4:5], v[6:7]")
e("v_add_f32 v7, v4, v5")
xlane("v_add_f32", 7, 8)
e("s_mov_b64 exec, 15")
e("ds_write2_b32 v29, v23, v7 offset0:0 offset1:32")
e("s_mov_b64 exec, -1")
vload(VP[0], VP[1])
w3(1)
e("s_waitcnt lgkmcnt(0)")
e("s_barrier")
vload(VP[1], VP[2])
w3(2)
def mlcomb():
    e("ds_read_b128 v[8:11], v24")
    e("ds_read_b128 v[12:15], v24 offset:16")
    e(f"ds_read_b128 v[{DD}:{DD+3}], v24 offset:128")
    e(f"ds_read_b128 v[{DD+4}:{DD+7}], v24 offset:144")
    e("s_waitcnt lgkmcnt(0)")
    e("v_max3_f32 v6, v8, v9, v10")
    e("v_max3_f32 v7, v11, v12, v13")
    e("v_max3_f32 v6, v6, v14, v15")
    e("v_max_f32 v6, v6, v7")
    for k in range(8): e(f"v_sub_f32 v{8+k}, v{8+k}, v6")
    for k in range(8): e(f"v_exp_f32 v{8+k}, v{8+k}")
    e(f"v_mul_f32 v7, v8, v{DD}")
    for k in range(1, 8): e(f"v_fmac_f32 v7, v{8+k}, v{DD+k}")
mlcomb()
e("v_sub_f32 v23, v23, v6")
e("v_rcp_f32 v8, v7")
e("v_exp_f32 v23, v23")
e(f"v_lshrrev_b32 v4, 2, v{vI}")
e("v_mul_f32 v23, v23, v8")
for k in range(8): e(f"v_mul_f32 v{S+k}, v23, v{S+k}")
for k in range(4): e(f"v_cvt_pk_bf16_f32 v{S+k}, v{S+2*k}, v{S+2*k+1}")
PM = DD + 20
for k in range(16): e(f"v_mov_b32 v{PM+k}, 0")
for cq in range(4):
    m = 0x000F000F << (4*cq)
    e(f"s_mov_b32 exec_lo, {m:#x}")
    e(f"s_mov_b32 exec_hi, {m:#x}")
    for k in range(0, 4, 2): e(f"v_pk_mov_b32 v[{PM+4*cq+k}:{PM+4*cq+k+1}], v[{S+k}:{S+k+1}], v[{S+k}:{S+k+1}] op_sel:[0,1]")
e("s_mov_b64 exec, -1")
e(f"v_mov_b32 v7, s{sTAG}")
ts(8)
vload(VP[2], 8)
WD = opt["wd"]
if not WD: w3(3)
e(f"s_cmp_lg_u32 s{sROLE}, 0")
for j in range(4):
    if WD == 2 and j == 3:
        w3(3); vwait(0, "L_vw3")
    elif E3 or WD: e(f"s_waitcnt vmcnt({6-2*j})")
    else: vwait(6-2*j, f"L_vw{j}")
    if j == 3: ts(9)
    for q in range(4):
        a, b = VR + 8*j + q, VR + 8*j + 4 + q
        e(f"v_perm_b32 v{TT+8*q+j}, v{b}, v{a}, s{sPL}")
        e(f"v_perm_b32 v{TT+8*q+4+j}, v{b}, v{a}, s{sPH}")
for cc in range(8): mfma(DD+4*(cc>>2), TT+4*cc, PM+4*(cc&3), None if (cc&3) == 0 else DD+4*(cc>>2))
e("s_nop 3")
e(f"ds_write_b128 v30, v[{DD}:{DD+3}]")
e("s_nop 2")
e(f"ds_write_b128 v30, v[{DD+4}:{DD+7}] offset:1024")
e("s_waitcnt lgkmcnt(0)")
e("s_barrier")
for k in range(4): e(f"ds_read2st64_b32 v[{8+2*k}:{9+2*k}], v31 offset0:{16*k} offset1:{16*k+8}")
e("s_waitcnt lgkmcnt(0)")
e("v_pk_add_f32 v[8:9], v[8:9], v[10:11]")
e("v_pk_add_f32 v[12:13], v[12:13], v[14:15]")
e("v_pk_add_f32 v[8:9], v[8:9], v[12:13]")
e("v_add_f32 v10, v8, v9")
e("v_add_f32 v11, v8, v9")
e("s_nop 1")
e("v_permlane16_swap_b32 v10, v11")
e("s_mov_b32 exec_lo, 0x0000FFFF")
e("s_mov_b32 exec_hi, 0x0000FFFF")
e("v_cvt_pk_bf16_f32 v6, v10, v11")
def ostoreB():
    e("s_mov_b32 exec_lo, 0x0000FFFF")
    e("s_mov_b32 exec_hi, 0x0000FFFF")
    e(f"global_store_dwordx2 v20, v[6:7], s[{sWS}:{sWS+1}] sc1")
    e("s_mov_b64 exec, -1")
if LOC: e(f"global_store_dwordx2 v20, v[6:7], s[{sWA}:{sWA+1}]")
else: e(f"global_store_dwordx2 v20, v[6:7], s[{sWS}:{sWS+1}] sc1")
e("s_mov_b64 exec, -1")
ts(10)
if WD == 1: w3(3)
def trread():
    for ks in range(4):
        for hh in range(2): e(f"ds_read_b64_tr_b16 v[{TT+4*ks+2*hh}:{TT+4*ks+2*hh+1}], v27 offset:{ks*8192+hh*1024}")
if E3: trread()
O = VR
e(f"s_cmp_lt_u32 s{sID}, 128")
e("s_cbranch_scc1 L_lo")
def lissue():
    for s_ in range(2): e(f"global_load_dwordx4 v[{O+4*s_}:{O+3+4*s_}], v57, s[{sP}:{sP+1}] offset:{s_*16} sc1")
def oissue(j):
    for s_ in range(4): e(f"global_load_dwordx2 v[{WR+8*j+2*s_}:{WR+8*j+2*s_+1}], v56, s[{sP}:{sP+1}] offset:{s_*512} sc1")
def ocont(j):
    R = WR+8*j
    for k in range(4):
        e(f"v_and_b32 v{R+2*k+1}, 0xffff0000, v{R+2*k}")
        e(f"v_lshlrev_b32 v{R+2*k}, 16, v{R+2*k}")
    e(f"v_pk_mul_f32 v[12:13], v[{R}:{R+1}], v[8:9] op_sel_hi:[1,0]")
    e(f"v_pk_mul_f32 v[14:15], v[{R+2}:{R+3}], v[8:9] op_sel:[0,1] op_sel_hi:[1,1]")
    e(f"v_pk_fma_f32 v[12:13], v[{R+4}:{R+5}], v[10:11], v[12:13] op_sel_hi:[1,0,1]")
    e(f"v_pk_fma_f32 v[14:15], v[{R+6}:{R+7}], v[10:11], v[14:15] op_sel:[0,1,0] op_sel_hi:[1,1,1]")
OD = opt["opipe"]
if opt["slse"]:
    PRE = 1
    oissue(0)
    e(f"s_lshl_b32 s{sT0}, s{sW}, 4")
    e(f"s_add_u32 s{sT0}, s{sT0}, {HB}")
    e(f"v_mov_b32 v4, s{sT0}")
    e("ds_read_b128 v[8:11], v4")
    e("s_waitcnt lgkmcnt(0)")
else:
    lab("L_lpoll")
    lissue()
    PRE = opt["opre"]
    if PRE: oissue(0)
    e(f"s_waitcnt vmcnt({4*PRE})")
    tagcheck([O+1+2*k for k in range(4)], 4, 5, "L_lpoll", "L_lp", opt["lsleep"], ostoreB)
    if LOC: e(f"s_mov_b64 s[{sP}:{sP+1}], s[{sWA}:{sWA+1}]")
    if not PRE: oissue(0); PRE = 1
    e(f"v_max3_f32 v4, v{O}, v{O+2}, v{O+4}")
    e(f"v_max_f32 v4, v4, v{O+6}")
    for k in range(4): e(f"v_sub_f32 v{8+k}, v{O+2*k}, v4")
    for k in range(4): e(f"v_exp_f32 v{8+k}, v{8+k}")
    e("s_nop 0")
    e("v_pk_add_f32 v[4:5], v[8:9], v[10:11]")
    e("v_add_f32 v4, v4, v5")
    e("v_rcp_f32 v4, v4")
    e("s_nop 0")
    for k in range(4): e(f"v_mul_f32 v{8+k}, v{8+k}, v4")
ppoll("L_op", OD, 4, oissue, lambda j: [WR+8*j+1+2*k for k in range(4)], ocont, opt["osleep"], PRE, ostoreB)
ts(11)
e("v_pk_add_f32 v[12:13], v[12:13], v[14:15]")
e("v_cvt_pk_bf16_f32 v12, v12, v13")
e("ds_write_b32 v58, v12")
if LOC: ostoreB()
e("s_waitcnt lgkmcnt(0)")
if not E3: lab("L_mf")
e("s_barrier")
if E3: lab("L_mf")
for ks in range(4): e(f"ds_read_b128 v[{DD+4*ks}:{DD+4*ks+3}], v28 offset:{ks*64}")
if not E3: trread()
e(f"v_mov_b32 v13, s{sTAG}")
e(f"v_mov_b32 v15, s{sTAG}")
for ks in range(4):
    e(f"s_waitcnt lgkmcnt({3-ks if E3 else 6-2*ks})")
    mfma(8, TT+4*ks, DD+4*ks, None if ks == 0 else 8)
e("s_nop 7")
e(f"v_cndmask_b32 v12, v8, v10, s[{sM2}:{sM2+1}]")
e(f"v_cndmask_b32 v14, v9, v11, s[{sM2}:{sM2+1}]")
e(f"global_store_dwordx4 v26, v[12:15], s[{sWS}:{sWS+1}] sc1")
e(f"s_cmp_lt_u32 s{sID}, 128")
e("s_cbranch_scc1 L_final")
ts(12)
if DIAG:
    e(f"s_cmp_lg_u32 s{sW}, 0")
    e("s_cbranch_scc1 L_end")
    dump_ts(0, 13)
e("s_endpgm")
lab("L_lo")
if LOC: ostoreB()
e(f"s_cmp_ge_u32 s{sID}, 56")
e("s_cbranch_scc1 L_final")
if not E3: e(f"s_waitcnt vmcnt({1 if WD == 1 else 1+(LOC>0)})")
e("s_branch L_mf")
lab("L_final")
e(f"s_cmp_lg_u32 s{sW}, 0")
e("s_cbranch_scc1 L_end")
e(f"s_lshl_b32 s{sT0}, s{sID}, 13")
e(f"s_add_u32 s{sT0}, s{sT0}, 4096")
e(f"v_lshl_add_u32 v16, v{vL}, 4, s{sT0}")
base(sB, sWS, WS_DP)
base(sB2, sWS, WS_SP)
e(f"s_lshl_b32 s{sT0}, s{sID}, 6")
e(f"v_lshl_add_u32 v17, v{vI}, 2, s{sT0}")
e(f"global_load_dword v18, v17, s[{sX}:{sX+1}]")
def fsum(R, n):
    e(f"v_add_f32 v8, v{R}, v{R+4}")
    e(f"v_add_f32 v9, v{R+2}, v{R+6}")
    e(f"v_add_f32 v10, v{R+8}, v{R+12}")
    e(f"v_add_f32 v11, v{R+10}, v{R+14}")
    for j in range(4, n):
        e(f"v_add_f32 v{8+2*(j&1)}, v{8+2*(j&1)}, v{R+4*j}")
        e(f"v_add_f32 v{9+2*(j&1)}, v{9+2*(j&1)}, v{R+4*j+2}")
def fred():
    e("v_pk_add_f32 v[8:9], v[8:9], v[10:11]")
    e("s_nop 1")
    e("v_permlane32_swap_b32 v8, v9")
    e("s_nop 0")
    e("v_add_f32 v8, v8, v9")
    e("v_mov_b32 v9, v8")
    e("s_nop 1")
    e("v_permlane16_swap_b32 v8, v9")
    e("s_nop 0")
    e("v_add_f32 v8, v8, v9")
    rbf(8)
e(f"v_mov_b32 v{DD+12}, 0")
e(f"v_mov_b32 v{DD+13}, s{sTAG}")
e(f"v_mov_b32 v{DD+14}, 0")
e(f"v_mov_b32 v{DD+15}, s{sTAG}")
if opt["fpre"]:
    c("cheap pre-wait: every workgroup has published its lse")
    e(f"v_lshlrev_b32 v6, 10, v{vG}")
    e(f"v_lshl_add_u32 v6, v{vI}, 4, v6")
    e(f"v_add_u32 v6, {WS_LSE + 4096}, v6")
    lab("L_fpoll")
    for u in range(2): e(f"global_load_dwordx4 v[{WR+4*u}:{WR+4*u+3}], v6, s[{sWS}:{sWS+1}] offset:{u*4096-4096} sc1")
    e("s_waitcnt vmcnt(0)")
    tagcheck([WR+1+2*k for k in range(4)], 4, 5, "L_fpoll", "L_fp", opt["fsleep"])
if opt["fdelay"]: e(f"s_sleep {opt['fdelay']}")
lab("L_dpoll")
for j in range(4):
    if j == 3: e("s_mov_b32 exec_hi, 0")
    e(f"global_load_dwordx4 v[{DD+4*j}:{DD+4*j+3}], v16, s[{sB}:{sB+1}] offset:{j*1024-4096} sc1")
e("s_mov_b32 exec_hi, -1")
def sissue(j):
    for k in range(8): e(f"global_load_dwordx4 v[{WR+32*j+4*k}:{WR+32*j+4*k+3}], v16, s[{sB2}:{sB2+1}] offset:{k*1024-4096} sc1")
if not opt["dsep"]: sissue(0)
e(f"s_waitcnt vmcnt({0 if opt['dsep'] else 8})")
tagcheck([DD+1+2*k for k in range(8)], 4, 5, "L_dpoll", "L_dp")
if opt["dsep"]: sissue(0)
SD = opt["spipe"]
fsum(DD, 4)
fred()
ts(11)
c("g = bf16(silu(d)); x half for this lane")
e("v_mul_f32 v10, 0xbfb8aa3b, v8")
e("v_exp_f32 v10, v10")
e("v_lshlrev_b32 v19, 16, v18")
e("v_add_f32 v10, 1.0, v10")
e("v_rcp_f32 v10, v10")
e("v_and_b32 v18, 0xffff0000, v18")
e("v_mul_f32 v20, v8, v10")
rbf(20)
e("s_mov_b32 exec_hi, 0")
e("v_mov_b32 v18, v19")
e("s_mov_b32 exec_hi, -1")
e(f"v_lshrrev_b32 v4, 5, v{vL}")
e("v_lshl_add_u32 v17, v4, 1, v17")
ppoll("L_sp", SD, 8, sissue, lambda j: [WR+32*j+1+2*k for k in range(16)], lambda j: fsum(WR+32*j, 8), opt["ssleep"], 1)
fred()
e("v_mul_f32 v8, v8, v20")
rbf(8)
e("v_add_f32 v8, v8, v18")
e("v_cvt_pk_bf16_f32 v8, v8, v8")
e("s_mov_b32 exec_lo, 0xffff")
e("s_mov_b32 exec_hi, 0xffff")
e(f"global_store_short v17, v8, s[{sOUT}:{sOUT+1}]" + ["", " sc1", " sc0 sc1", " nt"][opt.get("osc", 0)])
ts(12)
e(f"s_cmp_lg_u32 s{sID}, 0")
e("s_cbranch_scc1 L_fin2")
e("s_mov_b64 exec, 1")
e("v_mov_b32 v4, 0")
e(f"v_mov_b32 v5, s{sTAG}")
e(f"global_store_dword v4, v5, s[{sWS}:{sWS+1}]" + ["", " sc1", " sc0 sc1", " nt"][opt.get("osc", 0)])
lab("L_fin2")
dump_ts(0, 13)
lab("L_end")
e("s_endpgm")
lab("L_service")
if opt["prio"]: e(f"s_setprio {opt['prio']}")
e("v_mov_b32 v8, 0")
e(f"v_and_b32 v4, 31, v{vL}")
e("v_lshlrev_b32 v4, 2, v4")
e(f"v_add_u32 v4, {ZB}, v4")
e("ds_write_b32 v4, v8")
locinit()
if LOC > 1:
    c("bring the lines of the local o / lse copies of this head into L2")
    e(f"s_cmp_lt_u32 s{sID}, 128")
    e("s_cbranch_scc1 L_nopt")
    e(f"s_lshl_b32 s{sT0}, s{sU_}, 12")
    e(f"s_add_u32 s{sT0}, s{sT0}, {WS_OP}")
    e(f"v_lshl_add_u32 v5, v{vL}, 6, s{sT0}")
    e(f"global_load_dword v6, v5, s[{sWA}:{sWA+1}]")
    e(f"s_lshl_b32 s{sT0}, s{sU_}, 6")
    e(f"s_add_u32 s{sT0}, s{sT0}, {WS_LSE}")
    e(f"v_mov_b32 v5, s{sT0}")
    e(f"global_load_dword v7, v5, s[{sWA}:{sWA+1}]")
    lab("L_nopt")
c("q source: Y + b*YROW + hkv*2048 + lane*16 (+1024)")
e(f"s_lshr_b32 s{sT0}, s{sA}, 5")
e(f"s_mul_i32 s{sT0}, s{sT0}, {YROW}")
e(f"s_bfe_u32 s{sT1}, s{sA}, 0x30002")
e(f"s_lshl_b32 s{sT1}, s{sT1}, 11")
e(f"s_add_u32 s{sT0}, s{sT0}, s{sT1}")
e(f"s_add_u32 s{sT0}, s{sT0}, {WS_Y}")
e(f"v_lshl_add_u32 v16, v{vL}, 4, s{sT0}")
base(sB, sWA, f"s{sT0}")
if opt["qpt"]:
    for u in range(2): e(f"global_load_dwordx4 v[{WR+4*u}:{WR+4*u+3}], v16, s[{sWA}:{sWA+1}] offset:{u*1024}")
e(f"v_lshrrev_b32 v4, 5, v{vL}")
e("v_mul_u32_u24 v17, 272, v4")
e(f"v_and_b32 v4, 31, v{vL}")
e("v_lshl_add_u32 v17, v4, 3, v17")
e(f"v_add_u32 v17, {QB}, v17")
c("h source v26..v29, h dest v20")
e(f"s_lshr_b32 s{sT0}, s{sU_}, 2")
e(f"s_lshl_b32 s{sT0}, s{sT0}, 9")
e(f"s_add_u32 s{sT0}, s{sT0}, {WS_Y + 16384 + 3584}")
e(f"v_lshrrev_b32 v5, 5, v{vL}")
e(f"v_mul_u32_u24 v26, {YROW}, v5")
e(f"v_lshl_add_u32 v26, v4, 4, v26")
e(f"v_add_u32 v26, s{sT0}, v26")
for j in range(1, 4): e(f"v_add_u32 v{26+j}, {2*j*YROW}, v26")
e(f"v_add_u32 v20, {OB - QB}, v17")
c("slab read v21, Y publish v22, ml read v24, lse publish v25")
e(f"v_lshlrev_b32 v21, 4, v{vL}")
e(f"v_add_u32 v21, {P1S}, v21")
e(f"v_and_b32 v4, 7, v{vI}")
e(f"v_mul_u32_u24 v22, {YROW}, v4")
e(f"v_lshrrev_b32 v4, 3, v{vI}")
e("v_lshl_add_u32 v22, v4, 6, v22")
e(f"v_lshl_add_u32 v22, v{vG}, 4, v22")
e(f"s_lshl_b32 s{sT0}, s{sTILE}, 7")
e(f"s_add_u32 s{sT0}, s{sT0}, {WS_Y}")
e(f"v_add_u32 v22, s{sT0}, v22")
e(f"v_and_b32 v4, 3, v{vI}")
e("v_lshlrev_b32 v24, 5, v4")
e(f"v_add_u32 v24, {MB}, v24")
e(f"s_bfe_u32 s{sT0}, s{sA}, 0x30002")
e(f"s_lshl_b32 s{sT0}, s{sT0}, 10")
e(f"s_and_b32 s{sT1}, s{sID}, 0xe0")
e(f"s_add_u32 s{sT0}, s{sT0}, s{sT1}")
e(f"s_and_b32 s{sT1}, s{sA}, 3")
e(f"s_lshl_b32 s{sT1}, s{sT1}, 3")
e(f"s_add_u32 s{sT0}, s{sT0}, s{sT1}")
e(f"s_add_u32 s{sT0}, s{sT0}, {WS_LSE}")
e(f"v_lshl_add_u32 v25, v4, 8, s{sT0}")
e("s_waitcnt lgkmcnt(0)")
tagfix()
e(f"v_mov_b32 v13, s{sTAG}")
e(f"v_mov_b32 v15, s{sTAG}")
e(f"s_cmp_ge_u32 s{sID}, 240")
e("s_cbranch_scc1 L_sv1")
e("s_barrier")
e("s_barrier")
for p in range(8): e(f"ds_read_b128 v[{TT+4*p}:{TT+4*p+3}], v21 offset:{p*1024}")
for p in range(4):
    e(f"s_waitcnt lgkmcnt({3-p})")
    for k in (0, 2): e(f"v_pk_add_f32 v[{TT+4*p+k}:{TT+4*p+k+1}], v[{TT+4*p+k}:{TT+4*p+k+1}], v[{TT+16+4*p+k}:{TT+16+4*p+k+1}]")
for p in range(2):
    for k in (0, 2): e(f"v_pk_add_f32 v[{TT+4*p+k}:{TT+4*p+k+1}], v[{TT+4*p+k}:{TT+4*p+k+1}], v[{TT+8+4*p+k}:{TT+8+4*p+k+1}]")
for k in (0, 2): e(f"v_pk_add_f32 v[{TT+k}:{TT+k+1}], v[{TT+k}:{TT+k+1}], v[{TT+4+k}:{TT+4+k+1}]")
e(f"v_cvt_pk_bf16_f32 v12, v{TT}, v{TT+1}")
e(f"v_cvt_pk_bf16_f32 v14, v{TT+2}, v{TT+3}")
QL = LOC and opt["qloc"]
if QL: e(f"global_store_dwordx4 v22, v[12:15], s[{sWA}:{sWA+1}]")
e(f"global_store_dwordx4 v22, v[12:15], s[{sWS}:{sWS+1}] sc1")
if opt.get("b2b"): e("s_barrier")
lab("L_sv1")
ts(2)
D = opt["qpipe"]
def qissue(j):
    for u in range(2): e(f"global_load_dwordx4 v[{WR+8*j+4*u}:{WR+8*j+4*u+3}], v16, s[{sP if QL else sWS}:{(sP if QL else sWS)+1}] offset:{u*1024} sc1")
def qwrite(j):
    e(f"ds_write2_b32 v17, v{WR+8*j}, v{WR+8*j+2} offset0:0 offset1:1")
    e(f"ds_write2_b32 v17, v{WR+8*j+4}, v{WR+8*j+6} offset0:136 offset1:137")
if opt["qdelay"]: e(f"s_sleep {opt['qdelay']}")
if opt["sq"]:
    c("scalar pre-wait: one tag of each of the 16 producers")
    e(f"s_mov_b32 s{sT2}, 40")
    lab("L_sq")
    for p in range(16): e(f"s_load_dword s{4+p}, s[{sB}:{sB+1}], {128*p+4} glc")
    e("s_waitcnt lgkmcnt(0)")
    e(f"s_xor_b32 s{sT0}, s4, s{sTAG}")
    for p in range(1, 16):
        e(f"s_xor_b32 s{sT1}, s{4+p}, s{sTAG}")
        e(f"s_or_b32 s{sT0}, s{sT0}, s{sT1}")
    e("s_cbranch_scc0 L_sqok")
    e(f"s_sub_u32 s{sT2}, s{sT2}, 1")
    if opt["sq"] > 1: e(f"s_sleep {opt['sq']}")
    e(f"s_cmp_gt_i32 s{sT2}, 0")
    e("s_cbranch_scc1 L_sq")
    lab("L_sqok")
    ts(1)
if opt["hold"]:
    qissue(0)
    e("s_barrier")
ppoll("L_qp", D, 2, qissue, lambda j: [WR+8*j+1+2*k for k in range(4)], qwrite, opt["qsleep"], opt["hold"], True)
ts(4)
def hissue():
    for u in range(4):
        e(f"global_load_dwordx4 v[{VR+8*u}:{VR+8*u+3}], v{26+u}, s[{sWS}:{sWS+1}] offset:-3584 sc1")
        e(f"global_load_dwordx4 v[{VR+8*u+4}:{VR+8*u+7}], v{26+u}, s[{sWS}:{sWS+1}] offset:3584 sc1")
e("s_waitcnt lgkmcnt(0)")
e("s_barrier")
e(f"s_cmp_ge_u32 s{sID}, 56")
e("s_cbranch_scc1 L_sv2")
hissue()
lab("L_sv2")
if opt["slse"]:
    c("split weights of this head: lanes 0..31 = (b, split)")
    e(f"s_mov_b64 s[{sP}:{sP+1}], s[{sWA}:{sWA+1}]")
    e(f"s_lshr_b32 s{sT0}, s{sU_}, 2")
    e(f"s_lshl_b32 s{sT0}, s{sT0}, 8")
    e(f"s_add_u32 s{sT0}, s{sT0}, {WS_LSE}")
    e(f"v_and_b32 v6, 31, v{vL}")
    e(f"v_lshl_add_u32 v16, v6, 3, s{sT0}")
    e(f"v_lshlrev_b32 v17, 2, v6")
    e(f"v_add_u32 v17, {HB}, v17")
e("s_barrier")
mlcomb()
e("v_log_f32 v7, v7")
e(f"v_mov_b32 v9, s{sTAG}")
e("v_add_f32 v8, v6, v7")
e("s_mov_b64 exec, 15")
if LOC: e(f"global_store_dwordx2 v25, v[8:9], s[{sWA}:{sWA+1}]")
if opt["slse"]:
    e(f"s_cmp_lt_u32 s{sID}, 128")
    e("s_cbranch_scc1 L_sv6")
    e("s_mov_b64 exec, -1")
    e(f"global_load_dwordx2 v[12:13], v16, s[{sP}:{sP+1}] sc1")
    e("s_mov_b64 exec, 15")
    lab("L_sv6")
e(f"global_store_dwordx2 v25, v[8:9], s[{sWS}:{sWS+1}] sc1")
e("s_mov_b64 exec, -1")
ts(3)
if opt["slse"]:
    e(f"s_cmp_lt_u32 s{sID}, 128")
    e("s_cbranch_scc1 L_sv4")
    e("s_waitcnt vmcnt(1)")
    e("s_branch L_slc")
    lab("L_slp")
    e(f"global_load_dwordx2 v[12:13], v16, s[{sP}:{sP+1}] sc1")
    e("s_waitcnt vmcnt(0)")
    lab("L_slc")
    tagcheck([13, 13], 4, 5, "L_slp", "L_sl", opt["lsleep"], True)
    e("v_mov_b32 v10, v12")
    for m in ["quad_perm:[1,0,3,2]", "quad_perm:[2,3,0,1]"]:
        e("s_nop 1")
        e(f"v_max_f32_dpp v10, v10, v10 {m} row_mask:0xf bank_mask:0xf")
    e("v_sub_f32 v8, v12, v10")
    e("v_exp_f32 v8, v8")
    e("s_nop 0")
    e("v_mov_b32 v10, v8")
    for m in ["quad_perm:[1,0,3,2]", "quad_perm:[2,3,0,1]"]:
        e("s_nop 1")
        e(f"v_add_f32_dpp v10, v10, v10 {m} row_mask:0xf bank_mask:0xf")
    e("v_rcp_f32 v10, v10")
    e("s_nop 0")
    e("v_mul_f32 v8, v8, v10")
    e("ds_write_b32 v17, v8")
    e("s_branch L_sv5")
    lab("L_sv4")
e(f"s_cmp_ge_u32 s{sID}, 56")
e("s_cbranch_scc1 L_sv3")
e(f"s_waitcnt vmcnt({1+(LOC>0)})")
e("s_branch L_hchk")
lab("L_hpoll")
hissue()
e("s_waitcnt vmcnt(0)")
lab("L_hchk")
tagcheck([VR+1+2*k for k in range(16)], 4, 5, "L_hpoll", "L_hp")
for u in range(4):
    for k in range(2):
        g_, u_ = VR+8*u+2*k, VR+8*u+4+2*k
        e(f"v_lshlrev_b32 v4, 16, v{g_}")
        e(f"v_and_b32 v5, 0xffff0000, v{g_}")
        e(f"v_lshlrev_b32 v6, 16, v{u_}")
        e(f"v_and_b32 v7, 0xffff0000, v{u_}")
        e("v_max_f32 v4, 0, v4")
        e("v_max_f32 v5, 0, v5")
        e("v_mul_f32 v4, v4, v6")
        e("v_mul_f32 v5, v5, v7")
        e(f"v_cvt_pk_bf16_f32 v{8+2*u+k}, v4, v5")
for u in range(4): e(f"ds_write_b64 v20, v[{8+2*u}:{9+2*u}] offset:{u*544}")
lab("L_sv5")
ts(5)
e("s_waitcnt lgkmcnt(0)")
e("s_barrier")
lab("L_sv3")
if DIAG:
    e(f"s_mov_b32 s{sTS+12}, s{sCNT}")
    dump_ts(1, 7)
e("s_endpgm")

hdr = open("cdna_kernels/%s.s.ref" % NAME).read().split("; Override launch")[0]
out = hdr + f"; @launch grid=(256,1,1) block=(576,1,1) lds={LDS}\n"
out += f""".amdgcn_target "amdgcn-amd-amdhsa--gfx950"
.text
.globl {NAME}_kernel
.p2align 8
.type {NAME}_kernel,@function
{NAME}_kernel:
""" + "\n".join(L) + f"""
.section .rodata,"a"
.p2align 6
.amdhsa_kernel {NAME}_kernel
  .amdhsa_next_free_vgpr 164
  .amdhsa_next_free_sgpr 96
  .amdhsa_accum_offset 164
  .amdhsa_group_segment_fixed_size 0
  .amdhsa_kernarg_size 96
  .amdhsa_user_sgpr_count 2
  .amdhsa_user_sgpr_kernarg_segment_ptr 1
  .amdhsa_system_sgpr_workgroup_id_x 1
.end_amdhsa_kernel
"""
open(sys.argv[1], "w").write(out)
```

```python
import sys
NAME = "recurrent_scan__sliding_block_cached__glu_gated_reglu__decode"
opt = dict(diag=0, nt=1, spin=5000, sleep=4, prio=3, th=63, qpipe=1, qsleep=4, k1=4, b2b=1, opipe=1, osleep=1, spipe=1, ssleep=4, kprio=2, vs=5, va=8, vb=8, vc=8, wa=0, wb=0, wc=0, rot=3, opre=0, fpre=1, fsleep=8, lsleep=1, sq=0, qdelay=36, e3=0, loc=1, lm=15, qloc=1, qpt=0, slse=0, wd=0, fdelay=0, dsep=0, hold=1, v0=2, w1nt=0, w3nt=0, knt=255, vnt=255, rc=0)
for a in sys.argv[2:]:
    k, v = a.split("="); opt[k] = int(v)
DIAG = opt["diag"]; NT = ["", " nt", " sc1 nt", " sc0 sc1 nt", " sc1"][opt["nt"]]
L = []
def e(s): L.append("    " + s)
def lab(s): L.append(s + ":")
def c(s): L.append("    ; " + s)
WS_Y, WS_LSE, WS_OP, WS_SP, WS_DP, WS_DIAG = 0x1000, 0x40000, 0x50000, 0x100000, 0x200000, 0x400000
YROW = 30720
W1 = 65536; SLAB = W1; SLAB2 = W1 + 16384; P1S = W1 + 32768; XN = P1S + 8192; QB = XN + 8320; HB = QB + 1088; OB = HB + 2176
MB = OB + 2176; LB = MB + 128; ZB = LB + 128; FB = HB + 1024; W3 = (ZB + 256 + 1023) & ~1023; LDS = W3 + 32768
sX, sK, sV, sWQ, sWO, sG, sU, sD, sOUT, sWS = 4, 6, 8, 10, 12, 16, 18, 20, 22, 26
sID, sW, sTAG, sROLE = 28, 29, 30, 31
sB = 32
sB2 = 34
sSTR, sT0, sT1, sT2, sCNT = 36, 37, 38, 39, 40
sPL, sPH = 41, 42
sM = 44
sM2 = 46
sU_ = 48
sWA, sP = 54, 56
sTS = 64
vL, vG, vI = 1, 2, 3
WR, VR, TT, DD = 32, 64, 96, 128
nts = [0]
def ts(k):
    if DIAG: e(f"s_memrealtime s[{sTS+2*k}:{sTS+2*k+1}]")
def dump_ts(slot, n):
    if not DIAG: return
    e("s_waitcnt lgkmcnt(0)")
    if DIAG == 3:
        if slot: return
        nts[0] += 1
        e(f"s_cmp_lg_u32 s{sID}, {opt.get('swg', 0)}")
        e("s_cbranch_scc1 L_end")
        e(f"s_sub_u32 s{sT0}, s{sTS+2*opt['sk']}, s{sTS}")
        e(f"s_mul_i32 s{sT0}, s{sT0}, 10")
        e(f"s_add_u32 s{sT0}, s{sT0}, 3000")
        e(f"s_min_u32 s{sT0}, s{sT0}, 40000")
        lab(f"L_spin{nts[0]}")
        e("s_memrealtime s[4:5]")
        e("s_waitcnt lgkmcnt(0)")
        e(f"s_sub_u32 s4, s4, s{sTS}")
        e(f"s_cmp_lt_u32 s4, s{sT0}")
        e(f"s_cbranch_scc1 L_spin{nts[0]}")
        return
    if DIAG == 2:
        if slot: return
        e("s_mov_b64 exec, 1")
        e("v_mov_b32 v4, 0")
        e(f"s_not_b32 s{sT0}, s{sTS}")
        e(f"v_mov_b32 v5, s{sT0}")
        e("global_atomic_umax v4, v5, s[24:25] sc1")
        for k in range(n):
            e(f"v_mov_b32 v5, s{sTS+2*k}")
            e(f"s_cmp_lt_u32 s{sID}, 240")
            e(f"s_cbranch_scc0 L_dd{nts[0]}_{k}")
            e(f"global_atomic_umax v4, v5, s[24:25] offset:{4*k+4} sc1")
            lab(f"L_dd{nts[0]}_{k}")
        nts[0] += 1
        return
    e(f"s_lshl_b32 s{sT0}, s{sID}, 8")
    e(f"s_add_u32 s{sT0}, s{sT0}, {WS_DIAG + slot*64}")
    e(f"v_mov_b32 v4, s{sT0}")
    e("s_mov_b64 exec, 1")
    for k in range(n):
        e(f"v_mov_b32 v5, s{sTS+2*k}")
        e(f"global_store_dword v4, v5, s[{sWS}:{sWS+1}] offset:{4*k}")
    e("s_getreg_b32 s37, hwreg(HW_REG_XCC_ID)")
    e("v_mov_b32 v5, s37")
    e(f"global_store_dword v4, v5, s[{sWS}:{sWS+1}] offset:60")
    e("s_getreg_b32 s37, hwreg(HW_REG_HW_ID)")
    e("v_mov_b32 v5, s37")
    e(f"global_store_dword v4, v5, s[{sWS}:{sWS+1}] offset:56")
def base(dst, src, off):
    e(f"s_add_u32 s{dst}, s{src}, {off}")
    e(f"s_addc_u32 s{dst+1}, s{src+1}, 0")
def transpose(src, dst):
    for q in range(4):
        for j in range(4):
            a, b = src + 8*j + q, src + 8*j + 4 + q
            e(f"v_perm_b32 v{dst+8*q+j}, v{b}, v{a}, s{sPL}")
            e(f"v_perm_b32 v{dst+8*q+4+j}, v{b}, v{a}, s{sPH}")
def mfma(d, a, b, cc):
    cs = "0" if cc is None else f"v[{cc}:{cc+3}]"
    e(f"v_mfma_f32_16x16x32_bf16 v[{d}:{d+3}], v[{a}:{a+3}], v[{b}:{b+3}], {cs}")
def xlane(op, v, t, full=False, half=False):
    if full:
        for m in ["quad_perm:[1,0,3,2]", "quad_perm:[2,3,0,1]", "row_half_mirror", "row_mirror"]:
            e("s_nop 1")
            e(f"{op}_dpp v{v}, v{v}, v{v} {m} row_mask:0xf bank_mask:0xf")
    if half:
        e("s_nop 1")
        e(f"{op}_dpp v{v}, v{v}, v{v} row_ror:8 row_mask:0xf bank_mask:0xf")
    for sw in ["v_permlane16_swap_b32", "v_permlane32_swap_b32"]:
        e(f"v_mov_b32 v{t}, v{v}")
        e("s_nop 1")
        e(f"{sw} v{v}, v{t}")
        e("s_nop 0")
        e(f"{op} v{v}, v{v}, v{t}")
def rbf(v):
    e(f"v_cvt_pk_bf16_f32 v{v}, 0, v{v}")
def locinit():
    base(sWA, sWS, 0x300000 if opt["loc"] else 0)
    e(f"s_mov_b64 s[{sP}:{sP+1}], s[{sWA}:{sWA+1}]")
def locsel(f):
    if not opt["loc"]: return
    e(f"s_and_b32 s{sT0}, s{sCNT}, {opt['lm']}")
    e(f"s_cselect_b64 s[{sP}:{sP+1}], s[{sWA}:{sWA+1}], s[{sWS}:{sWS+1}]")
    if f is not True:
        nts[0] += 1
        e(f"s_cbranch_scc1 L_ls{nts[0]}")
        f()
        lab(f"L_ls{nts[0]}")
def tagcheck(regs, t0, t1, lfail_loop, name, sl=None, loc=False):
    sl = opt["sleep"] if sl is None else sl
    e(f"v_min3_u32 v{t0}, v{regs[0]}, v{regs[1]}, v{regs[1]}")
    e(f"v_max3_u32 v{t1}, v{regs[0]}, v{regs[1]}, v{regs[1]}")
    for k in range(2, len(regs), 2):
        e(f"v_min3_u32 v{t0}, v{t0}, v{regs[k]}, v{regs[k+1]}")
        e(f"v_max3_u32 v{t1}, v{t1}, v{regs[k]}, v{regs[k+1]}")
    e(f"v_cmp_ne_u32 vcc, s{sTAG}, v{t0}")
    e(f"v_cmp_ne_u32 s[{sM}:{sM+1}], s{sTAG}, v{t1}")
    e(f"s_or_b64 vcc, vcc, s[{sM}:{sM+1}]")
    e(f"s_cbranch_scc0 {name}_ok")
    e(f"s_sub_u32 s{sCNT}, s{sCNT}, 1")
    if loc: locsel(loc)
    if sl: e(f"s_sleep {sl}")
    e(f"s_cmp_gt_i32 s{sCNT}, 0")
    e(f"s_cbranch_scc1 {lfail_loop}")
    lab(f"{name}_ok")
def tagcmp(regs, okl):
    e(f"v_min_u32 v4, v{regs[0]}, v{regs[1]}")
    e(f"v_max_u32 v5, v{regs[0]}, v{regs[1]}")
    for k in range(2, len(regs), 2):
        e(f"v_min3_u32 v4, v4, v{regs[k]}, v{regs[k+1]}")
        e(f"v_max3_u32 v5, v5, v{regs[k]}, v{regs[k+1]}")
    e(f"v_cmp_ne_u32 vcc, s{sTAG}, v4")
    e(f"v_cmp_ne_u32 s[{sM}:{sM+1}], s{sTAG}, v5")
    e(f"s_or_b64 vcc, vcc, s[{sM}:{sM+1}]")
    e(f"s_cbranch_scc0 {okl}")
def ppoll(name, D, n, issue, tags, cont, sl, pre=0, loc=False):
    if pre == D: e(f"s_branch {name}_in")
    for j in range(pre, D-1):
        issue(j)
        if sl: e(f"s_sleep {sl}")
    lab(name)
    for j in range(D):
        issue((j+D-1) % D)
        if j == 0 and pre == D: lab(f"{name}_in")
        e(f"s_waitcnt vmcnt({n*(D-1)})")
        tagcmp(tags(j), f"{name}_{j}")
        if sl: e(f"s_sleep {sl}")
    e(f"s_sub_u32 s{sCNT}, s{sCNT}, 1")
    if loc: locsel(loc)
    e(f"s_cmp_gt_i32 s{sCNT}, 0")
    e(f"s_cbranch_scc1 {name}")
    for j in range(D-1, -1, -1):
        lab(f"{name}_{j}")
        cont(j)
        if j: e(f"s_branch {name}_done")
    lab(f"{name}_done")
TH = opt["th"]; K1 = opt["k1"]
def thr():
    if TH < 63: e(f"s_waitcnt vmcnt({TH-1})")
def tagfix():
    e(f"s_mul_i32 s{sTAG}, s{sTAG}, 0x9E3779B1")
    e(f"s_add_u32 s{sTAG}, s{sTAG}, 0x7F4A7C15")
def kdma(lo, hi):
    for jj in range(lo, hi):
        if jj == 4:
            e(f"s_add_u32 s{sT2}, s{sKM}, 4096")
            e(f"s_mov_b32 m0, s{sT2}")
            for q in range(4): e(f"v_add_u32 v{16+q}, s{sKS}, v{16+q}" if opt["rc"] else f"v_xor_b32 v{16+q}, 0x1000, v{16+q}")
        if lo and opt.get("thk"): thr()
        e(f"global_load_lds_dwordx4 v{16+(jj&3)}, s[{sK}:{sK+1}] offset:{(jj&3)*1024}" + (NT if (opt["knt"] >> jj) & 1 else ""))
sKM, sTILE, sHB, sA = 49, 50, 51, 52
LOC = opt["loc"]
sSP = 53; sKS = 58; E3 = opt["e3"]
WP = [0, opt["wa"], opt["wb"], opt["wc"], 4]
def w3(p):
    if WP[p] == WP[p+1]: return
    e(f"s_cmp_lg_u32 s{sROLE}, 0")
    e(f"s_cbranch_scc0 L_now3{p}")
    for jj in range(WP[p], WP[p+1]):
        e(f"global_load_lds_dwordx4 v25, s[{sB2}:{sB2+1}] offset:{jj*1024}" + ["", " nt"][opt["w3nt"]])
        if jj < 3: e(f"v_add_u32 v25, 3072, v25")
        if jj == 1: e("v_xor_b32 v25, 0x80, v25")
    lab(f"L_now3{p}")
def w3addr():
    c("phase-3 role: wo (id>=128) or down (id<56); W3 dma base sB2, voff v25; tr addr v27; operand addr v28; publish v26")
    e(f"s_sub_u32 s{sT1}, s{sID}, 56")
    e(f"s_cmp_lt_u32 s{sT1}, 72")
    e(f"s_cselect_b32 s{sROLE}, 0, 1")
    e(f"s_cmp_lt_u32 s{sID}, 128")
    e(f"s_cselect_b64 s[{sB2}:{sB2+1}], s[{sD}:{sD+1}], s[{sWO}:{sWO+1}]")
    e(f"s_mov_b32 s{sSP}, {WS_SP}")
    e(f"s_cselect_b32 s{sSP}, {WS_DP}, s{sSP}")
    e(f"s_lshr_b32 s{sT1}, s{sU_}, 2")
    e(f"s_lshl_b32 s{sT0}, s{sT1}, 17")
    e(f"s_lshl_b32 s{sT1}, s{sT1}, 8")
    e(f"s_add_u32 s{sSP}, s{sSP}, s{sT1}")
    e(f"s_lshl_b32 s{sT1}, s{sW}, 14")
    e(f"s_add_u32 s{sT0}, s{sT0}, s{sT1}")
    e(f"s_and_b32 s{sT1}, s{sU_}, 3")
    e(f"s_lshl_b32 s{sT2}, s{sT1}, 8")
    e(f"s_add_u32 s{sT0}, s{sT0}, s{sT2}")
    base(sB2, sB2, f"s{sT0}")
    e(f"v_lshlrev_b32 v4, 1, v{vG}")
    e(f"v_xor_b32 v4, v4, v{vI}")
    e("v_lshlrev_b32 v4, 4, v4")
    e(f"v_lshl_add_u32 v25, v{vG}, 10, v4")
    e(f"s_lshl_b32 s{sT2}, s{sW}, 12")
    e(f"s_add_u32 s{sT2}, s{sT2}, {W3}")
    e(f"s_mov_b32 m0, s{sT2}")
def vwait(n, nm):
    e(f"s_cbranch_scc1 {nm}")
    e(f"s_waitcnt vmcnt({n})")
    lab(nm)
    e(f"s_waitcnt vmcnt({n+4})")
e("s_load_dwordx16 s[4:19], s[0:1], 0")
e("s_load_dwordx8 s[20:27], s[0:1], 64")
ts(0)
e("s_cmp_ge_u32 s2, 256")
e("s_cbranch_scc1 L_end")
e(f"s_mov_b32 s{sID}, s2")
e("v_lshrrev_b32 v4, 6, v0")
e(f"v_and_b32 v{vL}, 63, v0")
e(f"v_readfirstlane_b32 s{sW}, v4")
e(f"v_bfe_u32 v{vG}, v0, 4, 2")
e(f"v_and_b32 v{vI}, 15, v0")
e(f"s_mov_b32 s{sCNT}, {opt['spin']}")
c("phase-1 tile T = (id&~15) | (id&7)<<1 | (id>>3)&1")
e(f"s_and_b32 s{sT0}, s{sID}, 7")
e(f"s_lshl_b32 s{sT0}, s{sT0}, 1")
e(f"s_bfe_u32 s{sT1}, s{sID}, 0x10003")
e(f"s_or_b32 s{sT0}, s{sT0}, s{sT1}")
e(f"s_and_b32 s{sT1}, s{sID}, 0xf0")
e(f"s_or_b32 s{sTILE}, s{sT0}, s{sT1}")
c("X = (id&7)<<4 | (id>>3)&15 : q tile (id<128) or wo unit (id>=128); attention id A = b<<5 | (id&7)<<2 | (id>>3)&3")
e(f"s_and_b32 s{sT0}, s{sID}, 7")
e(f"s_bfe_u32 s{sT1}, s{sID}, 0x40003")
e(f"s_lshl4_add_u32 s{sT2}, s{sT0}, s{sT1}")
e(f"s_and_b32 s{sT1}, s{sT1}, 3")
e(f"s_lshl2_add_u32 s{sT0}, s{sT0}, s{sT1}")
e(f"s_and_b32 s{sT1}, s{sID}, 0xe0")
e(f"s_or_b32 s{sA}, s{sT0}, s{sT1}")
e(f"s_cmp_lt_u32 s{sID}, 128")
if opt["qloc"]: e(f"s_cselect_b32 s{sTILE}, s{sT2}, s{sTILE}")
e(f"s_cselect_b32 s{sU_}, s{sID}, s{sT2}")
e(f"s_movk_i32 s{sSTR}, 3584")
e(f"s_cmp_lt_u32 s{sID}, 128")
e(f"s_cselect_b32 s{sSTR}, 8192, s{sSTR}")
e(f"v_lshrrev_b32 v4, 2, v{vL}")
e(f"v_mul_u32_u24 v12, s{sSTR}, v4")
e(f"v_and_b32 v4, 3, v{vL}")
e("v_lshl_add_u32 v12, v4, 4, v12")
e(f"s_lshl_b32 s{sT0}, s{sW}, 10")
e(f"v_lshl_add_u32 v13, v{vL}, 4, s{sT0}")
e(f"s_lshl_b32 s{sKM}, s{sW}, 13")
e(f"s_lshl_b32 s{sT2}, s{sW}, 12")
e(f"s_add_u32 s{sT2}, s{sT2}, {W1}")
e(f"s_mov_b32 m0, s{sT2}")
e(f"s_lshl_b32 s{sT1}, s{sW}, 6")
e(f"s_mul_i32 s{sT1}, s{sT1}, s{sSTR}")
e(f"s_cmp_lt_u32 s{sTILE}, 184")
e(f"s_cselect_b32 s{sT0}, 0, 56")
e(f"s_and_b32 s{sT2}, s{sTILE}, 127")
e(f"s_sub_u32 s{sT0}, s{sT2}, s{sT0}")
e(f"s_lshl_b32 s{sT0}, s{sT0}, 6")
e(f"s_add_u32 s{sT1}, s{sT1}, s{sT0}")
e(f"s_lshl_b32 s{sT2}, s{sSTR}, 4")
e(f"s_sub_u32 s{sT2}, s{sT2}, 1024")
e("s_waitcnt lgkmcnt(0)")
ts(1)
e(f"s_load_dword s{sTAG}, s[{sWS}:{sWS+1}], 0")
e(f"s_cmp_eq_u32 s{sW}, 8")
e("s_cbranch_scc1 L_service")
e(f"s_cmp_ge_u32 s{sID}, 240")
e("s_cbranch_scc1 L_now1")
if opt.get("wprio"): e("s_setprio 2")
e(f"global_load_dwordx4 v[8:11], v13, s[{sX}:{sX+1}]")
e(f"s_cmp_lt_u32 s{sTILE}, 184")
e(f"s_cselect_b64 s[{sB}:{sB+1}], s[{sG}:{sG+1}], s[{sU}:{sU+1}]")
e(f"s_cmp_lt_u32 s{sID}, 128")
e(f"s_cselect_b64 s[{sB}:{sB+1}], s[{sWQ}:{sWQ+1}], s[{sB}:{sB+1}]")
base(sB, sB, f"s{sT1}")
for jj in range(4):
    e(f"global_load_lds_dwordx4 v12, s[{sB}:{sB+1}] offset:{jj*1024}" + ["", " nt", " sc1", " sc0 sc1", " sc1 nt", " sc0"][opt["w1nt"]])
    if jj < 3: e(f"v_add_u32 v12, s{sT2}, v12")
lab("L_now1")
if E3 == 2:
    if opt.get("wprio"): e("s_setprio 0")
    w3addr(); WP = [0, 4, 4, 4, 4]; w3(0); WP = [4]*5
c("KV slice offset: (id>>2)<<20 + 786432 + (id&3)<<16 + wave<<13")
e(f"s_lshr_b32 s{sT0}, s{sA}, 2")
e(f"s_lshl_b32 s{sT0}, s{sT0}, 20")
e(f"s_and_b32 s{sT1}, s{sA}, 3")
e(f"s_lshl_b32 s{sT1}, s{sT1}, 16")
e(f"s_add_u32 s{sT0}, s{sT0}, s{sT1}")
e(f"s_add_u32 s{sT0}, s{sT0}, 786432")
base(sK, sK, f"s{sT0}")
base(sV, sV, f"s{sT0}")
e(f"v_xor_b32 v16, v{vI}, v{vG}")
e("v_lshlrev_b32 v16, 4, v16")
e(f"v_lshl_add_u32 v16, v{vG}, 8, v16")
c("first 4 KB block of this wave: (2w + (w>>2)) ^ r ; the second one is ^1 (spreads the HBM stacks)")
e(f"s_lshr_b32 s{sHB}, s{sW}, 2")
e(f"s_lshl_b32 s{sT1}, s{sW}, 1")
e(f"s_or_b32 s{sHB}, s{sHB}, s{sT1}")
if opt["rot"]:
    e(f"s_bfe_u32 s{sT1}, s{sID}, {0x30000 + opt['rot']:#x}")
    e(f"s_xor_b32 s{sHB}, s{sHB}, s{sT1}")
e(f"s_lshl_b32 s{sHB}, s{sHB}, 12")
RC = opt["rc"]
if RC:
    c("1 KB chunk order ^= c, row in chunk ^= c2 (c = w&3, c2 = (w+id>>3)&3): spreads the channels at any moment")
    e(f"s_and_b32 s{sT0}, s{sW}, 3")
    e(f"s_lshr_b32 s{sT1}, s{sID}, 3")
    e(f"s_add_u32 s{sT1}, s{sT1}, s{sW}")
    e(f"s_and_b32 s{sT1}, s{sT1}, 3")
    e(f"s_lshl2_add_u32 s{sT0}, s{sT0}, s{sT1}")
    e(f"s_lshl_b32 s{sT0}, s{sT0}, 8")
    e(f"s_or_b32 s{sHB}, s{sHB}, s{sT0}")
    e(f"v_xor_b32 v16, s{sHB}, v16")
    for q in range(1, 4):
        e(f"v_xor_b32 v{16+q}, {q*64 + q*1024:#x}, v16")
        e(f"v_subrev_u32 v{16+q}, {q*1024}, v{16+q}")
    for q in range(4): e(f"v_add_u32 v{16+q}, 0x1000, v{16+q}")
    e(f"s_sub_u32 s{sK}, s{sK}, 0x1000")
    e(f"s_subb_u32 s{sK+1}, s{sK+1}, 0")
    e(f"s_bitcmp1_b32 s{sHB}, 12")
    e(f"s_cselect_b32 s{sKS}, -4096, 4096") if False else None
    e(f"s_mov_b32 s{sKS}, 4096")
    e(f"s_cselect_b32 s{sKS}, -4096, s{sKS}")
else:
    e(f"v_or_b32 v16, s{sHB}, v16")
    e("v_xor_b32 v17, 64, v16")
    e("v_xor_b32 v18, 0x80, v16")
    e("v_xor_b32 v19, 0xc0, v16")
e(f"s_mov_b32 m0, s{sKM}")
ts(2)
e(f"s_cmp_ge_u32 s{sID}, 240")
e("s_cbranch_scc1 L_p1skip0")
c("layernorm of row w")
if E3 == 2:
    e(f"s_cmp_lg_u32 s{sROLE}, 0")
    vwait(4, "L_xw")
else: e(f"s_waitcnt vmcnt(4)")
ts(3)
for k in range(4):
    e(f"v_lshlrev_b32 v{TT+2*k}, 16, v{8+k}")
    e(f"v_and_b32 v{TT+2*k+1}, 0xffff0000, v{8+k}")
e(f"v_pk_add_f32 v[4:5], v[{TT}:{TT+1}], v[{TT+2}:{TT+3}]")
e(f"v_pk_add_f32 v[6:7], v[{TT+4}:{TT+5}], v[{TT+6}:{TT+7}]")
e("v_pk_add_f32 v[4:5], v[4:5], v[6:7]")
e("v_add_f32 v4, v4, v5")
xlane("v_add_f32", 4, 5, full=True)
e("v_mul_f32 v4, 0x3b000000, v4")
e(f"v_sub_f32 v5, v{TT}, v4")
e("v_mul_f32 v6, v5, v5")
for k in range(1, 8):
    e(f"v_sub_f32 v5, v{TT+k}, v4")
    e("v_fmac_f32 v6, v5, v5")
xlane("v_add_f32", 6, 5, full=True)
e("v_mul_f32 v6, 0x3b000000, v6")
rbf(4); rbf(6)
e("v_add_f32 v6, 0x3727c5ac, v6")
rbf(6)
e("v_sqrt_f32 v6, v6")
e("s_nop 0")
rbf(6)
e("v_rcp_f32 v6, v6")
for k in range(8): e(f"v_sub_f32 v{TT+k}, v{TT+k}, v4")
for k in range(4):
    e(f"v_cvt_pk_bf16_f32 v{8+k}, v{TT+2*k}, v{TT+2*k+1}")
    e(f"v_lshlrev_b32 v{TT+2*k}, 16, v{8+k}")
    e(f"v_and_b32 v{TT+2*k+1}, 0xffff0000, v{8+k}")
    e(f"v_mul_f32 v{TT+2*k}, v{TT+2*k}, v6")
    e(f"v_mul_f32 v{TT+2*k+1}, v{TT+2*k+1}, v6")
    e(f"v_cvt_pk_bf16_f32 v{8+k}, v{TT+2*k}, v{TT+2*k+1}")
e(f"s_mul_i32 s{sT0}, s{sW}, 1040")
e(f"s_add_u32 s{sT0}, s{sT0}, {XN}")
e(f"v_lshl_add_u32 v4, v{vL}, 4, s{sT0}")
e("ds_write_b128 v4, v[8:11]")
c("xn operand addresses (v6,v7), W tr-read address (v5), slab address (v4)")
e(f"v_and_b32 v5, 7, v{vI}")
e("v_mul_u32_u24 v4, 1040, v5")
e(f"v_lshl_add_u32 v4, v{vG}, 4, v4")
e(f"s_lshl_b32 s{sT0}, s{sW}, 7")
e(f"s_add_u32 s{sT0}, s{sT0}, {XN}")
e(f"v_add_u32 v4, s{sT0}, v4")
e(f"v_mov_b32 v5, {ZB}")
e(f"v_cmp_gt_u32 vcc, 8, v{vI}")
e(f"s_lshl_b32 s{sT0}, s{sW}, 12")
e(f"s_add_u32 s{sT0}, s{sT0}, {W1}")
e("v_cndmask_b32 v6, v5, v4, vcc")
e("v_cndmask_b32 v7, v4, v5, vcc")
e(f"v_lshrrev_b32 v4, 2, v{vI}")
e(f"v_lshl_add_u32 v4, v{vG}, 3, v4")
e(f"v_and_b32 v5, 3, v{vI}")
e("v_lshlrev_b32 v5, 3, v5")
e("v_lshl_add_u32 v5, v4, 6, v5")
e(f"v_add_u32 v5, s{sT0}, v5")
e(f"s_lshl_b32 s{sT0}, s{sW}, 10")
e(f"s_add_u32 s{sT0}, s{sT0}, {P1S}")
e(f"v_lshl_add_u32 v4, v{vL}, 4, s{sT0}")
e("s_waitcnt lgkmcnt(0)")
e("s_barrier")
for ks in range(2):
    for ct in range(2): e(f"ds_read_b128 v[{DD+8*ks+4*ct}:{DD+8*ks+4*ct+3}], v{6+ct} offset:{ks*64}")
kdma(0, K1)
if E3 == 2:
    e(f"s_cmp_lg_u32 s{sROLE}, 0")
    vwait(K1, "L_ww")
else: e(f"s_waitcnt vmcnt({K1})")
ts(4)
for ks in range(2):
    for ct in range(2):
        for hh in range(2):
            r = TT+8*ks+4*ct+2*hh
            e(f"ds_read_b64_tr_b16 v[{r}:{r+1}], v5 offset:{ks*2048+hh*256+ct*32}")
e("s_waitcnt lgkmcnt(0)")
for n in range(4): mfma(8, TT+4*n, DD+4*n, None if n == 0 else 8)
e("s_nop 7")
e("ds_write_b128 v4, v[8:11]")
e("s_waitcnt lgkmcnt(0)")
e("s_barrier")
if opt.get("b2b"): e("s_barrier")
e("s_branch L_p1skip")
lab("L_p1skip0")
kdma(0, K1)
lab("L_p1skip")
ts(5)
if opt.get("kprio"): e(f"s_setprio {opt['kprio']}")
kdma(K1, 8) if K1 else (kdma(0, 1), kdma(1, 8))
if opt.get("kprio"): e("s_setprio 0")
e(f"v_lshlrev_b32 v59, 10, v{vG}")
e(f"v_lshl_add_u32 v59, v{vI}, 4, v59")
e(f"v_xor_b32 v59, s{sHB}, v59")
e(f"v_xor_b32 v60, 0x1000, v59")
VS = opt["vs"]; VP = [opt["va"], opt["vb"], opt["vc"], 8]
def vload(lo, hi):
    for j in range(lo, hi):
        if RC:
            if j: e(f"v_xor_b32 v{60+(j&1)}, {(j&3)*256 + (j>>2)*4096:#x}, v59")
            e(f"global_load_dwordx4 v[{VR+4*j}:{VR+4*j+3}], v{60+(j&1) if j else 59}, s[{sV}:{sV+1}]{NT}")
            continue
        e(f"global_load_dwordx4 v[{VR+4*j}:{VR+4*j+3}], v{59+(j>>2)}, s[{sV}:{sV+1}] offset:{(j&3)*256}" + (NT if (opt["vnt"] >> j) & 1 else ""))
if E3 < 2: w3addr()
if E3 == 1: WP = [0, 4, 4, 4, 4]; w3(0); WP = [4]*5
V0 = opt["v0"] if opt["hold"] else VS
vload(0, V0)
if not opt["hold"]: ts(6)
c("address precompute")
e(f"s_mov_b32 s{sPL}, 0x05040100")
e(f"s_mov_b32 s{sPH}, 0x07060302")
e("s_waitcnt lgkmcnt(0)")
tagfix()
locinit()
e(f"s_and_b32 s{sT1}, s{sU_}, 3")
e(f"s_lshl_b32 s{sT1}, s{sT1}, 15")
e(f"s_add_u32 s{sSP}, s{sSP}, s{sT1}")
e(f"s_lshr_b32 s{sT1}, s{sW}, 1")
e(f"s_lshl_b32 s{sT1}, s{sT1}, 13")
e(f"s_add_u32 s{sSP}, s{sSP}, s{sT1}")
e(f"s_and_b32 s{sT1}, s{sW}, 1")
e(f"s_lshl_b32 s{sT1}, s{sT1}, 7")
e(f"s_add_u32 s{sSP}, s{sSP}, s{sT1}")
e(f"v_and_b32 v4, 7, v{vI}")
e(f"v_lshl_add_u32 v26, v4, 17, s{sSP}")
e(f"v_lshl_add_u32 v26, v{vG}, 5, v26")
e(f"v_lshrrev_b32 v5, 3, v{vI}")
e("v_lshl_add_u32 v26, v5, 4, v26")
e("v_mul_u32_u24 v28, 272, v4")
e(f"v_lshl_add_u32 v28, v{vG}, 4, v28")
e(f"v_add_u32 v28, {OB}, v28")
e(f"v_lshrrev_b32 v4, 2, v{vI}")
e(f"v_bfe_u32 v5, v{vI}, 1, 1")
e(f"s_lshl_b32 s{sT1}, s{sW}, 1")
e(f"v_or_b32 v5, s{sT1}, v5")
e("v_lshlrev_b32 v6, 1, v4")
e("v_xor_b32 v5, v5, v6")
e(f"v_and_b32 v6, 1, v{vG}")
e("v_lshlrev_b32 v6, 3, v6")
e("v_xor_b32 v5, v5, v6")
e(f"v_lshl_add_u32 v4, v{vG}, 3, v4")
e("v_lshlrev_b32 v4, 8, v4")
e("v_lshl_add_u32 v27, v5, 4, v4")
e(f"v_and_b32 v4, 1, v{vI}")
e("v_lshl_add_u32 v27, v4, 3, v27")
e(f"v_add_u32 v27, {W3}, v27")
e(f"v_cmp_lt_u32 s[{sM2}:{sM2+1}], 7, v{vI}")
e(f"v_xor_b32 v16, v{vI}, v{vG}")
e("v_lshlrev_b32 v16, 4, v16")
e(f"v_lshl_add_u32 v16, v{vI}, 8, v16")
e(f"v_add_u32 v16, s{sKM}, v16")
e("v_xor_b32 v17, 64, v16")
e("v_xor_b32 v18, 0x80, v16")
e("v_xor_b32 v19, 0xc0, v16")
e(f"v_and_b32 v22, 3, v{vI}")
e("v_mul_u32_u24 v23, 272, v22")
e(f"v_lshl_add_u32 v23, v{vG}, 4, v23")
e(f"v_add_u32 v23, {QB}, v23")
e(f"v_lshlrev_b32 v4, 5, v22")
e(f"s_lshl_b32 s{sT2}, s{sW}, 2")
e(f"v_add_u32 v24, {MB}, v4")
e(f"v_add_u32 v29, s{sT2}, v24")
e(f"s_lshr_b32 s{sT0}, s{sU_}, 2")
e(f"s_lshl_b32 s{sT0}, s{sT0}, 3")
e(f"s_add_u32 s{sT0}, s{sT0}, s{sW}")
e(f"s_lshl_b32 s{sT1}, s{sT0}, 5")
e(f"s_add_u32 s{sT1}, s{sT1}, {WS_LSE}")
e(f"v_mov_b32 v57, s{sT1}")
e(f"s_lshl_b32 s{sT1}, s{sT0}, 11")
e(f"s_add_u32 s{sT1}, s{sT1}, {WS_OP}")
e(f"v_lshl_add_u32 v56, v{vL}, 3, s{sT1}")
c("obuf write address: b*272 + (16g+4r+2a+e2)*4, lane=(a,g,e2,r)")
e(f"v_bfe_u32 v4, v{vL}, 3, 2")
e("v_lshlrev_b32 v58, 6, v4")
e(f"v_and_b32 v4, 3, v{vL}")
e("v_lshl_add_u32 v58, v4, 4, v58")
e(f"v_lshrrev_b32 v4, 5, v{vL}")
e("v_lshl_add_u32 v58, v4, 3, v58")
e(f"v_and_b32 v4, 4, v{vL}")
e(f"s_mul_i32 s{sT0}, s{sW}, 272")
e(f"s_add_u32 s{sT0}, s{sT0}, {OB}")
e(f"v_add3_u32 v58, v58, v4, s{sT0}")
c("PV slab write v30, read v31, o publish v20")
e(f"s_lshl_b32 s{sT0}, s{sW}, 11")
e(f"s_add_u32 s{sT0}, s{sT0}, {SLAB}")
e(f"v_lshl_add_u32 v30, v{vL}, 4, s{sT0}")
e(f"v_lshlrev_b32 v31, 2, v0")
e(f"v_add_u32 v31, {SLAB}, v31")
e(f"v_bfe_u32 v4, v{vL}, 2, 2")
e("v_lshlrev_b32 v20, 14, v4")
e(f"v_lshrrev_b32 v4, 5, v{vL}")
e("v_lshl_add_u32 v20, v4, 5, v20")
e(f"v_and_b32 v4, 3, v{vL}")
e("v_lshl_add_u32 v20, v4, 3, v20")
e(f"s_bfe_u32 s{sT0}, s{sA}, 0x30002")
e(f"s_lshl_b32 s{sT0}, s{sT0}, 16")
e(f"s_lshr_b32 s{sT1}, s{sA}, 5")
e(f"s_lshl_b32 s{sT1}, s{sT1}, 11")
e(f"s_add_u32 s{sT0}, s{sT0}, s{sT1}")
e(f"s_and_b32 s{sT1}, s{sA}, 3")
e(f"s_lshl_b32 s{sT1}, s{sT1}, 9")
e(f"s_add_u32 s{sT0}, s{sT0}, s{sT1}")
e(f"s_lshl_b32 s{sT1}, s{sW}, 6")
e(f"s_add_u32 s{sT0}, s{sT0}, s{sT1}")
e(f"s_add_u32 s{sT0}, s{sT0}, {WS_OP}")
e(f"v_add_u32 v20, s{sT0}, v20")
if opt["hold"]:
    e("s_barrier")
    vload(V0, VS)
    ts(6)
if E3 == 1:
    e(f"s_cmp_lg_u32 s{sROLE}, 0")
    vwait(VS, "L_kw")
else: e(f"s_waitcnt vmcnt({VS})")
for t in range(2):
    for cc in range(4): e(f"ds_read_b128 v[{TT+16*t+4*cc}:{TT+16*t+4*cc+3}], v{16+cc} offset:{t*4096}")
e(f"s_mov_b32 s{sT0}, 0x3db504f3")
e(f"s_mov_b32 s{sT1}, 0x3fb8aa3b")
e("s_barrier")
ts(7)
for cc in range(4): e(f"ds_read_b128 v[{DD+4*cc}:{DD+4*cc+3}], v23 offset:{cc*64}")
e("s_waitcnt lgkmcnt(0)")
S = DD + 16
for cc in range(4):
    for t in range(2): mfma(S+4*t, TT+16*t+4*cc, DD+4*cc, None if cc == 0 else S+4*t)
vload(VS, VP[0])
w3(0)
e("s_nop 7")
for k in range(4): e(f"v_cvt_pk_bf16_f32 v{8+k}, v{S+2*k}, v{S+2*k+1}")
for k in range(4):
    e(f"v_lshlrev_b32 v{S+2*k}, 16, v{8+k}")
    e(f"v_and_b32 v{S+2*k+1}, 0xffff0000, v{8+k}")
for k in range(8): e(f"v_mul_f32 v{S+k}, s{sT0}, v{S+k}")
for k in range(4): e(f"v_cvt_pk_bf16_f32 v{8+k}, v{S+2*k}, v{S+2*k+1}")
for k in range(4):
    e(f"v_lshlrev_b32 v{S+2*k}, 16, v{8+k}")
    e(f"v_and_b32 v{S+2*k+1}, 0xffff0000, v{8+k}")
e(f"v_max3_f32 v6, v{S}, v{S+1}, v{S+2}")
e(f"v_max3_f32 v7, v{S+3}, v{S+4}, v{S+5}")
e(f"v_max3_f32 v6, v6, v{S+6}, v{S+7}")
e(f"v_max_f32 v6, v6, v7")
xlane("v_max_f32", 6, 7)
e(f"v_mul_f32 v23, s{sT1}, v6")
for k in range(8): e(f"v_fma_f32 v{S+k}, v{S+k}, s{sT1}, -v23")
for k in range(8): e(f"v_exp_f32 v{S+k}, v{S+k}")
e("s_nop 0")
e(f"v_pk_add_f32 v[4:5], v[{S}:{S+1}], v[{S+2}:{S+3}]")
e(f"v_pk_add_f32 v[6:7], v[{S+4}:{S+5}], v[{S+6}:{S+7}]")
e("v_pk_add_f32 v[4:5], v[4:5], v[6:7]")
e("v_add_f32 v7, v4, v5")
xlane("v_add_f32", 7, 8)
e("s_mov_b64 exec, 15")
e("ds_write2_b32 v29, v23, v7 offset0:0 offset1:32")
e("s_mov_b64 exec, -1")
vload(VP[0], VP[1])
w3(1)
e("s_waitcnt lgkmcnt(0)")
e("s_barrier")
vload(VP[1], VP[2])
w3(2)
def mlcomb():
    e("ds_read_b128 v[8:11], v24")
    e("ds_read_b128 v[12:15], v24 offset:16")
    e(f"ds_read_b128 v[{DD}:{DD+3}], v24 offset:128")
    e(f"ds_read_b128 v[{DD+4}:{DD+7}], v24 offset:144")
    e("s_waitcnt lgkmcnt(0)")
    e("v_max3_f32 v6, v8, v9, v10")
    e("v_max3_f32 v7, v11, v12, v13")
    e("v_max3_f32 v6, v6, v14, v15")
    e("v_max_f32 v6, v6, v7")
    for k in range(8): e(f"v_sub_f32 v{8+k}, v{8+k}, v6")
    for k in range(8): e(f"v_exp_f32 v{8+k}, v{8+k}")
    e(f"v_mul_f32 v7, v8, v{DD}")
    for k in range(1, 8): e(f"v_fmac_f32 v7, v{8+k}, v{DD+k}")
mlcomb()
e("v_sub_f32 v23, v23, v6")
e("v_rcp_f32 v8, v7")
e("v_exp_f32 v23, v23")
e(f"v_lshrrev_b32 v4, 2, v{vI}")
e("v_mul_f32 v23, v23, v8")
for k in range(8): e(f"v_mul_f32 v{S+k}, v23, v{S+k}")
for k in range(4): e(f"v_cvt_pk_bf16_f32 v{S+k}, v{S+2*k}, v{S+2*k+1}")
PM = DD + 20
for k in range(16): e(f"v_mov_b32 v{PM+k}, 0")
for cq in range(4):
    m = 0x000F000F << (4*cq)
    e(f"s_mov_b32 exec_lo, {m:#x}")
    e(f"s_mov_b32 exec_hi, {m:#x}")
    for k in range(0, 4, 2): e(f"v_pk_mov_b32 v[{PM+4*cq+k}:{PM+4*cq+k+1}], v[{S+k}:{S+k+1}], v[{S+k}:{S+k+1}] op_sel:[0,1]")
e("s_mov_b64 exec, -1")
e(f"v_mov_b32 v7, s{sTAG}")
ts(8)
vload(VP[2], 8)
WD = opt["wd"]
if not WD: w3(3)
e(f"s_cmp_lg_u32 s{sROLE}, 0")
for j in range(4):
    if WD == 2 and j == 3:
        w3(3); vwait(0, "L_vw3")
    elif E3 or WD: e(f"s_waitcnt vmcnt({6-2*j})")
    else: vwait(6-2*j, f"L_vw{j}")
    if j == 3: ts(9)
    for q in range(4):
        a, b = VR + 8*j + q, VR + 8*j + 4 + q
        e(f"v_perm_b32 v{TT+8*q+j}, v{b}, v{a}, s{sPL}")
        e(f"v_perm_b32 v{TT+8*q+4+j}, v{b}, v{a}, s{sPH}")
for cc in range(8): mfma(DD+4*(cc>>2), TT+4*cc, PM+4*(cc&3), None if (cc&3) == 0 else DD+4*(cc>>2))
e("s_nop 3")
e(f"ds_write_b128 v30, v[{DD}:{DD+3}]")
e("s_nop 2")
e(f"ds_write_b128 v30, v[{DD+4}:{DD+7}] offset:1024")
e("s_waitcnt lgkmcnt(0)")
e("s_barrier")
for k in range(4): e(f"ds_read2st64_b32 v[{8+2*k}:{9+2*k}], v31 offset0:{16*k} offset1:{16*k+8}")
e("s_waitcnt lgkmcnt(0)")
e("v_pk_add_f32 v[8:9], v[8:9], v[10:11]")
e("v_pk_add_f32 v[12:13], v[12:13], v[14:15]")
e("v_pk_add_f32 v[8:9], v[8:9], v[12:13]")
e("v_add_f32 v10, v8, v9")
e("v_add_f32 v11, v8, v9")
e("s_nop 1")
e("v_permlane16_swap_b32 v10, v11")
e("s_mov_b32 exec_lo, 0x0000FFFF")
e("s_mov_b32 exec_hi, 0x0000FFFF")
e("v_cvt_pk_bf16_f32 v6, v10, v11")
def ostoreB():
    e("s_mov_b32 exec_lo, 0x0000FFFF")
    e("s_mov_b32 exec_hi, 0x0000FFFF")
    e(f"global_store_dwordx2 v20, v[6:7], s[{sWS}:{sWS+1}] sc1")
    e("s_mov_b64 exec, -1")
if LOC: e(f"global_store_dwordx2 v20, v[6:7], s[{sWA}:{sWA+1}]")
else: e(f"global_store_dwordx2 v20, v[6:7], s[{sWS}:{sWS+1}] sc1")
e("s_mov_b64 exec, -1")
ts(10)
if WD == 1: w3(3)
def trread():
    for ks in range(4):
        for hh in range(2): e(f"ds_read_b64_tr_b16 v[{TT+4*ks+2*hh}:{TT+4*ks+2*hh+1}], v27 offset:{ks*8192+hh*1024}")
if E3: trread()
O = VR
e(f"s_cmp_lt_u32 s{sID}, 128")
e("s_cbranch_scc1 L_lo")
def lissue():
    for s_ in range(2): e(f"global_load_dwordx4 v[{O+4*s_}:{O+3+4*s_}], v57, s[{sP}:{sP+1}] offset:{s_*16} sc1")
def oissue(j):
    for s_ in range(4): e(f"global_load_dwordx2 v[{WR+8*j+2*s_}:{WR+8*j+2*s_+1}], v56, s[{sP}:{sP+1}] offset:{s_*512} sc1")
def ocont(j):
    R = WR+8*j
    for k in range(4):
        e(f"v_and_b32 v{R+2*k+1}, 0xffff0000, v{R+2*k}")
        e(f"v_lshlrev_b32 v{R+2*k}, 16, v{R+2*k}")
    e(f"v_pk_mul_f32 v[12:13], v[{R}:{R+1}], v[8:9] op_sel_hi:[1,0]")
    e(f"v_pk_mul_f32 v[14:15], v[{R+2}:{R+3}], v[8:9] op_sel:[0,1] op_sel_hi:[1,1]")
    e(f"v_pk_fma_f32 v[12:13], v[{R+4}:{R+5}], v[10:11], v[12:13] op_sel_hi:[1,0,1]")
    e(f"v_pk_fma_f32 v[14:15], v[{R+6}:{R+7}], v[10:11], v[14:15] op_sel:[0,1,0] op_sel_hi:[1,1,1]")
OD = opt["opipe"]
if opt["slse"]:
    PRE = 1
    oissue(0)
    e(f"s_lshl_b32 s{sT0}, s{sW}, 4")
    e(f"s_add_u32 s{sT0}, s{sT0}, {HB}")
    e(f"v_mov_b32 v4, s{sT0}")
    e("ds_read_b128 v[8:11], v4")
    e("s_waitcnt lgkmcnt(0)")
else:
    lab("L_lpoll")
    lissue()
    PRE = opt["opre"]
    if PRE: oissue(0)
    e(f"s_waitcnt vmcnt({4*PRE})")
    tagcheck([O+1+2*k for k in range(4)], 4, 5, "L_lpoll", "L_lp", opt["lsleep"], ostoreB)
    if LOC: e(f"s_mov_b64 s[{sP}:{sP+1}], s[{sWA}:{sWA+1}]")
    if not PRE: oissue(0); PRE = 1
    e(f"v_max3_f32 v4, v{O}, v{O+2}, v{O+4}")
    e(f"v_max_f32 v4, v4, v{O+6}")
    for k in range(4): e(f"v_sub_f32 v{8+k}, v{O+2*k}, v4")
    for k in range(4): e(f"v_exp_f32 v{8+k}, v{8+k}")
    e("s_nop 0")
    e("v_pk_add_f32 v[4:5], v[8:9], v[10:11]")
    e("v_add_f32 v4, v4, v5")
    e("v_rcp_f32 v4, v4")
    e("s_nop 0")
    for k in range(4): e(f"v_mul_f32 v{8+k}, v{8+k}, v4")
ppoll("L_op", OD, 4, oissue, lambda j: [WR+8*j+1+2*k for k in range(4)], ocont, opt["osleep"], PRE, ostoreB)
ts(11)
e("v_pk_add_f32 v[12:13], v[12:13], v[14:15]")
e("v_cvt_pk_bf16_f32 v12, v12, v13")
e("ds_write_b32 v58, v12")
if LOC: ostoreB()
e("s_waitcnt lgkmcnt(0)")
if not E3: lab("L_mf")
e("s_barrier")
if E3: lab("L_mf")
for ks in range(4): e(f"ds_read_b128 v[{DD+4*ks}:{DD+4*ks+3}], v28 offset:{ks*64}")
if not E3: trread()
e(f"v_mov_b32 v13, s{sTAG}")
e(f"v_mov_b32 v15, s{sTAG}")
for ks in range(4):
    e(f"s_waitcnt lgkmcnt({3-ks if E3 else 6-2*ks})")
    mfma(8, TT+4*ks, DD+4*ks, None if ks == 0 else 8)
e("s_nop 7")
e(f"v_cndmask_b32 v12, v8, v10, s[{sM2}:{sM2+1}]")
e(f"v_cndmask_b32 v14, v9, v11, s[{sM2}:{sM2+1}]")
e(f"global_store_dwordx4 v26, v[12:15], s[{sWS}:{sWS+1}] sc1")
e(f"s_cmp_lt_u32 s{sID}, 128")
e("s_cbranch_scc1 L_final")
ts(12)
if DIAG:
    e(f"s_cmp_lg_u32 s{sW}, 0")
    e("s_cbranch_scc1 L_end")
    dump_ts(0, 13)
e("s_endpgm")
lab("L_lo")
if LOC: ostoreB()
e(f"s_cmp_ge_u32 s{sID}, 56")
e("s_cbranch_scc1 L_final")
if not E3: e(f"s_waitcnt vmcnt({1 if WD == 1 else 1+(LOC>0)})")
e("s_branch L_mf")
lab("L_final")
e(f"s_cmp_lg_u32 s{sW}, 0")
e("s_cbranch_scc1 L_end")
e(f"s_lshl_b32 s{sT0}, s{sID}, 13")
e(f"s_add_u32 s{sT0}, s{sT0}, 4096")
e(f"v_lshl_add_u32 v16, v{vL}, 4, s{sT0}")
base(sB, sWS, WS_DP)
base(sB2, sWS, WS_SP)
e(f"s_lshl_b32 s{sT0}, s{sID}, 6")
e(f"v_lshl_add_u32 v17, v{vI}, 2, s{sT0}")
e(f"global_load_dword v18, v17, s[{sX}:{sX+1}]")
def fsum(R, n):
    e(f"v_add_f32 v8, v{R}, v{R+4}")
    e(f"v_add_f32 v9, v{R+2}, v{R+6}")
    e(f"v_add_f32 v10, v{R+8}, v{R+12}")
    e(f"v_add_f32 v11, v{R+10}, v{R+14}")
    for j in range(4, n):
        e(f"v_add_f32 v{8+2*(j&1)}, v{8+2*(j&1)}, v{R+4*j}")
        e(f"v_add_f32 v{9+2*(j&1)}, v{9+2*(j&1)}, v{R+4*j+2}")
def fred():
    e("v_pk_add_f32 v[8:9], v[8:9], v[10:11]")
    e("s_nop 1")
    e("v_permlane32_swap_b32 v8, v9")
    e("s_nop 0")
    e("v_add_f32 v8, v8, v9")
    e("v_mov_b32 v9, v8")
    e("s_nop 1")
    e("v_permlane16_swap_b32 v8, v9")
    e("s_nop 0")
    e("v_add_f32 v8, v8, v9")
    rbf(8)
e(f"v_mov_b32 v{DD+12}, 0")
e(f"v_mov_b32 v{DD+13}, s{sTAG}")
e(f"v_mov_b32 v{DD+14}, 0")
e(f"v_mov_b32 v{DD+15}, s{sTAG}")
if opt["fpre"]:
    c("cheap pre-wait: every workgroup has published its lse")
    e(f"v_lshlrev_b32 v6, 10, v{vG}")
    e(f"v_lshl_add_u32 v6, v{vI}, 4, v6")
    e(f"v_add_u32 v6, {WS_LSE + 4096}, v6")
    lab("L_fpoll")
    for u in range(2): e(f"global_load_dwordx4 v[{WR+4*u}:{WR+4*u+3}], v6, s[{sWS}:{sWS+1}] offset:{u*4096-4096} sc1")
    e("s_waitcnt vmcnt(0)")
    tagcheck([WR+1+2*k for k in range(4)], 4, 5, "L_fpoll", "L_fp", opt["fsleep"])
if opt["fdelay"]: e(f"s_sleep {opt['fdelay']}")
lab("L_dpoll")
for j in range(4):
    if j == 3: e("s_mov_b32 exec_hi, 0")
    e(f"global_load_dwordx4 v[{DD+4*j}:{DD+4*j+3}], v16, s[{sB}:{sB+1}] offset:{j*1024-4096} sc1")
e("s_mov_b32 exec_hi, -1")
def sissue(j):
    for k in range(8): e(f"global_load_dwordx4 v[{WR+32*j+4*k}:{WR+32*j+4*k+3}], v16, s[{sB2}:{sB2+1}] offset:{k*1024-4096} sc1")
if not opt["dsep"]: sissue(0)
e(f"s_waitcnt vmcnt({0 if opt['dsep'] else 8})")
tagcheck([DD+1+2*k for k in range(8)], 4, 5, "L_dpoll", "L_dp")
if opt["dsep"]: sissue(0)
SD = opt["spipe"]
fsum(DD, 4)
fred()
ts(11)
c("g = bf16(silu(d)); x half for this lane")
e("v_mul_f32 v10, 0xbfb8aa3b, v8")
e("v_exp_f32 v10, v10")
e("v_lshlrev_b32 v19, 16, v18")
e("v_add_f32 v10, 1.0, v10")
e("v_rcp_f32 v10, v10")
e("v_and_b32 v18, 0xffff0000, v18")
e("v_mul_f32 v20, v8, v10")
rbf(20)
e("s_mov_b32 exec_hi, 0")
e("v_mov_b32 v18, v19")
e("s_mov_b32 exec_hi, -1")
e(f"v_lshrrev_b32 v4, 5, v{vL}")
e("v_lshl_add_u32 v17, v4, 1, v17")
ppoll("L_sp", SD, 8, sissue, lambda j: [WR+32*j+1+2*k for k in range(16)], lambda j: fsum(WR+32*j, 8), opt["ssleep"], 1)
fred()
e("v_mul_f32 v8, v8, v20")
rbf(8)
e("v_add_f32 v8, v8, v18")
e("v_cvt_pk_bf16_f32 v8, v8, v8")
e("s_mov_b32 exec_lo, 0xffff")
e("s_mov_b32 exec_hi, 0xffff")
e(f"global_store_short v17, v8, s[{sOUT}:{sOUT+1}]" + ["", " sc1", " sc0 sc1", " nt"][opt.get("osc", 0)])
ts(12)
e(f"s_cmp_lg_u32 s{sID}, 0")
e("s_cbranch_scc1 L_fin2")
e("s_mov_b64 exec, 1")
e("v_mov_b32 v4, 0")
e(f"v_mov_b32 v5, s{sTAG}")
e(f"global_store_dword v4, v5, s[{sWS}:{sWS+1}]" + ["", " sc1", " sc0 sc1", " nt"][opt.get("osc", 0)])
lab("L_fin2")
dump_ts(0, 13)
lab("L_end")
e("s_endpgm")
lab("L_service")
if opt["prio"]: e(f"s_setprio {opt['prio']}")
e("v_mov_b32 v8, 0")
e(f"v_and_b32 v4, 31, v{vL}")
e("v_lshlrev_b32 v4, 2, v4")
e(f"v_add_u32 v4, {ZB}, v4")
e("ds_write_b32 v4, v8")
locinit()
if LOC > 1:
    c("bring the lines of the local o / lse copies of this head into L2")
    e(f"s_cmp_lt_u32 s{sID}, 128")
    e("s_cbranch_scc1 L_nopt")
    e(f"s_lshl_b32 s{sT0}, s{sU_}, 12")
    e(f"s_add_u32 s{sT0}, s{sT0}, {WS_OP}")
    e(f"v_lshl_add_u32 v5, v{vL}, 6, s{sT0}")
    e(f"global_load_dword v6, v5, s[{sWA}:{sWA+1}]")
    e(f"s_lshl_b32 s{sT0}, s{sU_}, 6")
    e(f"s_add_u32 s{sT0}, s{sT0}, {WS_LSE}")
    e(f"v_mov_b32 v5, s{sT0}")
    e(f"global_load_dword v7, v5, s[{sWA}:{sWA+1}]")
    lab("L_nopt")
c("q source: Y + b*YROW + hkv*2048 + lane*16 (+1024)")
e(f"s_lshr_b32 s{sT0}, s{sA}, 5")
e(f"s_mul_i32 s{sT0}, s{sT0}, {YROW}")
e(f"s_bfe_u32 s{sT1}, s{sA}, 0x30002")
e(f"s_lshl_b32 s{sT1}, s{sT1}, 11")
e(f"s_add_u32 s{sT0}, s{sT0}, s{sT1}")
e(f"s_add_u32 s{sT0}, s{sT0}, {WS_Y}")
e(f"v_lshl_add_u32 v16, v{vL}, 4, s{sT0}")
base(sB, sWA, f"s{sT0}")
if opt["qpt"]:
    for u in range(2): e(f"global_load_dwordx4 v[{WR+4*u}:{WR+4*u+3}], v16, s[{sWA}:{sWA+1}] offset:{u*1024}")
e(f"v_lshrrev_b32 v4, 5, v{vL}")
e("v_mul_u32_u24 v17, 272, v4")
e(f"v_and_b32 v4, 31, v{vL}")
e("v_lshl_add_u32 v17, v4, 3, v17")
e(f"v_add_u32 v17, {QB}, v17")
c("h source v26..v29, h dest v20")
e(f"s_lshr_b32 s{sT0}, s{sU_}, 2")
e(f"s_lshl_b32 s{sT0}, s{sT0}, 9")
e(f"s_add_u32 s{sT0}, s{sT0}, {WS_Y + 16384 + 3584}")
e(f"v_lshrrev_b32 v5, 5, v{vL}")
e(f"v_mul_u32_u24 v26, {YROW}, v5")
e(f"v_lshl_add_u32 v26, v4, 4, v26")
e(f"v_add_u32 v26, s{sT0}, v26")
for j in range(1, 4): e(f"v_add_u32 v{26+j}, {2*j*YROW}, v26")
e(f"v_add_u32 v20, {OB - QB}, v17")
c("slab read v21, Y publish v22, ml read v24, lse publish v25")
e(f"v_lshlrev_b32 v21, 4, v{vL}")
e(f"v_add_u32 v21, {P1S}, v21")
e(f"v_and_b32 v4, 7, v{vI}")
e(f"v_mul_u32_u24 v22, {YROW}, v4")
e(f"v_lshrrev_b32 v4, 3, v{vI}")
e("v_lshl_add_u32 v22, v4, 6, v22")
e(f"v_lshl_add_u32 v22, v{vG}, 4, v22")
e(f"s_lshl_b32 s{sT0}, s{sTILE}, 7")
e(f"s_add_u32 s{sT0}, s{sT0}, {WS_Y}")
e(f"v_add_u32 v22, s{sT0}, v22")
e(f"v_and_b32 v4, 3, v{vI}")
e("v_lshlrev_b32 v24, 5, v4")
e(f"v_add_u32 v24, {MB}, v24")
e(f"s_bfe_u32 s{sT0}, s{sA}, 0x30002")
e(f"s_lshl_b32 s{sT0}, s{sT0}, 10")
e(f"s_and_b32 s{sT1}, s{sID}, 0xe0")
e(f"s_add_u32 s{sT0}, s{sT0}, s{sT1}")
e(f"s_and_b32 s{sT1}, s{sA}, 3")
e(f"s_lshl_b32 s{sT1}, s{sT1}, 3")
e(f"s_add_u32 s{sT0}, s{sT0}, s{sT1}")
e(f"s_add_u32 s{sT0}, s{sT0}, {WS_LSE}")
e(f"v_lshl_add_u32 v25, v4, 8, s{sT0}")
e("s_waitcnt lgkmcnt(0)")
tagfix()
e(f"v_mov_b32 v13, s{sTAG}")
e(f"v_mov_b32 v15, s{sTAG}")
e(f"s_cmp_ge_u32 s{sID}, 240")
e("s_cbranch_scc1 L_sv1")
e("s_barrier")
e("s_barrier")
for p in range(8): e(f"ds_read_b128 v[{TT+4*p}:{TT+4*p+3}], v21 offset:{p*1024}")
for p in range(4):
    e(f"s_waitcnt lgkmcnt({3-p})")
    for k in (0, 2): e(f"v_pk_add_f32 v[{TT+4*p+k}:{TT+4*p+k+1}], v[{TT+4*p+k}:{TT+4*p+k+1}], v[{TT+16+4*p+k}:{TT+16+4*p+k+1}]")
for p in range(2):
    for k in (0, 2): e(f"v_pk_add_f32 v[{TT+4*p+k}:{TT+4*p+k+1}], v[{TT+4*p+k}:{TT+4*p+k+1}], v[{TT+8+4*p+k}:{TT+8+4*p+k+1}]")
for k in (0, 2): e(f"v_pk_add_f32 v[{TT+k}:{TT+k+1}], v[{TT+k}:{TT+k+1}], v[{TT+4+k}:{TT+4+k+1}]")
e(f"v_cvt_pk_bf16_f32 v12, v{TT}, v{TT+1}")
e(f"v_cvt_pk_bf16_f32 v14, v{TT+2}, v{TT+3}")
QL = LOC and opt["qloc"]
if QL: e(f"global_store_dwordx4 v22, v[12:15], s[{sWA}:{sWA+1}]")
e(f"global_store_dwordx4 v22, v[12:15], s[{sWS}:{sWS+1}] sc1")
if opt.get("b2b"): e("s_barrier")
lab("L_sv1")
ts(2)
D = opt["qpipe"]
def qissue(j):
    for u in range(2): e(f"global_load_dwordx4 v[{WR+8*j+4*u}:{WR+8*j+4*u+3}], v16, s[{sP if QL else sWS}:{(sP if QL else sWS)+1}] offset:{u*1024} sc1")
def qwrite(j):
    e(f"ds_write2_b32 v17, v{WR+8*j}, v{WR+8*j+2} offset0:0 offset1:1")
    e(f"ds_write2_b32 v17, v{WR+8*j+4}, v{WR+8*j+6} offset0:136 offset1:137")
if opt["qdelay"]: e(f"s_sleep {opt['qdelay']}")
if opt["sq"]:
    c("scalar pre-wait: one tag of each of the 16 producers")
    e(f"s_mov_b32 s{sT2}, 40")
    lab("L_sq")
    for p in range(16): e(f"s_load_dword s{4+p}, s[{sB}:{sB+1}], {128*p+4} glc")
    e("s_waitcnt lgkmcnt(0)")
    e(f"s_xor_b32 s{sT0}, s4, s{sTAG}")
    for p in range(1, 16):
        e(f"s_xor_b32 s{sT1}, s{4+p}, s{sTAG}")
        e(f"s_or_b32 s{sT0}, s{sT0}, s{sT1}")
    e("s_cbranch_scc0 L_sqok")
    e(f"s_sub_u32 s{sT2}, s{sT2}, 1")
    if opt["sq"] > 1: e(f"s_sleep {opt['sq']}")
    e(f"s_cmp_gt_i32 s{sT2}, 0")
    e("s_cbranch_scc1 L_sq")
    lab("L_sqok")
    ts(1)
if opt["hold"]:
    qissue(0)
    e("s_barrier")
ppoll("L_qp", D, 2, qissue, lambda j: [WR+8*j+1+2*k for k in range(4)], qwrite, opt["qsleep"], opt["hold"], True)
ts(4)
def hissue():
    for u in range(4):
        e(f"global_load_dwordx4 v[{VR+8*u}:{VR+8*u+3}], v{26+u}, s[{sWS}:{sWS+1}] offset:-3584 sc1")
        e(f"global_load_dwordx4 v[{VR+8*u+4}:{VR+8*u+7}], v{26+u}, s[{sWS}:{sWS+1}] offset:3584 sc1")
e("s_waitcnt lgkmcnt(0)")
e("s_barrier")
e(f"s_cmp_ge_u32 s{sID}, 56")
e("s_cbranch_scc1 L_sv2")
hissue()
lab("L_sv2")
if opt["slse"]:
    c("split weights of this head: lanes 0..31 = (b, split)")
    e(f"s_mov_b64 s[{sP}:{sP+1}], s[{sWA}:{sWA+1}]")
    e(f"s_lshr_b32 s{sT0}, s{sU_}, 2")
    e(f"s_lshl_b32 s{sT0}, s{sT0}, 8")
    e(f"s_add_u32 s{sT0}, s{sT0}, {WS_LSE}")
    e(f"v_and_b32 v6, 31, v{vL}")
    e(f"v_lshl_add_u32 v16, v6, 3, s{sT0}")
    e(f"v_lshlrev_b32 v17, 2, v6")
    e(f"v_add_u32 v17, {HB}, v17")
e("s_barrier")
mlcomb()
e("v_log_f32 v7, v7")
e(f"v_mov_b32 v9, s{sTAG}")
e("v_add_f32 v8, v6, v7")
e("s_mov_b64 exec, 15")
if LOC: e(f"global_store_dwordx2 v25, v[8:9], s[{sWA}:{sWA+1}]")
if opt["slse"]:
    e(f"s_cmp_lt_u32 s{sID}, 128")
    e("s_cbranch_scc1 L_sv6")
    e("s_mov_b64 exec, -1")
    e(f"global_load_dwordx2 v[12:13], v16, s[{sP}:{sP+1}] sc1")
    e("s_mov_b64 exec, 15")
    lab("L_sv6")
e(f"global_store_dwordx2 v25, v[8:9], s[{sWS}:{sWS+1}] sc1")
e("s_mov_b64 exec, -1")
ts(3)
if opt["slse"]:
    e(f"s_cmp_lt_u32 s{sID}, 128")
    e("s_cbranch_scc1 L_sv4")
    e("s_waitcnt vmcnt(1)")
    e("s_branch L_slc")
    lab("L_slp")
    e(f"global_load_dwordx2 v[12:13], v16, s[{sP}:{sP+1}] sc1")
    e("s_waitcnt vmcnt(0)")
    lab("L_slc")
    tagcheck([13, 13], 4, 5, "L_slp", "L_sl", opt["lsleep"], True)
    e("v_mov_b32 v10, v12")
    for m in ["quad_perm:[1,0,3,2]", "quad_perm:[2,3,0,1]"]:
        e("s_nop 1")
        e(f"v_max_f32_dpp v10, v10, v10 {m} row_mask:0xf bank_mask:0xf")
    e("v_sub_f32 v8, v12, v10")
    e("v_exp_f32 v8, v8")
    e("s_nop 0")
    e("v_mov_b32 v10, v8")
    for m in ["quad_perm:[1,0,3,2]", "quad_perm:[2,3,0,1]"]:
        e("s_nop 1")
        e(f"v_add_f32_dpp v10, v10, v10 {m} row_mask:0xf bank_mask:0xf")
    e("v_rcp_f32 v10, v10")
    e("s_nop 0")
    e("v_mul_f32 v8, v8, v10")
    e("ds_write_b32 v17, v8")
    e("s_branch L_sv5")
    lab("L_sv4")
e(f"s_cmp_ge_u32 s{sID}, 56")
e("s_cbranch_scc1 L_sv3")
e(f"s_waitcnt vmcnt({1+(LOC>0)})")
e("s_branch L_hchk")
lab("L_hpoll")
hissue()
e("s_waitcnt vmcnt(0)")
lab("L_hchk")
tagcheck([VR+1+2*k for k in range(16)], 4, 5, "L_hpoll", "L_hp")
for u in range(4):
    for k in range(2):
        g_, u_ = VR+8*u+2*k, VR+8*u+4+2*k
        e(f"v_lshlrev_b32 v4, 16, v{g_}")
        e(f"v_and_b32 v5, 0xffff0000, v{g_}")
        e(f"v_lshlrev_b32 v6, 16, v{u_}")
        e(f"v_and_b32 v7, 0xffff0000, v{u_}")
        e("v_max_f32 v4, 0, v4")
        e("v_max_f32 v5, 0, v5")
        e("v_mul_f32 v4, v4, v6")
        e("v_mul_f32 v5, v5, v7")
        e(f"v_cvt_pk_bf16_f32 v{8+2*u+k}, v4, v5")
for u in range(4): e(f"ds_write_b64 v20, v[{8+2*u}:{9+2*u}] offset:{u*544}")
lab("L_sv5")
ts(5)
e("s_waitcnt lgkmcnt(0)")
e("s_barrier")
lab("L_sv3")
if DIAG:
    e(f"s_mov_b32 s{sTS+12}, s{sCNT}")
    dump_ts(1, 7)
e("s_endpgm")

hdr = open("cdna_kernels/%s.s.ref" % NAME).read().split("; Override launch")[0]
out = hdr + f"; @launch grid=(256,1,1) block=(576,1,1) lds={LDS}\n"
out += f""".amdgcn_target "amdgcn-amd-amdhsa--gfx950"
.text
.globl {NAME}_kernel
.p2align 8
.type {NAME}_kernel,@function
{NAME}_kernel:
""" + "\n".join(L) + f"""
.section .rodata,"a"
.p2align 6
.amdhsa_kernel {NAME}_kernel
  .amdhsa_next_free_vgpr 164
  .amdhsa_next_free_sgpr 96
  .amdhsa_accum_offset 164
  .amdhsa_group_segment_fixed_size 0
  .amdhsa_kernarg_size 96
  .amdhsa_user_sgpr_count 2
  .amdhsa_user_sgpr_kernarg_segment_ptr 1
  .amdhsa_system_sgpr_workgroup_id_x 1
.end_amdhsa_kernel
"""
open(sys.argv[1], "w").write(out)
```

```python
import sys
NAME = "recurrent_scan__sliding_block_cached__glu_gated_reglu__decode"
opt = dict(diag=0, nt=1, spin=5000, sleep=4, prio=3, th=63, qpipe=1, qsleep=4, k1=4, b2b=1, opipe=1, osleep=1, spipe=1, ssleep=4, kprio=2, vs=5, va=8, vb=8, vc=8, wa=0, wb=0, wc=0, rot=3, opre=0, fpre=1, fsleep=8, lsleep=1, sq=0, qdelay=36, e3=0, loc=1, lm=15, qloc=1, qpt=0, slse=0, wd=0, fdelay=0, dsep=0, hold=1, v0=2, w1nt=0, w3nt=0, knt=255, vnt=255, rc=0)
for a in sys.argv[2:]:
    k, v = a.split("="); opt[k] = int(v)
DIAG = opt["diag"]; NT = ["", " nt", " sc1 nt", " sc0 sc1 nt", " sc1"][opt["nt"]]
L = []
def e(s): L.append("    " + s)
def lab(s): L.append(s + ":")
def c(s): L.append("    ; " + s)
WS_Y, WS_LSE, WS_OP, WS_SP, WS_DP, WS_DIAG = 0x1000, 0x40000, 0x50000, 0x100000, 0x200000, 0x400000
YROW = 30720
W1 = 65536; SLAB = W1; SLAB2 = W1 + 16384; P1S = W1 + 32768; XN = P1S + 8192; QB = XN + 8320; HB = QB + 1088; OB = HB + 2176
MB = OB + 2176; LB = MB + 128; ZB = LB + 128; FB = HB + 1024; W3 = (ZB + 256 + 1023) & ~1023; LDS = W3 + 32768
sX, sK, sV, sWQ, sWO, sG, sU, sD, sOUT, sWS = 4, 6, 8, 10, 12, 16, 18, 20, 22, 26
sID, sW, sTAG, sROLE = 28, 29, 30, 31
sB = 32
sB2 = 34
sSTR, sT0, sT1, sT2, sCNT = 36, 37, 38, 39, 40
sPL, sPH = 41, 42
sM = 44
sM2 = 46
sU_ = 48
sWA, sP = 54, 56
sTS = 64
vL, vG, vI = 1, 2, 3
WR, VR, TT, DD = 32, 64, 96, 128
nts = [0]
def ts(k):
    if DIAG: e(f"s_memrealtime s[{sTS+2*k}:{sTS+2*k+1}]")
def dump_ts(slot, n):
    if not DIAG: return
    e("s_waitcnt lgkmcnt(0)")
    if DIAG == 3:
        if slot: return
        nts[0] += 1
        e(f"s_cmp_lg_u32 s{sID}, {opt.get('swg', 0)}")
        e("s_cbranch_scc1 L_end")
        e(f"s_sub_u32 s{sT0}, s{sTS+2*opt['sk']}, s{sTS}")
        e(f"s_mul_i32 s{sT0}, s{sT0}, 10")
        e(f"s_add_u32 s{sT0}, s{sT0}, 3000")
        e(f"s_min_u32 s{sT0}, s{sT0}, 40000")
        lab(f"L_spin{nts[0]}")
        e("s_memrealtime s[4:5]")
        e("s_waitcnt lgkmcnt(0)")
        e(f"s_sub_u32 s4, s4, s{sTS}")
        e(f"s_cmp_lt_u32 s4, s{sT0}")
        e(f"s_cbranch_scc1 L_spin{nts[0]}")
        return
    if DIAG == 2:
        if slot: return
        e("s_mov_b64 exec, 1")
        e("v_mov_b32 v4, 0")
        e(f"s_not_b32 s{sT0}, s{sTS}")
        e(f"v_mov_b32 v5, s{sT0}")
        e("global_atomic_umax v4, v5, s[24:25] sc1")
        for k in range(n):
            e(f"v_mov_b32 v5, s{sTS+2*k}")
            e(f"s_cmp_lt_u32 s{sID}, 240")
            e(f"s_cbranch_scc0 L_dd{nts[0]}_{k}")
            e(f"global_atomic_umax v4, v5, s[24:25] offset:{4*k+4} sc1")
            lab(f"L_dd{nts[0]}_{k}")
        nts[0] += 1
        return
    e(f"s_lshl_b32 s{sT0}, s{sID}, 8")
    e(f"s_add_u32 s{sT0}, s{sT0}, {WS_DIAG + slot*64}")
    e(f"v_mov_b32 v4, s{sT0}")
    e("s_mov_b64 exec, 1")
    for k in range(n):
        e(f"v_mov_b32 v5, s{sTS+2*k}")
        e(f"global_store_dword v4, v5, s[{sWS}:{sWS+1}] offset:{4*k}")
    e("s_getreg_b32 s37, hwreg(HW_REG_XCC_ID)")
    e("v_mov_b32 v5, s37")
    e(f"global_store_dword v4, v5, s[{sWS}:{sWS+1}] offset:60")
    e("s_getreg_b32 s37, hwreg(HW_REG_HW_ID)")
    e("v_mov_b32 v5, s37")
    e(f"global_store_dword v4, v5, s[{sWS}:{sWS+1}] offset:56")
def base(dst, src, off):
    e(f"s_add_u32 s{dst}, s{src}, {off}")
    e(f"s_addc_u32 s{dst+1}, s{src+1}, 0")
def transpose(src, dst):
    for q in range(4):
        for j in range(4):
            a, b = src + 8*j + q, src + 8*j + 4 + q
            e(f"v_perm_b32 v{dst+8*q+j}, v{b}, v{a}, s{sPL}")
            e(f"v_perm_b32 v{dst+8*q+4+j}, v{b}, v{a}, s{sPH}")
def mfma(d, a, b, cc):
    cs = "0" if cc is None else f"v[{cc}:{cc+3}]"
    e(f"v_mfma_f32_16x16x32_bf16 v[{d}:{d+3}], v[{a}:{a+3}], v[{b}:{b+3}], {cs}")
def xlane(op, v, t, full=False, half=False):
    if full:
        for m in ["quad_perm:[1,0,3,2]", "quad_perm:[2,3,0,1]", "row_half_mirror", "row_mirror"]:
            e("s_nop 1")
            e(f"{op}_dpp v{v}, v{v}, v{v} {m} row_mask:0xf bank_mask:0xf")
    if half:
        e("s_nop 1")
        e(f"{op}_dpp v{v}, v{v}, v{v} row_ror:8 row_mask:0xf bank_mask:0xf")
    for sw in ["v_permlane16_swap_b32", "v_permlane32_swap_b32"]:
        e(f"v_mov_b32 v{t}, v{v}")
        e("s_nop 1")
        e(f"{sw} v{v}, v{t}")
        e("s_nop 0")
        e(f"{op} v{v}, v{v}, v{t}")
def rbf(v):
    e(f"v_cvt_pk_bf16_f32 v{v}, 0, v{v}")
def locinit():
    base(sWA, sWS, 0x300000 if opt["loc"] else 0)
    e(f"s_mov_b64 s[{sP}:{sP+1}], s[{sWA}:{sWA+1}]")
def locsel(f):
    if not opt["loc"]: return
    e(f"s_and_b32 s{sT0}, s{sCNT}, {opt['lm']}")
    e(f"s_cselect_b64 s[{sP}:{sP+1}], s[{sWA}:{sWA+1}], s[{sWS}:{sWS+1}]")
    if f is not True:
        nts[0] += 1
        e(f"s_cbranch_scc1 L_ls{nts[0]}")
        f()
        lab(f"L_ls{nts[0]}")
def tagcheck(regs, t0, t1, lfail_loop, name, sl=None, loc=False):
    sl = opt["sleep"] if sl is None else sl
    e(f"v_min3_u32 v{t0}, v{regs[0]}, v{regs[1]}, v{regs[1]}")
    e(f"v_max3_u32 v{t1}, v{regs[0]}, v{regs[1]}, v{regs[1]}")
    for k in range(2, len(regs), 2):
        e(f"v_min3_u32 v{t0}, v{t0}, v{regs[k]}, v{regs[k+1]}")
        e(f"v_max3_u32 v{t1}, v{t1}, v{regs[k]}, v{regs[k+1]}")
    e(f"v_cmp_ne_u32 vcc, s{sTAG}, v{t0}")
    e(f"v_cmp_ne_u32 s[{sM}:{sM+1}], s{sTAG}, v{t1}")
    e(f"s_or_b64 vcc, vcc, s[{sM}:{sM+1}]")
    e(f"s_cbranch_scc0 {name}_ok")
    e(f"s_sub_u32 s{sCNT}, s{sCNT}, 1")
    if loc: locsel(loc)
    if sl: e(f"s_sleep {sl}")
    e(f"s_cmp_gt_i32 s{sCNT}, 0")
    e(f"s_cbranch_scc1 {lfail_loop}")
    lab(f"{name}_ok")
def tagcmp(regs, okl):
    e(f"v_min_u32 v4, v{regs[0]}, v{regs[1]}")
    e(f"v_max_u32 v5, v{regs[0]}, v{regs[1]}")
    for k in range(2, len(regs), 2):
        e(f"v_min3_u32 v4, v4, v{regs[k]}, v{regs[k+1]}")
        e(f"v_max3_u32 v5, v5, v{regs[k]}, v{regs[k+1]}")
    e(f"v_cmp_ne_u32 vcc, s{sTAG}, v4")
    e(f"v_cmp_ne_u32 s[{sM}:{sM+1}], s{sTAG}, v5")
    e(f"s_or_b64 vcc, vcc, s[{sM}:{sM+1}]")
    e(f"s_cbranch_scc0 {okl}")
def ppoll(name, D, n, issue, tags, cont, sl, pre=0, loc=False):
    if pre == D: e(f"s_branch {name}_in")
    for j in range(pre, D-1):
        issue(j)
        if sl: e(f"s_sleep {sl}")
    lab(name)
    for j in range(D):
        issue((j+D-1) % D)
        if j == 0 and pre == D: lab(f"{name}_in")
        e(f"s_waitcnt vmcnt({n*(D-1)})")
        tagcmp(tags(j), f"{name}_{j}")
        if sl: e(f"s_sleep {sl}")
    e(f"s_sub_u32 s{sCNT}, s{sCNT}, 1")
    if loc: locsel(loc)
    e(f"s_cmp_gt_i32 s{sCNT}, 0")
    e(f"s_cbranch_scc1 {name}")
    for j in range(D-1, -1, -1):
        lab(f"{name}_{j}")
        cont(j)
        if j: e(f"s_branch {name}_done")
    lab(f"{name}_done")
TH = opt["th"]; K1 = opt["k1"]
def thr():
    if TH < 63: e(f"s_waitcnt vmcnt({TH-1})")
def tagfix():
    e(f"s_mul_i32 s{sTAG}, s{sTAG}, 0x9E3779B1")
    e(f"s_add_u32 s{sTAG}, s{sTAG}, 0x7F4A7C15")
def kdma(lo, hi):
    for jj in range(lo, hi):
        if jj == 4:
            e(f"s_add_u32 s{sT2}, s{sKM}, 4096")
            e(f"s_mov_b32 m0, s{sT2}")
            for q in range(4): e(f"v_add_u32 v{16+q}, s{sKS}, v{16+q}" if opt["rc"] else f"v_xor_b32 v{16+q}, 0x1000, v{16+q}")
        if lo and opt.get("thk"): thr()
        e(f"global_load_lds_dwordx4 v{16+(jj&3)}, s[{sK}:{sK+1}] offset:{(jj&3)*1024}" + (NT if (opt["knt"] >> jj) & 1 else ""))
sKM, sTILE, sHB, sA = 49, 50, 51, 52
LOC = opt["loc"]
sSP = 53; sKS = 58; E3 = opt["e3"]
WP = [0, opt["wa"], opt["wb"], opt["wc"], 4]
def w3(p):
    if WP[p] == WP[p+1]: return
    e(f"s_cmp_lg_u32 s{sROLE}, 0")
    e(f"s_cbranch_scc0 L_now3{p}")
    for jj in range(WP[p], WP[p+1]):
        e(f"global_load_lds_dwordx4 v25, s[{sB2}:{sB2+1}] offset:{jj*1024}" + ["", " nt"][opt["w3nt"]])
        if jj < 3: e(f"v_add_u32 v25, 3072, v25")
        if jj == 1: e("v_xor_b32 v25, 0x80, v25")
    lab(f"L_now3{p}")
def w3addr():
    c("phase-3 role: wo (id>=128) or down (id<56); W3 dma base sB2, voff v25; tr addr v27; operand addr v28; publish v26")
    e(f"s_sub_u32 s{sT1}, s{sID}, 56")
    e(f"s_cmp_lt_u32 s{sT1}, 72")
    e(f"s_cselect_b32 s{sROLE}, 0, 1")
    e(f"s_cmp_lt_u32 s{sID}, 128")
    e(f"s_cselect_b64 s[{sB2}:{sB2+1}], s[{sD}:{sD+1}], s[{sWO}:{sWO+1}]")
    e(f"s_mov_b32 s{sSP}, {WS_SP}")
    e(f"s_cselect_b32 s{sSP}, {WS_DP}, s{sSP}")
    e(f"s_lshr_b32 s{sT1}, s{sU_}, 2")
    e(f"s_lshl_b32 s{sT0}, s{sT1}, 17")
    e(f"s_lshl_b32 s{sT1}, s{sT1}, 8")
    e(f"s_add_u32 s{sSP}, s{sSP}, s{sT1}")
    e(f"s_lshl_b32 s{sT1}, s{sW}, 14")
    e(f"s_add_u32 s{sT0}, s{sT0}, s{sT1}")
    e(f"s_and_b32 s{sT1}, s{sU_}, 3")
    e(f"s_lshl_b32 s{sT2}, s{sT1}, 8")
    e(f"s_add_u32 s{sT0}, s{sT0}, s{sT2}")
    base(sB2, sB2, f"s{sT0}")
    e(f"v_lshlrev_b32 v4, 1, v{vG}")
    e(f"v_xor_b32 v4, v4, v{vI}")
    e("v_lshlrev_b32 v4, 4, v4")
    e(f"v_lshl_add_u32 v25, v{vG}, 10, v4")
    e(f"s_lshl_b32 s{sT2}, s{sW}, 12")
    e(f"s_add_u32 s{sT2}, s{sT2}, {W3}")
    e(f"s_mov_b32 m0, s{sT2}")
def vwait(n, nm):
    e(f"s_cbranch_scc1 {nm}")
    e(f"s_waitcnt vmcnt({n})")
    lab(nm)
    e(f"s_waitcnt vmcnt({n+4})")
e("s_load_dwordx16 s[4:19], s[0:1], 0")
e("s_load_dwordx8 s[20:27], s[0:1], 64")
ts(0)
e("s_cmp_ge_u32 s2, 256")
e("s_cbranch_scc1 L_end")
e(f"s_mov_b32 s{sID}, s2")
e("v_lshrrev_b32 v4, 6, v0")
e(f"v_and_b32 v{vL}, 63, v0")
e(f"v_readfirstlane_b32 s{sW}, v4")
e(f"v_bfe_u32 v{vG}, v0, 4, 2")
e(f"v_and_b32 v{vI}, 15, v0")
e(f"s_mov_b32 s{sCNT}, {opt['spin']}")
c("phase-1 tile T = (id&~15) | (id&7)<<1 | (id>>3)&1")
e(f"s_and_b32 s{sT0}, s{sID}, 7")
e(f"s_lshl_b32 s{sT0}, s{sT0}, 1")
e(f"s_bfe_u32 s{sT1}, s{sID}, 0x10003")
e(f"s_or_b32 s{sT0}, s{sT0}, s{sT1}")
e(f"s_and_b32 s{sT1}, s{sID}, 0xf0")
e(f"s_or_b32 s{sTILE}, s{sT0}, s{sT1}")
c("X = (id&7)<<4 | (id>>3)&15 : q tile (id<128) or wo unit (id>=128); attention id A = b<<5 | (id&7)<<2 | (id>>3)&3")
e(f"s_and_b32 s{sT0}, s{sID}, 7")
e(f"s_bfe_u32 s{sT1}, s{sID}, 0x40003")
e(f"s_lshl4_add_u32 s{sT2}, s{sT0}, s{sT1}")
e(f"s_and_b32 s{sT1}, s{sT1}, 3")
e(f"s_lshl2_add_u32 s{sT0}, s{sT0}, s{sT1}")
e(f"s_and_b32 s{sT1}, s{sID}, 0xe0")
e(f"s_or_b32 s{sA}, s{sT0}, s{sT1}")
e(f"s_cmp_lt_u32 s{sID}, 128")
if opt["qloc"]: e(f"s_cselect_b32 s{sTILE}, s{sT2}, s{sTILE}")
e(f"s_cselect_b32 s{sU_}, s{sID}, s{sT2}")
e(f"s_movk_i32 s{sSTR}, 3584")
e(f"s_cmp_lt_u32 s{sID}, 128")
e(f"s_cselect_b32 s{sSTR}, 8192, s{sSTR}")
e(f"v_lshrrev_b32 v4, 2, v{vL}")
e(f"v_mul_u32_u24 v12, s{sSTR}, v4")
e(f"v_and_b32 v4, 3, v{vL}")
e("v_lshl_add_u32 v12, v4, 4, v12")
e(f"s_lshl_b32 s{sT0}, s{sW}, 10")
e(f"v_lshl_add_u32 v13, v{vL}, 4, s{sT0}")
e(f"s_lshl_b32 s{sKM}, s{sW}, 13")
e(f"s_lshl_b32 s{sT2}, s{sW}, 12")
e(f"s_add_u32 s{sT2}, s{sT2}, {W1}")
e(f"s_mov_b32 m0, s{sT2}")
e(f"s_lshl_b32 s{sT1}, s{sW}, 6")
e(f"s_mul_i32 s{sT1}, s{sT1}, s{sSTR}")
e(f"s_cmp_lt_u32 s{sTILE}, 184")
e(f"s_cselect_b32 s{sT0}, 0, 56")
e(f"s_and_b32 s{sT2}, s{sTILE}, 127")
e(f"s_sub_u32 s{sT0}, s{sT2}, s{sT0}")
e(f"s_lshl_b32 s{sT0}, s{sT0}, 6")
e(f"s_add_u32 s{sT1}, s{sT1}, s{sT0}")
e(f"s_lshl_b32 s{sT2}, s{sSTR}, 4")
e(f"s_sub_u32 s{sT2}, s{sT2}, 1024")
e("s_waitcnt lgkmcnt(0)")
ts(1)
e(f"s_load_dword s{sTAG}, s[{sWS}:{sWS+1}], 0")
e(f"s_cmp_eq_u32 s{sW}, 8")
e("s_cbranch_scc1 L_service")
e(f"s_cmp_ge_u32 s{sID}, 240")
e("s_cbranch_scc1 L_now1")
if opt.get("wprio"): e("s_setprio 2")
e(f"global_load_dwordx4 v[8:11], v13, s[{sX}:{sX+1}]")
e(f"s_cmp_lt_u32 s{sTILE}, 184")
e(f"s_cselect_b64 s[{sB}:{sB+1}], s[{sG}:{sG+1}], s[{sU}:{sU+1}]")
e(f"s_cmp_lt_u32 s{sID}, 128")
e(f"s_cselect_b64 s[{sB}:{sB+1}], s[{sWQ}:{sWQ+1}], s[{sB}:{sB+1}]")
base(sB, sB, f"s{sT1}")
for jj in range(4):
    e(f"global_load_lds_dwordx4 v12, s[{sB}:{sB+1}] offset:{jj*1024}" + ["", " nt", " sc1", " sc0 sc1", " sc1 nt", " sc0"][opt["w1nt"]])
    if jj < 3: e(f"v_add_u32 v12, s{sT2}, v12")
lab("L_now1")
if E3 == 2:
    if opt.get("wprio"): e("s_setprio 0")
    w3addr(); WP = [0, 4, 4, 4, 4]; w3(0); WP = [4]*5
c("KV slice offset: (id>>2)<<20 + 786432 + (id&3)<<16 + wave<<13")
e(f"s_lshr_b32 s{sT0}, s{sA}, 2")
e(f"s_lshl_b32 s{sT0}, s{sT0}, 20")
e(f"s_and_b32 s{sT1}, s{sA}, 3")
e(f"s_lshl_b32 s{sT1}, s{sT1}, 16")
e(f"s_add_u32 s{sT0}, s{sT0}, s{sT1}")
e(f"s_add_u32 s{sT0}, s{sT0}, 786432")
base(sK, sK, f"s{sT0}")
base(sV, sV, f"s{sT0}")
e(f"v_xor_b32 v16, v{vI}, v{vG}")
e("v_lshlrev_b32 v16, 4, v16")
e(f"v_lshl_add_u32 v16, v{vG}, 8, v16")
c("first 4 KB block of this wave: (2w + (w>>2)) ^ r ; the second one is ^1 (spreads the HBM stacks)")
e(f"s_lshr_b32 s{sHB}, s{sW}, 2")
e(f"s_lshl_b32 s{sT1}, s{sW}, 1")
e(f"s_or_b32 s{sHB}, s{sHB}, s{sT1}")
if opt["rot"]:
    e(f"s_bfe_u32 s{sT1}, s{sID}, {0x30000 + opt['rot']:#x}")
    e(f"s_xor_b32 s{sHB}, s{sHB}, s{sT1}")
e(f"s_lshl_b32 s{sHB}, s{sHB}, 12")
RC = opt["rc"]
if RC:
    c("1 KB chunk order ^= c, row in chunk ^= c2 (c = w&3, c2 = (w+id>>3)&3): spreads the channels at any moment")
    e(f"s_and_b32 s{sT0}, s{sW}, 3")
    e(f"s_lshr_b32 s{sT1}, s{sID}, 3")
    e(f"s_add_u32 s{sT1}, s{sT1}, s{sW}")
    e(f"s_and_b32 s{sT1}, s{sT1}, 3")
    e(f"s_lshl2_add_u32 s{sT0}, s{sT0}, s{sT1}")
    e(f"s_lshl_b32 s{sT0}, s{sT0}, 8")
    e(f"s_or_b32 s{sHB}, s{sHB}, s{sT0}")
    e(f"v_xor_b32 v16, s{sHB}, v16")
    for q in range(1, 4):
        e(f"v_xor_b32 v{16+q}, {q*64 + q*1024:#x}, v16")
        e(f"v_subrev_u32 v{16+q}, {q*1024}, v{16+q}")
    for q in range(4): e(f"v_add_u32 v{16+q}, 0x1000, v{16+q}")
    e(f"s_sub_u32 s{sK}, s{sK}, 0x1000")
    e(f"s_subb_u32 s{sK+1}, s{sK+1}, 0")
    e(f"s_bitcmp1_b32 s{sHB}, 12")
    e(f"s_cselect_b32 s{sKS}, -4096, 4096") if False else None
    e(f"s_mov_b32 s{sKS}, 4096")
    e(f"s_cselect_b32 s{sKS}, -4096, s{sKS}")
else:
    e(f"v_or_b32 v16, s{sHB}, v16")
    e("v_xor_b32 v17, 64, v16")
    e("v_xor_b32 v18, 0x80, v16")
    e("v_xor_b32 v19, 0xc0, v16")
e(f"s_mov_b32 m0, s{sKM}")
ts(2)
e(f"s_cmp_ge_u32 s{sID}, 240")
e("s_cbranch_scc1 L_p1skip0")
c("layernorm of row w")
if E3 == 2:
    e(f"s_cmp_lg_u32 s{sROLE}, 0")
    vwait(4, "L_xw")
else: e(f"s_waitcnt vmcnt(4)")
ts(3)
for k in range(4):
    e(f"v_lshlrev_b32 v{TT+2*k}, 16, v{8+k}")
    e(f"v_and_b32 v{TT+2*k+1}, 0xffff0000, v{8+k}")
e(f"v_pk_add_f32 v[4:5], v[{TT}:{TT+1}], v[{TT+2}:{TT+3}]")
e(f"v_pk_add_f32 v[6:7], v[{TT+4}:{TT+5}], v[{TT+6}:{TT+7}]")
e("v_pk_add_f32 v[4:5], v[4:5], v[6:7]")
e("v_add_f32 v4, v4, v5")
xlane("v_add_f32", 4, 5, full=True)
e("v_mul_f32 v4, 0x3b000000, v4")
e(f"v_sub_f32 v5, v{TT}, v4")
e("v_mul_f32 v6, v5, v5")
for k in range(1, 8):
    e(f"v_sub_f32 v5, v{TT+k}, v4")
    e("v_fmac_f32 v6, v5, v5")
xlane("v_add_f32", 6, 5, full=True)
e("v_mul_f32 v6, 0x3b000000, v6")
rbf(4); rbf(6)
e("v_add_f32 v6, 0x3727c5ac, v6")
rbf(6)
e("v_sqrt_f32 v6, v6")
e("s_nop 0")
rbf(6)
e("v_rcp_f32 v6, v6")
for k in range(8): e(f"v_sub_f32 v{TT+k}, v{TT+k}, v4")
for k in range(4):
    rbf(TT+2*k); rbf(TT+2*k+1)
    e(f"v_pk_mul_f32 v[{TT+2*k}:{TT+2*k+1}], v[{TT+2*k}:{TT+2*k+1}], v[6:7] op_sel_hi:[1,0]")
    e(f"v_cvt_pk_bf16_f32 v{8+k}, v{TT+2*k}, v{TT+2*k+1}")
e(f"s_mul_i32 s{sT0}, s{sW}, 1040")
e(f"s_add_u32 s{sT0}, s{sT0}, {XN}")
e(f"v_lshl_add_u32 v4, v{vL}, 4, s{sT0}")
e("ds_write_b128 v4, v[8:11]")
c("xn operand addresses (v6,v7), W tr-read address (v5), slab address (v4)")
e(f"v_and_b32 v5, 7, v{vI}")
e("v_mul_u32_u24 v4, 1040, v5")
e(f"v_lshl_add_u32 v4, v{vG}, 4, v4")
e(f"s_lshl_b32 s{sT0}, s{sW}, 7")
e(f"s_add_u32 s{sT0}, s{sT0}, {XN}")
e(f"v_add_u32 v4, s{sT0}, v4")
e(f"v_mov_b32 v5, {ZB}")
e(f"v_cmp_gt_u32 vcc, 8, v{vI}")
e(f"s_lshl_b32 s{sT0}, s{sW}, 12")
e(f"s_add_u32 s{sT0}, s{sT0}, {W1}")
e("v_cndmask_b32 v6, v5, v4, vcc")
e("v_cndmask_b32 v7, v4, v5, vcc")
e(f"v_lshrrev_b32 v4, 2, v{vI}")
e(f"v_lshl_add_u32 v4, v{vG}, 3, v4")
e(f"v_and_b32 v5, 3, v{vI}")
e("v_lshlrev_b32 v5, 3, v5")
e("v_lshl_add_u32 v5, v4, 6, v5")
e(f"v_add_u32 v5, s{sT0}, v5")
e(f"s_lshl_b32 s{sT0}, s{sW}, 10")
e(f"s_add_u32 s{sT0}, s{sT0}, {P1S}")
e(f"v_lshl_add_u32 v4, v{vL}, 4, s{sT0}")
e("s_waitcnt lgkmcnt(0)")
e("s_barrier")
for ks in range(2):
    for ct in range(2): e(f"ds_read_b128 v[{DD+8*ks+4*ct}:{DD+8*ks+4*ct+3}], v{6+ct} offset:{ks*64}")
kdma(0, K1)
if E3 == 2:
    e(f"s_cmp_lg_u32 s{sROLE}, 0")
    vwait(K1, "L_ww")
else: e(f"s_waitcnt vmcnt({K1})")
ts(4)
for ks in range(2):
    for ct in range(2):
        for hh in range(2):
            r = TT+8*ks+4*ct+2*hh
            e(f"ds_read_b64_tr_b16 v[{r}:{r+1}], v5 offset:{ks*2048+hh*256+ct*32}")
e("s_waitcnt lgkmcnt(0)")
for n in range(4): mfma(8, TT+4*n, DD+4*n, None if n == 0 else 8)
e("s_nop 7")
e("ds_write_b128 v4, v[8:11]")
e("s_waitcnt lgkmcnt(0)")
e("s_barrier")
if opt.get("b2b"): e("s_barrier")
e("s_branch L_p1skip")
lab("L_p1skip0")
kdma(0, K1)
lab("L_p1skip")
ts(5)
if opt.get("kprio"): e(f"s_setprio {opt['kprio']}")
kdma(K1, 8) if K1 else (kdma(0, 1), kdma(1, 8))
if opt.get("kprio"): e("s_setprio 0")
e(f"v_lshlrev_b32 v59, 10, v{vG}")
e(f"v_lshl_add_u32 v59, v{vI}, 4, v59")
e(f"v_xor_b32 v59, s{sHB}, v59")
e(f"v_xor_b32 v60, 0x1000, v59")
VS = opt["vs"]; VP = [opt["va"], opt["vb"], opt["vc"], 8]
def vload(lo, hi):
    for j in range(lo, hi):
        if RC:
            if j: e(f"v_xor_b32 v{60+(j&1)}, {(j&3)*256 + (j>>2)*4096:#x}, v59")
            e(f"global_load_dwordx4 v[{VR+4*j}:{VR+4*j+3}], v{60+(j&1) if j else 59}, s[{sV}:{sV+1}]{NT}")
            continue
        e(f"global_load_dwordx4 v[{VR+4*j}:{VR+4*j+3}], v{59+(j>>2)}, s[{sV}:{sV+1}] offset:{(j&3)*256}" + (NT if (opt["vnt"] >> j) & 1 else ""))
if E3 < 2: w3addr()
if E3 == 1: WP = [0, 4, 4, 4, 4]; w3(0); WP = [4]*5
V0 = opt["v0"] if opt["hold"] else VS
vload(0, V0)
if not opt["hold"]: ts(6)
c("address precompute")
e(f"s_mov_b32 s{sPL}, 0x05040100")
e(f"s_mov_b32 s{sPH}, 0x07060302")
e("s_waitcnt lgkmcnt(0)")
tagfix()
locinit()
e(f"s_and_b32 s{sT1}, s{sU_}, 3")
e(f"s_lshl_b32 s{sT1}, s{sT1}, 15")
e(f"s_add_u32 s{sSP}, s{sSP}, s{sT1}")
e(f"s_lshr_b32 s{sT1}, s{sW}, 1")
e(f"s_lshl_b32 s{sT1}, s{sT1}, 13")
e(f"s_add_u32 s{sSP}, s{sSP}, s{sT1}")
e(f"s_and_b32 s{sT1}, s{sW}, 1")
e(f"s_lshl_b32 s{sT1}, s{sT1}, 7")
e(f"s_add_u32 s{sSP}, s{sSP}, s{sT1}")
e(f"v_and_b32 v4, 7, v{vI}")
e(f"v_lshl_add_u32 v26, v4, 17, s{sSP}")
e(f"v_lshl_add_u32 v26, v{vG}, 5, v26")
e(f"v_lshrrev_b32 v5, 3, v{vI}")
e("v_lshl_add_u32 v26, v5, 4, v26")
e("v_mul_u32_u24 v28, 272, v4")
e(f"v_lshl_add_u32 v28, v{vG}, 4, v28")
e(f"v_add_u32 v28, {OB}, v28")
e(f"v_lshrrev_b32 v4, 2, v{vI}")
e(f"v_bfe_u32 v5, v{vI}, 1, 1")
e(f"s_lshl_b32 s{sT1}, s{sW}, 1")
e(f"v_or_b32 v5, s{sT1}, v5")
e("v_lshlrev_b32 v6, 1, v4")
e("v_xor_b32 v5, v5, v6")
e(f"v_and_b32 v6, 1, v{vG}")
e("v_lshlrev_b32 v6, 3, v6")
e("v_xor_b32 v5, v5, v6")
e(f"v_lshl_add_u32 v4, v{vG}, 3, v4")
e("v_lshlrev_b32 v4, 8, v4")
e("v_lshl_add_u32 v27, v5, 4, v4")
e(f"v_and_b32 v4, 1, v{vI}")
e("v_lshl_add_u32 v27, v4, 3, v27")
e(f"v_add_u32 v27, {W3}, v27")
e(f"v_cmp_lt_u32 s[{sM2}:{sM2+1}], 7, v{vI}")
e(f"v_xor_b32 v16, v{vI}, v{vG}")
e("v_lshlrev_b32 v16, 4, v16")
e(f"v_lshl_add_u32 v16, v{vI}, 8, v16")
e(f"v_add_u32 v16, s{sKM}, v16")
e("v_xor_b32 v17, 64, v16")
e("v_xor_b32 v18, 0x80, v16")
e("v_xor_b32 v19, 0xc0, v16")
e(f"v_and_b32 v22, 3, v{vI}")
e("v_mul_u32_u24 v23, 272, v22")
e(f"v_lshl_add_u32 v23, v{vG}, 4, v23")
e(f"v_add_u32 v23, {QB}, v23")
CM = opt.get("cm", 1)
if not CM:
    e(f"v_mov_b32 v5, {ZB}")
    e(f"v_cndmask_b32 v21, v5, v23, s[{sM2}:{sM2+1}]")
    e(f"v_cndmask_b32 v23, v23, v5, s[{sM2}:{sM2+1}]")
PM = WR
for k in range(16): e(f"v_mov_b32 v{PM+k}, 0")
e(f"v_lshlrev_b32 v4, 5, v22")
e(f"s_lshl_b32 s{sT2}, s{sW}, 2")
e(f"v_add_u32 v24, {MB}, v4")
e(f"v_add_u32 v29, s{sT2}, v24")
e(f"s_lshr_b32 s{sT0}, s{sU_}, 2")
e(f"s_lshl_b32 s{sT0}, s{sT0}, 3")
e(f"s_add_u32 s{sT0}, s{sT0}, s{sW}")
e(f"s_lshl_b32 s{sT1}, s{sT0}, 5")
e(f"s_add_u32 s{sT1}, s{sT1}, {WS_LSE}")
e(f"v_mov_b32 v57, s{sT1}")
e(f"s_lshl_b32 s{sT1}, s{sT0}, 11")
e(f"s_add_u32 s{sT1}, s{sT1}, {WS_OP}")
e(f"v_lshl_add_u32 v56, v{vL}, 3, s{sT1}")
c("obuf write address: b*272 + (16g+4r+2a+e2)*4, lane=(a,g,e2,r)")
e(f"v_bfe_u32 v4, v{vL}, 3, 2")
e("v_lshlrev_b32 v58, 6, v4")
e(f"v_and_b32 v4, 3, v{vL}")
e("v_lshl_add_u32 v58, v4, 4, v58")
e(f"v_lshrrev_b32 v4, 5, v{vL}")
e("v_lshl_add_u32 v58, v4, 3, v58")
e(f"v_and_b32 v4, 4, v{vL}")
e(f"s_mul_i32 s{sT0}, s{sW}, 272")
e(f"s_add_u32 s{sT0}, s{sT0}, {OB}")
e(f"v_add3_u32 v58, v58, v4, s{sT0}")
c("PV slab write v30, read v31, o publish v20")
e(f"s_lshl_b32 s{sT0}, s{sW}, 11")
e(f"s_add_u32 s{sT0}, s{sT0}, {SLAB}")
e(f"v_lshl_add_u32 v30, v{vL}, 4, s{sT0}")
e(f"v_lshlrev_b32 v31, 2, v0")
e(f"v_add_u32 v31, {SLAB}, v31")
e(f"v_bfe_u32 v4, v{vL}, 2, 2")
e("v_lshlrev_b32 v20, 14, v4")
e("v_lshlrev_b32 v24, 5, v4")
e(f"v_add_u32 v24, {FB}, v24")
e(f"v_lshrrev_b32 v4, 5, v{vL}")
e("v_lshl_add_u32 v20, v4, 5, v20")
e(f"v_and_b32 v4, 3, v{vL}")
e("v_lshl_add_u32 v20, v4, 3, v20")
e(f"s_bfe_u32 s{sT0}, s{sA}, 0x30002")
e(f"s_lshl_b32 s{sT0}, s{sT0}, 16")
e(f"s_lshr_b32 s{sT1}, s{sA}, 5")
e(f"s_lshl_b32 s{sT1}, s{sT1}, 11")
e(f"s_add_u32 s{sT0}, s{sT0}, s{sT1}")
e(f"s_and_b32 s{sT1}, s{sA}, 3")
e(f"s_lshl_b32 s{sT1}, s{sT1}, 9")
e(f"s_add_u32 s{sT0}, s{sT0}, s{sT1}")
e(f"s_lshl_b32 s{sT1}, s{sW}, 6")
e(f"s_add_u32 s{sT0}, s{sT0}, s{sT1}")
e(f"s_add_u32 s{sT0}, s{sT0}, {WS_OP}")
e(f"v_add_u32 v20, s{sT0}, v20")
if opt["hold"]:
    e("s_barrier")
    vload(V0, VS)
    ts(6)
if E3 == 1:
    e(f"s_cmp_lg_u32 s{sROLE}, 0")
    vwait(VS, "L_kw")
else: e(f"s_waitcnt vmcnt({VS})")
for t in range(2):
    for cc in range(4): e(f"ds_read_b128 v[{TT+16*t+4*cc}:{TT+16*t+4*cc+3}], v{16+cc} offset:{t*4096}")
e(f"s_mov_b32 s{sM}, 0x3db504f3")
e(f"s_mov_b32 s{sM+1}, 0x3fb8aa3b")
e("s_barrier")
ts(7)
S = 8
if CM:
    for cc in range(4): e(f"ds_read_b128 v[{DD+4*cc}:{DD+4*cc+3}], v23 offset:{cc*64}")
    for cc in range(4):
        e(f"s_waitcnt lgkmcnt({3-cc})")
        for t in range(2): mfma(S+4*t, TT+16*t+4*cc, DD+4*cc, None if cc == 0 else S+4*t)
else:
    for t in range(2):
        for cc in range(4): e(f"ds_read_b128 v[{DD+16*t+4*cc}:{DD+16*t+4*cc+3}], v{23-2*t} offset:{cc*64}")
    for n in range(8):
        if n & 1 == 0: e(f"s_waitcnt lgkmcnt({6-n})")
        mfma(S, TT+4*n, DD+4*n, None if n == 0 else S)
vload(VS, VP[0])
w3(0)
e("s_nop 7")
if CM:
    for k in range(4): e(f"v_cndmask_b32 v{S+k}, v{S+k}, v{S+4+k}, s[{sM2}:{sM2+1}]")
for k in range(4): rbf(S+k)
for k in (0, 2): e(f"v_pk_mul_f32 v[{S+k}:{S+k+1}], v[{S+k}:{S+k+1}], s[{sM}:{sM+1}] op_sel_hi:[1,0]")
for k in range(4): rbf(S+k)
e(f"v_max3_f32 v6, v{S}, v{S+1}, v{S+2}")
e(f"v_max_f32 v6, v6, v{S+3}")
xlane("v_max_f32", 6, 7, half=True)
e(f"v_mul_f32 v23, s{sM+1}, v6")
for k in range(4): e(f"v_fma_f32 v{S+k}, v{S+k}, s{sM+1}, -v23")
for k in range(4): e(f"v_exp_f32 v{S+k}, v{S+k}")
e("s_nop 0")
e(f"v_pk_add_f32 v[4:5], v[{S}:{S+1}], v[{S+2}:{S+3}]")
for k in range(2): e(f"v_cvt_pk_bf16_f32 v{12+k}, v{S+2*k}, v{S+2*k+1}")
e("v_add_f32 v7, v4, v5")
xlane("v_add_f32", 7, 4, half=True)
e("s_mov_b64 exec, 15")
e("ds_write2_b32 v29, v23, v7 offset0:0 offset1:32")
e("s_mov_b64 exec, -1")
vload(VP[0], VP[1])
w3(1)
c("masked P operands: lanes of bank cq hold keys (tile0 4g.., tile1 4g..), other lanes stay zero")
for cq in range(4):
    for k in range(4):
        m = "quad_perm:[0,1,2,3]" if (k >> 1) == (cq >> 1) else "row_ror:8"
        e(f"v_mov_b32_dpp v{PM+4*cq+k}, v{12+(k&1)} {m} row_mask:0xf bank_mask:{1<<cq:#x}")
e("s_waitcnt lgkmcnt(0)")
e("s_barrier")
vload(VP[1], VP[2])
w3(2)
def mlcomb():
    e("ds_read_b128 v[8:11], v24")
    e("ds_read_b128 v[12:15], v24 offset:16")
    e(f"ds_read_b128 v[{DD}:{DD+3}], v24 offset:128")
    e(f"ds_read_b128 v[{DD+4}:{DD+7}], v24 offset:144")
    e("s_waitcnt lgkmcnt(0)")
    e("v_max3_f32 v6, v8, v9, v10")
    e("v_max3_f32 v7, v11, v12, v13")
    e("v_max3_f32 v6, v6, v14, v15")
    e("v_max_f32 v6, v6, v7")
    for k in range(8): e(f"v_sub_f32 v{8+k}, v{8+k}, v6")
    for k in range(8): e(f"v_exp_f32 v{8+k}, v{8+k}")
    e(f"v_mul_f32 v7, v8, v{DD}")
    for k in range(1, 8): e(f"v_fmac_f32 v7, v{8+k}, v{DD+k}")
e(f"v_mov_b32 v7, s{sTAG}")
if opt.get("w3s", 0): e(f"s_sleep {opt['w3s']}")
ts(8)
vload(VP[2], 8)
WD = opt["wd"]
if not WD: w3(3)
e(f"s_cmp_lg_u32 s{sROLE}, 0")
for j in range(4):
    if WD == 2 and j == 3:
        w3(3); vwait(0, "L_vw3")
    elif E3 or WD: e(f"s_waitcnt vmcnt({6-2*j})")
    else: vwait(6-2*j, f"L_vw{j}")
    if j == 3: ts(9)
    for q in range(4):
        a, b = VR + 8*j + q, VR + 8*j + 4 + q
        e(f"v_perm_b32 v{TT+8*q+j}, v{b}, v{a}, s{sPL}")
        e(f"v_perm_b32 v{TT+8*q+4+j}, v{b}, v{a}, s{sPH}")
for cc in range(8): mfma(DD+4*(cc>>2), TT+4*cc, PM+4*(cc&3), None if (cc&3) == 0 else DD+4*(cc>>2))
e("s_nop 3")
e(f"ds_write_b128 v30, v[{DD}:{DD+3}]")
e("s_nop 2")
e(f"ds_write_b128 v30, v[{DD+4}:{DD+7}] offset:1024")
e("s_waitcnt lgkmcnt(0)")
e("s_barrier")
for k in range(4): e(f"ds_read2st64_b32 v[{8+2*k}:{9+2*k}], v31 offset0:{16*k} offset1:{16*k+8}")
for k in range(2): e(f"ds_read_b128 v[{DD+8+4*k}:{DD+11+4*k}], v24 offset:{16*k}")
e("s_waitcnt lgkmcnt(0)")
e(f"v_pk_mul_f32 v[8:9], v[8:9], v[{DD+8}:{DD+9}]")
e(f"v_pk_mul_f32 v[12:13], v[12:13], v[{DD+12}:{DD+13}]")
e(f"v_pk_fma_f32 v[8:9], v[10:11], v[{DD+10}:{DD+11}], v[8:9]")
e(f"v_pk_fma_f32 v[12:13], v[14:15], v[{DD+14}:{DD+15}], v[12:13]")
e("v_pk_add_f32 v[8:9], v[8:9], v[12:13]")
e("v_add_f32 v10, v8, v9")
e("v_add_f32 v11, v8, v9")
e("s_nop 1")
e("v_permlane16_swap_b32 v10, v11")
e("s_mov_b32 exec_lo, 0x0000FFFF")
e("s_mov_b32 exec_hi, 0x0000FFFF")
e("v_cvt_pk_bf16_f32 v6, v10, v11")
def ostoreB():
    e("s_mov_b32 exec_lo, 0x0000FFFF")
    e("s_mov_b32 exec_hi, 0x0000FFFF")
    e(f"global_store_dwordx2 v20, v[6:7], s[{sWS}:{sWS+1}] sc1")
    e("s_mov_b64 exec, -1")
if LOC: e(f"global_store_dwordx2 v20, v[6:7], s[{sWA}:{sWA+1}]")
else: e(f"global_store_dwordx2 v20, v[6:7], s[{sWS}:{sWS+1}] sc1")
e("s_mov_b64 exec, -1")
ts(10)
if WD == 1: w3(3)
def trread():
    for ks in range(4):
        for hh in range(2): e(f"ds_read_b64_tr_b16 v[{TT+4*ks+2*hh}:{TT+4*ks+2*hh+1}], v27 offset:{ks*8192+hh*1024}")
if E3: trread()
O = VR
e(f"s_cmp_lt_u32 s{sID}, 128")
e("s_cbranch_scc1 L_lo")
def lissue():
    for s_ in range(2): e(f"global_load_dwordx4 v[{O+4*s_}:{O+3+4*s_}], v57, s[{sP}:{sP+1}] offset:{s_*16} sc1")
def oissue(j):
    for s_ in range(4): e(f"global_load_dwordx2 v[{WR+8*j+2*s_}:{WR+8*j+2*s_+1}], v56, s[{sP}:{sP+1}] offset:{s_*512} sc1")
def ocont(j):
    R = WR+8*j
    for k in range(4):
        e(f"v_and_b32 v{R+2*k+1}, 0xffff0000, v{R+2*k}")
        e(f"v_lshlrev_b32 v{R+2*k}, 16, v{R+2*k}")
    e(f"v_pk_mul_f32 v[12:13], v[{R}:{R+1}], v[8:9] op_sel_hi:[1,0]")
    e(f"v_pk_mul_f32 v[14:15], v[{R+2}:{R+3}], v[8:9] op_sel:[0,1] op_sel_hi:[1,1]")
    e(f"v_pk_fma_f32 v[12:13], v[{R+4}:{R+5}], v[10:11], v[12:13] op_sel_hi:[1,0,1]")
    e(f"v_pk_fma_f32 v[14:15], v[{R+6}:{R+7}], v[10:11], v[14:15] op_sel:[0,1,0] op_sel_hi:[1,1,1]")
OD = opt["opipe"]
if opt["slse"]:
    PRE = 1
    oissue(0)
    e(f"s_lshl_b32 s{sT0}, s{sW}, 4")
    e(f"s_add_u32 s{sT0}, s{sT0}, {HB}")
    e(f"v_mov_b32 v4, s{sT0}")
    e("ds_read_b128 v[8:11], v4")
    e("s_waitcnt lgkmcnt(0)")
else:
    lab("L_lpoll")
    lissue()
    PRE = opt["opre"]
    if PRE: oissue(0)
    e(f"s_waitcnt vmcnt({4*PRE})")
    tagcheck([O+1+2*k for k in range(4)], 4, 5, "L_lpoll", "L_lp", opt["lsleep"], ostoreB)
    if LOC: e(f"s_mov_b64 s[{sP}:{sP+1}], s[{sWA}:{sWA+1}]")
    if not PRE: oissue(0); PRE = 1
    e(f"v_max3_f32 v4, v{O}, v{O+2}, v{O+4}")
    e(f"v_max_f32 v4, v4, v{O+6}")
    for k in range(4): e(f"v_sub_f32 v{8+k}, v{O+2*k}, v4")
    for k in range(4): e(f"v_exp_f32 v{8+k}, v{8+k}")
    e("s_nop 0")
    e("v_pk_add_f32 v[4:5], v[8:9], v[10:11]")
    e("v_add_f32 v4, v4, v5")
    e("v_rcp_f32 v4, v4")
    e("s_nop 0")
    for k in range(4): e(f"v_mul_f32 v{8+k}, v{8+k}, v4")
ppoll("L_op", OD, 4, oissue, lambda j: [WR+8*j+1+2*k for k in range(4)], ocont, opt["osleep"], PRE, ostoreB)
ts(11)
e("v_pk_add_f32 v[12:13], v[12:13], v[14:15]")
e("v_cvt_pk_bf16_f32 v12, v12, v13")
e("ds_write_b32 v58, v12")
if LOC: ostoreB()
e("s_waitcnt lgkmcnt(0)")
if not E3: lab("L_mf")
e("s_barrier")
if E3: lab("L_mf")
for ks in range(4): e(f"ds_read_b128 v[{DD+4*ks}:{DD+4*ks+3}], v28 offset:{ks*64}")
if not E3: trread()
e(f"v_mov_b32 v13, s{sTAG}")
e(f"v_mov_b32 v15, s{sTAG}")
for ks in range(4):
    e(f"s_waitcnt lgkmcnt({3-ks if E3 else 6-2*ks})")
    mfma(8, TT+4*ks, DD+4*ks, None if ks == 0 else 8)
e("s_nop 7")
e(f"v_cndmask_b32 v12, v8, v10, s[{sM2}:{sM2+1}]")
e(f"v_cndmask_b32 v14, v9, v11, s[{sM2}:{sM2+1}]")
e(f"global_store_dwordx4 v26, v[12:15], s[{sWS}:{sWS+1}] sc1")
e(f"s_cmp_lt_u32 s{sID}, 128")
e("s_cbranch_scc1 L_final")
ts(12)
if DIAG:
    e(f"s_cmp_lg_u32 s{sW}, 0")
    e("s_cbranch_scc1 L_end")
    dump_ts(0, 13)
e("s_endpgm")
lab("L_lo")
if LOC: ostoreB()
e(f"s_cmp_ge_u32 s{sID}, 56")
e("s_cbranch_scc1 L_final")
if not E3: e(f"s_waitcnt vmcnt({1 if WD == 1 else 1+(LOC>0)})")
e("s_branch L_mf")
lab("L_final")
e(f"s_cmp_lg_u32 s{sW}, 0")
e("s_cbranch_scc1 L_end")
e(f"s_lshl_b32 s{sT0}, s{sID}, 13")
e(f"s_add_u32 s{sT0}, s{sT0}, 4096")
e(f"v_lshl_add_u32 v16, v{vL}, 4, s{sT0}")
base(sB, sWS, WS_DP)
base(sB2, sWS, WS_SP)
e(f"s_lshl_b32 s{sT0}, s{sID}, 6")
e(f"v_lshl_add_u32 v17, v{vI}, 2, s{sT0}")
e(f"global_load_dword v18, v17, s[{sX}:{sX+1}]")
def fsum(R, n):
    e(f"v_add_f32 v8, v{R}, v{R+4}")
    e(f"v_add_f32 v9, v{R+2}, v{R+6}")
    e(f"v_add_f32 v10, v{R+8}, v{R+12}")
    e(f"v_add_f32 v11, v{R+10}, v{R+14}")
    for j in range(4, n):
        e(f"v_add_f32 v{8+2*(j&1)}, v{8+2*(j&1)}, v{R+4*j}")
        e(f"v_add_f32 v{9+2*(j&1)}, v{9+2*(j&1)}, v{R+4*j+2}")
def fred():
    e("v_pk_add_f32 v[8:9], v[8:9], v[10:11]")
    e("s_nop 1")
    e("v_permlane32_swap_b32 v8, v9")
    e("s_nop 0")
    e("v_add_f32 v8, v8, v9")
    e("v_mov_b32 v9, v8")
    e("s_nop 1")
    e("v_permlane16_swap_b32 v8, v9")
    e("s_nop 0")
    e("v_add_f32 v8, v8, v9")
    rbf(8)
e(f"v_mov_b32 v{DD+12}, 0")
e(f"v_mov_b32 v{DD+13}, s{sTAG}")
e(f"v_mov_b32 v{DD+14}, 0")
e(f"v_mov_b32 v{DD+15}, s{sTAG}")
if opt["fpre"]:
    c("cheap pre-wait: every workgroup has published its lse")
    e(f"v_lshlrev_b32 v6, 10, v{vG}")
    e(f"v_lshl_add_u32 v6, v{vI}, 4, v6")
    e(f"v_add_u32 v6, {WS_LSE + 4096}, v6")
    lab("L_fpoll")
    for u in range(2): e(f"global_load_dwordx4 v[{WR+4*u}:{WR+4*u+3}], v6, s[{sWS}:{sWS+1}] offset:{u*4096-4096} sc1")
    e("s_waitcnt vmcnt(0)")
    tagcheck([WR+1+2*k for k in range(4)], 4, 5, "L_fpoll", "L_fp", opt["fsleep"])
if opt["fdelay"]: e(f"s_sleep {opt['fdelay']}")
lab("L_dpoll")
for j in range(4):
    if j == 3: e("s_mov_b32 exec_hi, 0")
    e(f"global_load_dwordx4 v[{DD+4*j}:{DD+4*j+3}], v16, s[{sB}:{sB+1}] offset:{j*1024-4096} sc1")
e("s_mov_b32 exec_hi, -1")
def sissue(j):
    for k in range(8): e(f"global_load_dwordx4 v[{WR+32*j+4*k}:{WR+32*j+4*k+3}], v16, s[{sB2}:{sB2+1}] offset:{k*1024-4096} sc1")
if not opt["dsep"]: sissue(0)
e(f"s_waitcnt vmcnt({0 if opt['dsep'] else 8})")
tagcheck([DD+1+2*k for k in range(8)], 4, 5, "L_dpoll", "L_dp")
if opt["dsep"]: sissue(0)
SD = opt["spipe"]
fsum(DD, 4)
fred()
ts(11)
c("g = bf16(silu(d)); x half for this lane")
e("v_mul_f32 v10, 0xbfb8aa3b, v8")
e("v_exp_f32 v10, v10")
e("v_lshlrev_b32 v19, 16, v18")
e("v_add_f32 v10, 1.0, v10")
e("v_rcp_f32 v10, v10")
e("v_and_b32 v18, 0xffff0000, v18")
e("v_mul_f32 v20, v8, v10")
rbf(20)
e("s_mov_b32 exec_hi, 0")
e("v_mov_b32 v18, v19")
e("s_mov_b32 exec_hi, -1")
e(f"v_lshrrev_b32 v4, 5, v{vL}")
e("v_lshl_add_u32 v17, v4, 1, v17")
ppoll("L_sp", SD, 8, sissue, lambda j: [WR+32*j+1+2*k for k in range(16)], lambda j: fsum(WR+32*j, 8), opt["ssleep"], 1)
fred()
e("v_mul_f32 v8, v8, v20")
rbf(8)
e("v_add_f32 v8, v8, v18")
e("v_cvt_pk_bf16_f32 v8, v8, v8")
e("s_mov_b32 exec_lo, 0xffff")
e("s_mov_b32 exec_hi, 0xffff")
e(f"global_store_short v17, v8, s[{sOUT}:{sOUT+1}]" + ["", " sc1", " sc0 sc1", " nt"][opt.get("osc", 0)])
ts(12)
e(f"s_cmp_lg_u32 s{sID}, 0")
e("s_cbranch_scc1 L_fin2")
e("s_mov_b64 exec, 1")
e("v_mov_b32 v4, 0")
e(f"v_mov_b32 v5, s{sTAG}")
e(f"global_store_dword v4, v5, s[{sWS}:{sWS+1}]" + ["", " sc1", " sc0 sc1", " nt"][opt.get("osc", 0)])
lab("L_fin2")
dump_ts(0, 13)
lab("L_end")
e("s_endpgm")
lab("L_service")
if opt["prio"]: e(f"s_setprio {opt['prio']}")
e("v_mov_b32 v8, 0")
e(f"v_lshlrev_b32 v4, 2, v{vL}")
e(f"v_add_u32 v4, {ZB}, v4")
e("ds_write_b32 v4, v8")
locinit()
if LOC > 1:
    c("bring the lines of the local o / lse copies of this head into L2")
    e(f"s_cmp_lt_u32 s{sID}, 128")
    e("s_cbranch_scc1 L_nopt")
    e(f"s_lshl_b32 s{sT0}, s{sU_}, 12")
    e(f"s_add_u32 s{sT0}, s{sT0}, {WS_OP}")
    e(f"v_lshl_add_u32 v5, v{vL}, 6, s{sT0}")
    e(f"global_load_dword v6, v5, s[{sWA}:{sWA+1}]")
    e(f"s_lshl_b32 s{sT0}, s{sU_}, 6")
    e(f"s_add_u32 s{sT0}, s{sT0}, {WS_LSE}")
    e(f"v_mov_b32 v5, s{sT0}")
    e(f"global_load_dword v7, v5, s[{sWA}:{sWA+1}]")
    lab("L_nopt")
c("q source: Y + b*YROW + hkv*2048 + lane*16 (+1024)")
e(f"s_lshr_b32 s{sT0}, s{sA}, 5")
e(f"s_mul_i32 s{sT0}, s{sT0}, {YROW}")
e(f"s_bfe_u32 s{sT1}, s{sA}, 0x30002")
e(f"s_lshl_b32 s{sT1}, s{sT1}, 11")
e(f"s_add_u32 s{sT0}, s{sT0}, s{sT1}")
e(f"s_add_u32 s{sT0}, s{sT0}, {WS_Y}")
e(f"v_lshl_add_u32 v16, v{vL}, 4, s{sT0}")
base(sB, sWA, f"s{sT0}")
if opt["qpt"]:
    for u in range(2): e(f"global_load_dwordx4 v[{WR+4*u}:{WR+4*u+3}], v16, s[{sWA}:{sWA+1}] offset:{u*1024}")
e(f"v_lshrrev_b32 v4, 5, v{vL}")
e("v_mul_u32_u24 v17, 272, v4")
e(f"v_and_b32 v4, 31, v{vL}")
e("v_lshl_add_u32 v17, v4, 3, v17")
e(f"v_add_u32 v17, {QB}, v17")
c("h source v26..v29, h dest v20")
e(f"s_lshr_b32 s{sT0}, s{sU_}, 2")
e(f"s_lshl_b32 s{sT0}, s{sT0}, 9")
e(f"s_add_u32 s{sT0}, s{sT0}, {WS_Y + 16384 + 3584}")
e(f"v_lshrrev_b32 v5, 5, v{vL}")
e(f"v_mul_u32_u24 v26, {YROW}, v5")
e(f"v_lshl_add_u32 v26, v4, 4, v26")
e(f"v_add_u32 v26, s{sT0}, v26")
for j in range(1, 4): e(f"v_add_u32 v{26+j}, {2*j*YROW}, v26")
e(f"v_add_u32 v20, {OB - QB}, v17")
c("slab read v21, Y publish v22, ml read v24, lse publish v25")
e(f"v_lshlrev_b32 v21, 4, v{vL}")
e(f"v_add_u32 v21, {P1S}, v21")
e(f"v_and_b32 v4, 7, v{vI}")
e(f"v_mul_u32_u24 v22, {YROW}, v4")
e(f"v_lshrrev_b32 v4, 3, v{vI}")
e("v_lshl_add_u32 v22, v4, 6, v22")
e(f"v_lshl_add_u32 v22, v{vG}, 4, v22")
e(f"s_lshl_b32 s{sT0}, s{sTILE}, 7")
e(f"s_add_u32 s{sT0}, s{sT0}, {WS_Y}")
e(f"v_add_u32 v22, s{sT0}, v22")
e(f"v_and_b32 v4, 3, v{vI}")
e("v_lshlrev_b32 v24, 5, v4")
e(f"v_add_u32 v24, {MB}, v24")
e(f"s_bfe_u32 s{sT0}, s{sA}, 0x30002")
e(f"s_lshl_b32 s{sT0}, s{sT0}, 10")
e(f"s_and_b32 s{sT1}, s{sID}, 0xe0")
e(f"s_add_u32 s{sT0}, s{sT0}, s{sT1}")
e(f"s_and_b32 s{sT1}, s{sA}, 3")
e(f"s_lshl_b32 s{sT1}, s{sT1}, 3")
e(f"s_add_u32 s{sT0}, s{sT0}, s{sT1}")
e(f"s_add_u32 s{sT0}, s{sT0}, {WS_LSE}")
e(f"v_lshl_add_u32 v25, v4, 8, s{sT0}")
e("s_waitcnt lgkmcnt(0)")
tagfix()
e(f"v_mov_b32 v13, s{sTAG}")
e(f"v_mov_b32 v15, s{sTAG}")
e(f"s_cmp_ge_u32 s{sID}, 240")
e("s_cbranch_scc1 L_sv1")
e("s_barrier")
e("s_barrier")
for p in range(8): e(f"ds_read_b128 v[{TT+4*p}:{TT+4*p+3}], v21 offset:{p*1024}")
for p in range(4):
    e(f"s_waitcnt lgkmcnt({3-p})")
    for k in (0, 2): e(f"v_pk_add_f32 v[{TT+4*p+k}:{TT+4*p+k+1}], v[{TT+4*p+k}:{TT+4*p+k+1}], v[{TT+16+4*p+k}:{TT+16+4*p+k+1}]")
for p in range(2):
    for k in (0, 2): e(f"v_pk_add_f32 v[{TT+4*p+k}:{TT+4*p+k+1}], v[{TT+4*p+k}:{TT+4*p+k+1}], v[{TT+8+4*p+k}:{TT+8+4*p+k+1}]")
for k in (0, 2): e(f"v_pk_add_f32 v[{TT+k}:{TT+k+1}], v[{TT+k}:{TT+k+1}], v[{TT+4+k}:{TT+4+k+1}]")
e(f"v_cvt_pk_bf16_f32 v12, v{TT}, v{TT+1}")
e(f"v_cvt_pk_bf16_f32 v14, v{TT+2}, v{TT+3}")
QL = LOC and opt["qloc"]
if QL: e(f"global_store_dwordx4 v22, v[12:15], s[{sWA}:{sWA+1}]")
e(f"global_store_dwordx4 v22, v[12:15], s[{sWS}:{sWS+1}] sc1")
if opt.get("b2b"): e("s_barrier")
lab("L_sv1")
ts(2)
D = opt["qpipe"]
def qissue(j):
    for u in range(2): e(f"global_load_dwordx4 v[{WR+8*j+4*u}:{WR+8*j+4*u+3}], v16, s[{sP if QL else sWS}:{(sP if QL else sWS)+1}] offset:{u*1024} sc1")
def qwrite(j):
    e(f"ds_write2_b32 v17, v{WR+8*j}, v{WR+8*j+2} offset0:0 offset1:1")
    e(f"ds_write2_b32 v17, v{WR+8*j+4}, v{WR+8*j+6} offset0:136 offset1:137")
if opt["qdelay"]: e(f"s_sleep {opt['qdelay']}")
if opt["sq"]:
    c("scalar pre-wait: one tag of each of the 16 producers")
    e(f"s_mov_b32 s{sT2}, 40")
    lab("L_sq")
    for p in range(16): e(f"s_load_dword s{4+p}, s[{sB}:{sB+1}], {128*p+4} glc")
    e("s_waitcnt lgkmcnt(0)")
    e(f"s_xor_b32 s{sT0}, s4, s{sTAG}")
    for p in range(1, 16):
        e(f"s_xor_b32 s{sT1}, s{4+p}, s{sTAG}")
        e(f"s_or_b32 s{sT0}, s{sT0}, s{sT1}")
    e("s_cbranch_scc0 L_sqok")
    e(f"s_sub_u32 s{sT2}, s{sT2}, 1")
    if opt["sq"] > 1: e(f"s_sleep {opt['sq']}")
    e(f"s_cmp_gt_i32 s{sT2}, 0")
    e("s_cbranch_scc1 L_sq")
    lab("L_sqok")
    ts(1)
if opt["hold"]:
    qissue(0)
    e("s_barrier")
ppoll("L_qp", D, 2, qissue, lambda j: [WR+8*j+1+2*k for k in range(4)], qwrite, opt["qsleep"], opt["hold"], True)
ts(4)
def hissue():
    for u in range(4):
        e(f"global_load_dwordx4 v[{VR+8*u}:{VR+8*u+3}], v{26+u}, s[{sWS}:{sWS+1}] offset:-3584 sc1")
        e(f"global_load_dwordx4 v[{VR+8*u+4}:{VR+8*u+7}], v{26+u}, s[{sWS}:{sWS+1}] offset:3584 sc1")
e("s_waitcnt lgkmcnt(0)")
e("s_barrier")
e(f"s_cmp_ge_u32 s{sID}, 56")
e("s_cbranch_scc1 L_sv2")
hissue()
lab("L_sv2")
if opt["slse"]:
    c("split weights of this head: lanes 0..31 = (b, split)")
    e(f"s_mov_b64 s[{sP}:{sP+1}], s[{sWA}:{sWA+1}]")
    e(f"s_lshr_b32 s{sT0}, s{sU_}, 2")
    e(f"s_lshl_b32 s{sT0}, s{sT0}, 8")
    e(f"s_add_u32 s{sT0}, s{sT0}, {WS_LSE}")
    e(f"v_and_b32 v6, 31, v{vL}")
    e(f"v_lshl_add_u32 v16, v6, 3, s{sT0}")
    e(f"v_lshlrev_b32 v17, 2, v6")
    e(f"v_add_u32 v17, {HB}, v17")
e("s_barrier")
mlcomb()
e("v_rcp_f32 v4, v7")
e("s_mov_b64 exec, 15")
for k in range(0, 8, 2): e(f"v_pk_mul_f32 v[{8+k}:{9+k}], v[{8+k}:{9+k}], v[4:5] op_sel_hi:[1,0]")
e(f"v_add_u32 v4, {FB - MB}, v24")
e("ds_write_b128 v4, v[8:11]")
e("ds_write_b128 v4, v[12:15] offset:16")
e("v_log_f32 v7, v7")
e(f"v_mov_b32 v9, s{sTAG}")
e("v_add_f32 v8, v6, v7")
e("s_mov_b64 exec, 15")
if LOC: e(f"global_store_dwordx2 v25, v[8:9], s[{sWA}:{sWA+1}]")
if opt["slse"]:
    e(f"s_cmp_lt_u32 s{sID}, 128")
    e("s_cbranch_scc1 L_sv6")
    e("s_mov_b64 exec, -1")
    e(f"global_load_dwordx2 v[12:13], v16, s[{sP}:{sP+1}] sc1")
    e("s_mov_b64 exec, 15")
    lab("L_sv6")
e(f"global_store_dwordx2 v25, v[8:9], s[{sWS}:{sWS+1}] sc1")
e("s_mov_b64 exec, -1")
ts(3)
if opt["slse"]:
    e(f"s_cmp_lt_u32 s{sID}, 128")
    e("s_cbranch_scc1 L_sv4")
    e("s_waitcnt vmcnt(1)")
    e("s_branch L_slc")
    lab("L_slp")
    e(f"global_load_dwordx2 v[12:13], v16, s[{sP}:{sP+1}] sc1")
    e("s_waitcnt vmcnt(0)")
    lab("L_slc")
    tagcheck([13, 13], 4, 5, "L_slp", "L_sl", opt["lsleep"], True)
    e("v_mov_b32 v10, v12")
    for m in ["quad_perm:[1,0,3,2]", "quad_perm:[2,3,0,1]"]:
        e("s_nop 1")
        e(f"v_max_f32_dpp v10, v10, v10 {m} row_mask:0xf bank_mask:0xf")
    e("v_sub_f32 v8, v12, v10")
    e("v_exp_f32 v8, v8")
    e("s_nop 0")
    e("v_mov_b32 v10, v8")
    for m in ["quad_perm:[1,0,3,2]", "quad_perm:[2,3,0,1]"]:
        e("s_nop 1")
        e(f"v_add_f32_dpp v10, v10, v10 {m} row_mask:0xf bank_mask:0xf")
    e("v_rcp_f32 v10, v10")
    e("s_nop 0")
    e("v_mul_f32 v8, v8, v10")
    e("ds_write_b32 v17, v8")
    e("s_branch L_sv5")
    lab("L_sv4")
e(f"s_cmp_ge_u32 s{sID}, 56")
e("s_cbranch_scc1 L_sv5")
e(f"s_waitcnt vmcnt({1+(LOC>0)})")
e("s_branch L_hchk")
lab("L_hpoll")
hissue()
e("s_waitcnt vmcnt(0)")
lab("L_hchk")
tagcheck([VR+1+2*k for k in range(16)], 4, 5, "L_hpoll", "L_hp")
for u in range(4):
    for k in range(2):
        g_, u_ = VR+8*u+2*k, VR+8*u+4+2*k
        e(f"v_lshlrev_b32 v4, 16, v{g_}")
        e(f"v_and_b32 v5, 0xffff0000, v{g_}")
        e(f"v_lshlrev_b32 v6, 16, v{u_}")
        e(f"v_and_b32 v7, 0xffff0000, v{u_}")
        e("v_max_f32 v4, 0, v4")
        e("v_max_f32 v5, 0, v5")
        e("v_mul_f32 v4, v4, v6")
        e("v_mul_f32 v5, v5, v7")
        e(f"v_cvt_pk_bf16_f32 v{8+2*u+k}, v4, v5")
for u in range(4): e(f"ds_write_b64 v20, v[{8+2*u}:{9+2*u}] offset:{u*544}")
lab("L_sv5")
ts(5)
e("s_waitcnt lgkmcnt(0)")
e("s_barrier")
lab("L_sv3")
if DIAG:
    e(f"s_mov_b32 s{sTS+12}, s{sCNT}")
    dump_ts(1, 7)
e("s_endpgm")

hdr = open("cdna_kernels/%s.s.ref" % NAME).read().split("; Override launch")[0]
out = hdr + f"; @launch grid=(256,1,1) block=(576,1,1) lds={LDS}\n"
out += f""".amdgcn_target "amdgcn-amd-amdhsa--gfx950"
.text
.globl {NAME}_kernel
.p2align 8
.type {NAME}_kernel,@function
{NAME}_kernel:
""" + "\n".join(L) + f"""
.section .rodata,"a"
.p2align 6
.amdhsa_kernel {NAME}_kernel
  .amdhsa_next_free_vgpr 164
  .amdhsa_next_free_sgpr 96
  .amdhsa_accum_offset 164
  .amdhsa_group_segment_fixed_size 0
  .amdhsa_kernarg_size 96
  .amdhsa_user_sgpr_count 2
  .amdhsa_user_sgpr_kernarg_segment_ptr 1
  .amdhsa_system_sgpr_workgroup_id_x 1
.end_amdhsa_kernel
"""
open(sys.argv[1], "w").write(out)
```

```python
import sys
NAME = "recurrent_scan__sliding_block_cached__glu_gated_reglu__decode"
opt = dict(diag=0, nt=1, spin=5000, sleep=4, prio=3, th=63, qpipe=1, qsleep=4, k1=4, b2b=1, opipe=1, osleep=1, spipe=1, ssleep=4, kprio=2, vs=5, va=8, vb=8, vc=8, wa=0, wb=0, wc=0, rot=3, opre=0, fpre=1, fsleep=8, lsleep=1, sq=0, qdelay=36, e3=0, loc=1, lm=15, qloc=1, qpt=0, slse=0, wd=0, fdelay=0, dsep=0, hold=1, v0=2, w1nt=0, w3nt=0, knt=255, vnt=255, rc=0)
for a in sys.argv[2:]:
    k, v = a.split("="); opt[k] = int(v)
DIAG = opt["diag"]; NT = ["", " nt", " sc1 nt", " sc0 sc1 nt", " sc1"][opt["nt"]]
L = []
def e(s): L.append("    " + s)
def lab(s): L.append(s + ":")
def c(s): L.append("    ; " + s)
WS_Y, WS_LSE, WS_OP, WS_SP, WS_DP, WS_DIAG = 0x1000, 0x40000, 0x50000, 0x100000, 0x200000, 0x400000
YROW = 30720
W1 = 65536; SLAB = W1; SLAB2 = W1 + 16384; P1S = W1 + 32768; XN = P1S + 8192; QB = XN + 8320; HB = QB + 1088; OB = HB + 2176
MB = OB + 2176; LB = MB + 128; ZB = LB + 128; FB = HB + 1024; W3 = (ZB + 256 + 1023) & ~1023; LDS = W3 + 32768
sX, sK, sV, sWQ, sWO, sG, sU, sD, sOUT, sWS = 4, 6, 8, 10, 12, 16, 18, 20, 22, 26
sID, sW, sTAG, sROLE = 28, 29, 30, 31
sB = 32
sB2 = 34
sSTR, sT0, sT1, sT2, sCNT = 36, 37, 38, 39, 40
sPL, sPH = 41, 42
sM = 44
sM2 = 46
sU_ = 48
sWA, sP = 54, 56
sTS = 64
vL, vG, vI = 1, 2, 3
WR, VR, TT, DD = 32, 64, 96, 128
nts = [0]
def ts(k):
    if DIAG: e(f"s_memrealtime s[{sTS+2*k}:{sTS+2*k+1}]")
def dump_ts(slot, n):
    if not DIAG: return
    e("s_waitcnt lgkmcnt(0)")
    if DIAG == 3:
        if slot: return
        nts[0] += 1
        e(f"s_cmp_lg_u32 s{sID}, {opt.get('swg', 0)}")
        e("s_cbranch_scc1 L_end")
        e(f"s_sub_u32 s{sT0}, s{sTS+2*opt['sk']}, s{sTS}")
        e(f"s_mul_i32 s{sT0}, s{sT0}, 10")
        e(f"s_add_u32 s{sT0}, s{sT0}, 3000")
        e(f"s_min_u32 s{sT0}, s{sT0}, 40000")
        lab(f"L_spin{nts[0]}")
        e("s_memrealtime s[4:5]")
        e("s_waitcnt lgkmcnt(0)")
        e(f"s_sub_u32 s4, s4, s{sTS}")
        e(f"s_cmp_lt_u32 s4, s{sT0}")
        e(f"s_cbranch_scc1 L_spin{nts[0]}")
        return
    if DIAG == 2:
        if slot: return
        e("s_mov_b64 exec, 1")
        e("v_mov_b32 v4, 0")
        e(f"s_not_b32 s{sT0}, s{sTS}")
        e(f"v_mov_b32 v5, s{sT0}")
        e("global_atomic_umax v4, v5, s[24:25] sc1")
        for k in range(n):
            e(f"v_mov_b32 v5, s{sTS+2*k}")
            e(f"s_cmp_lt_u32 s{sID}, 240")
            e(f"s_cbranch_scc0 L_dd{nts[0]}_{k}")
            e(f"global_atomic_umax v4, v5, s[24:25] offset:{4*k+4} sc1")
            lab(f"L_dd{nts[0]}_{k}")
        nts[0] += 1
        return
    e(f"s_lshl_b32 s{sT0}, s{sID}, 8")
    e(f"s_add_u32 s{sT0}, s{sT0}, {WS_DIAG + slot*64}")
    e(f"v_mov_b32 v4, s{sT0}")
    e("s_mov_b64 exec, 1")
    for k in range(n):
        e(f"v_mov_b32 v5, s{sTS+2*k}")
        e(f"global_store_dword v4, v5, s[{sWS}:{sWS+1}] offset:{4*k}")
    e("s_getreg_b32 s37, hwreg(HW_REG_XCC_ID)")
    e("v_mov_b32 v5, s37")
    e(f"global_store_dword v4, v5, s[{sWS}:{sWS+1}] offset:60")
    e("s_getreg_b32 s37, hwreg(HW_REG_HW_ID)")
    e("v_mov_b32 v5, s37")
    e(f"global_store_dword v4, v5, s[{sWS}:{sWS+1}] offset:56")
def base(dst, src, off):
    e(f"s_add_u32 s{dst}, s{src}, {off}")
    e(f"s_addc_u32 s{dst+1}, s{src+1}, 0")
def transpose(src, dst):
    for q in range(4):
        for j in range(4):
            a, b = src + 8*j + q, src + 8*j + 4 + q
            e(f"v_perm_b32 v{dst+8*q+j}, v{b}, v{a}, s{sPL}")
            e(f"v_perm_b32 v{dst+8*q+4+j}, v{b}, v{a}, s{sPH}")
def mfma(d, a, b, cc):
    cs = "0" if cc is None else f"v[{cc}:{cc+3}]"
    e(f"v_mfma_f32_16x16x32_bf16 v[{d}:{d+3}], v[{a}:{a+3}], v[{b}:{b+3}], {cs}")
def xlane(op, v, t, full=False, half=False):
    if full:
        for m in ["quad_perm:[1,0,3,2]", "quad_perm:[2,3,0,1]", "row_half_mirror", "row_mirror"]:
            e("s_nop 1")
            e(f"{op}_dpp v{v}, v{v}, v{v} {m} row_mask:0xf bank_mask:0xf")
    if half:
        e("s_nop 1")
        e(f"{op}_dpp v{v}, v{v}, v{v} row_ror:8 row_mask:0xf bank_mask:0xf")
    for sw in ["v_permlane16_swap_b32", "v_permlane32_swap_b32"]:
        e(f"v_mov_b32 v{t}, v{v}")
        e("s_nop 1")
        e(f"{sw} v{v}, v{t}")
        e("s_nop 0")
        e(f"{op} v{v}, v{v}, v{t}")
def rbf(v):
    e(f"v_cvt_pk_bf16_f32 v{v}, 0, v{v}")
def locinit():
    base(sWA, sWS, 0x300000 if opt["loc"] else 0)
    e(f"s_mov_b64 s[{sP}:{sP+1}], s[{sWA}:{sWA+1}]")
def locsel(f):
    if not opt["loc"]: return
    e(f"s_and_b32 s{sT0}, s{sCNT}, {opt['lm']}")
    e(f"s_cselect_b64 s[{sP}:{sP+1}], s[{sWA}:{sWA+1}], s[{sWS}:{sWS+1}]")
    if f is not True:
        nts[0] += 1
        e(f"s_cbranch_scc1 L_ls{nts[0]}")
        f()
        lab(f"L_ls{nts[0]}")
def tagcheck(regs, t0, t1, lfail_loop, name, sl=None, loc=False):
    sl = opt["sleep"] if sl is None else sl
    e(f"v_min3_u32 v{t0}, v{regs[0]}, v{regs[1]}, v{regs[1]}")
    e(f"v_max3_u32 v{t1}, v{regs[0]}, v{regs[1]}, v{regs[1]}")
    for k in range(2, len(regs), 2):
        e(f"v_min3_u32 v{t0}, v{t0}, v{regs[k]}, v{regs[k+1]}")
        e(f"v_max3_u32 v{t1}, v{t1}, v{regs[k]}, v{regs[k+1]}")
    e(f"v_cmp_ne_u32 vcc, s{sTAG}, v{t0}")
    e(f"v_cmp_ne_u32 s[{sM}:{sM+1}], s{sTAG}, v{t1}")
    e(f"s_or_b64 vcc, vcc, s[{sM}:{sM+1}]")
    e(f"s_cbranch_scc0 {name}_ok")
    e(f"s_sub_u32 s{sCNT}, s{sCNT}, 1")
    if loc: locsel(loc)
    if sl: e(f"s_sleep {sl}")
    e(f"s_cmp_gt_i32 s{sCNT}, 0")
    e(f"s_cbranch_scc1 {lfail_loop}")
    lab(f"{name}_ok")
def tagcmp(regs, okl):
    e(f"v_min_u32 v4, v{regs[0]}, v{regs[1]}")
    e(f"v_max_u32 v5, v{regs[0]}, v{regs[1]}")
    for k in range(2, len(regs), 2):
        e(f"v_min3_u32 v4, v4, v{regs[k]}, v{regs[k+1]}")
        e(f"v_max3_u32 v5, v5, v{regs[k]}, v{regs[k+1]}")
    e(f"v_cmp_ne_u32 vcc, s{sTAG}, v4")
    e(f"v_cmp_ne_u32 s[{sM}:{sM+1}], s{sTAG}, v5")
    e(f"s_or_b64 vcc, vcc, s[{sM}:{sM+1}]")
    e(f"s_cbranch_scc0 {okl}")
def ppoll(name, D, n, issue, tags, cont, sl, pre=0, loc=False):
    if pre == D: e(f"s_branch {name}_in")
    for j in range(pre, D-1):
        issue(j)
        if sl: e(f"s_sleep {sl}")
    lab(name)
    for j in range(D):
        issue((j+D-1) % D)
        if j == 0 and pre == D: lab(f"{name}_in")
        e(f"s_waitcnt vmcnt({n*(D-1)})")
        tagcmp(tags(j), f"{name}_{j}")
        if sl: e(f"s_sleep {sl}")
    e(f"s_sub_u32 s{sCNT}, s{sCNT}, 1")
    if loc: locsel(loc)
    e(f"s_cmp_gt_i32 s{sCNT}, 0")
    e(f"s_cbranch_scc1 {name}")
    for j in range(D-1, -1, -1):
        lab(f"{name}_{j}")
        cont(j)
        if j: e(f"s_branch {name}_done")
    lab(f"{name}_done")

def remap(v, t, bit):
    if not (opt.get("rm", 0) >> bit) & 1: return
    e(f"v_and_b32 v{t}, 0x180, v{v}")
    e(f"v_cmp_eq_u32 vcc, 0x180, v{t}")
    e(f"v_add_u32 v{t}, {0x500000 - 0x180:#x}, v{v}")
    e("s_nop 1")
    e(f"v_cndmask_b32 v{v}, v{v}, v{t}, vcc")
TH = opt["th"]; K1 = opt["k1"]
def thr():
    if TH < 63: e(f"s_waitcnt vmcnt({TH-1})")
def tagfix():
    e(f"s_mul_i32 s{sTAG}, s{sTAG}, 0x9E3779B1")
    e(f"s_add_u32 s{sTAG}, s{sTAG}, 0x7F4A7C15")
def kdma(lo, hi):
    for jj in range(lo, hi):
        if jj == 4:
            e(f"s_add_u32 s{sT2}, s{sKM}, 4096")
            e(f"s_mov_b32 m0, s{sT2}")
            for q in range(4): e(f"v_add_u32 v{16+q}, s{sKS}, v{16+q}" if opt["rc"] else f"v_xor_b32 v{16+q}, 0x1000, v{16+q}")
        if lo and opt.get("thk"): thr()
        e(f"global_load_lds_dwordx4 v{16+(jj&3)}, s[{sK}:{sK+1}] offset:{(jj&3)*1024}" + (NT if (opt["knt"] >> jj) & 1 else ""))
sKM, sTILE, sHB, sA = 49, 50, 51, 52
LOC = opt["loc"]
sSP = 53; sKS = 58; E3 = opt["e3"]
WP = [0, opt["wa"], opt["wb"], opt["wc"], 4]
def w3(p):
    if WP[p] == WP[p+1]: return
    e(f"s_cmp_lg_u32 s{sROLE}, 0")
    e(f"s_cbranch_scc0 L_now3{p}")
    for jj in range(WP[p], WP[p+1]):
        e(f"global_load_lds_dwordx4 v25, s[{sB2}:{sB2+1}] offset:{jj*1024}" + ["", " nt"][opt["w3nt"]])
        if jj < 3: e(f"v_add_u32 v25, 3072, v25")
        if jj == 1: e("v_xor_b32 v25, 0x80, v25")
    lab(f"L_now3{p}")
def w3addr():
    c("phase-3 role: wo (id>=128) or down (id<56); W3 dma base sB2, voff v25; tr addr v27; operand addr v28; publish v26")
    e(f"s_sub_u32 s{sT1}, s{sID}, 56")
    e(f"s_cmp_lt_u32 s{sT1}, 72")
    e(f"s_cselect_b32 s{sROLE}, 0, 1")
    e(f"s_cmp_lt_u32 s{sID}, 128")
    e(f"s_cselect_b64 s[{sB2}:{sB2+1}], s[{sD}:{sD+1}], s[{sWO}:{sWO+1}]")
    e(f"s_mov_b32 s{sSP}, {WS_SP}")
    e(f"s_cselect_b32 s{sSP}, {WS_DP}, s{sSP}")
    e(f"s_lshr_b32 s{sT1}, s{sU_}, 2")
    e(f"s_lshl_b32 s{sT0}, s{sT1}, 17")
    e(f"s_lshl_b32 s{sT1}, s{sT1}, 8")
    e(f"s_add_u32 s{sSP}, s{sSP}, s{sT1}")
    e(f"s_lshl_b32 s{sT1}, s{sW}, 14")
    e(f"s_add_u32 s{sT0}, s{sT0}, s{sT1}")
    e(f"s_and_b32 s{sT1}, s{sU_}, 3")
    e(f"s_lshl_b32 s{sT2}, s{sT1}, 8")
    e(f"s_add_u32 s{sT0}, s{sT0}, s{sT2}")
    base(sB2, sB2, f"s{sT0}")
    e(f"v_lshlrev_b32 v4, 1, v{vG}")
    e(f"v_xor_b32 v4, v4, v{vI}")
    e("v_lshlrev_b32 v4, 4, v4")
    e(f"v_lshl_add_u32 v25, v{vG}, 10, v4")
    e(f"s_lshl_b32 s{sT2}, s{sW}, 12")
    e(f"s_add_u32 s{sT2}, s{sT2}, {W3}")
    e(f"s_mov_b32 m0, s{sT2}")
def vwait(n, nm):
    e(f"s_cbranch_scc1 {nm}")
    e(f"s_waitcnt vmcnt({n})")
    lab(nm)
    e(f"s_waitcnt vmcnt({n+4})")
e("s_load_dwordx16 s[4:19], s[0:1], 0")
e("s_load_dwordx8 s[20:27], s[0:1], 64")
ts(0)
e("s_cmp_ge_u32 s2, 256")
e("s_cbranch_scc1 L_end")
e(f"s_mov_b32 s{sID}, s2")
e("v_lshrrev_b32 v4, 6, v0")
e(f"v_and_b32 v{vL}, 63, v0")
e(f"v_readfirstlane_b32 s{sW}, v4")
e(f"v_bfe_u32 v{vG}, v0, 4, 2")
e(f"v_and_b32 v{vI}, 15, v0")
e(f"s_mov_b32 s{sCNT}, {opt['spin']}")
c("phase-1 tile T = (id&~15) | (id&7)<<1 | (id>>3)&1")
e(f"s_and_b32 s{sT0}, s{sID}, 7")
e(f"s_lshl_b32 s{sT0}, s{sT0}, 1")
e(f"s_bfe_u32 s{sT1}, s{sID}, 0x10003")
e(f"s_or_b32 s{sT0}, s{sT0}, s{sT1}")
e(f"s_and_b32 s{sT1}, s{sID}, 0xf0")
e(f"s_or_b32 s{sTILE}, s{sT0}, s{sT1}")
c("X = (id&7)<<4 | (id>>3)&15 : q tile (id<128) or wo unit (id>=128); attention id A = b<<5 | (id&7)<<2 | (id>>3)&3")
e(f"s_and_b32 s{sT0}, s{sID}, 7")
e(f"s_bfe_u32 s{sT1}, s{sID}, 0x40003")
if opt.get("jx"): e(f"s_xor_b32 s{sT1}, s{sT1}, {opt['jx']}")
e(f"s_lshl4_add_u32 s{sT2}, s{sT0}, s{sT1}")
e(f"s_and_b32 s{sT1}, s{sT1}, 3")
e(f"s_lshl2_add_u32 s{sT0}, s{sT0}, s{sT1}")
e(f"s_and_b32 s{sT1}, s{sID}, 0xe0")
e(f"s_or_b32 s{sA}, s{sT0}, s{sT1}")
e(f"s_cmp_lt_u32 s{sID}, 128")
if opt["qloc"]: e(f"s_cselect_b32 s{sTILE}, s{sT2}, s{sTILE}")
e(f"s_cselect_b32 s{sU_}, s{sID}, s{sT2}")
e(f"s_movk_i32 s{sSTR}, 3584")
e(f"s_cmp_lt_u32 s{sID}, 128")
e(f"s_cselect_b32 s{sSTR}, 8192, s{sSTR}")
e(f"v_lshrrev_b32 v4, 2, v{vL}")
e(f"v_mul_u32_u24 v12, s{sSTR}, v4")
e(f"v_and_b32 v4, 3, v{vL}")
e("v_lshl_add_u32 v12, v4, 4, v12")
e(f"s_lshl_b32 s{sT0}, s{sW}, 10")
e(f"v_lshl_add_u32 v13, v{vL}, 4, s{sT0}")
e(f"s_lshl_b32 s{sKM}, s{sW}, 13")
e(f"s_lshl_b32 s{sT2}, s{sW}, 12")
e(f"s_add_u32 s{sT2}, s{sT2}, {W1}")
e(f"s_mov_b32 m0, s{sT2}")
e(f"s_lshl_b32 s{sT1}, s{sW}, 6")
e(f"s_mul_i32 s{sT1}, s{sT1}, s{sSTR}")
e(f"s_cmp_lt_u32 s{sTILE}, 184")
e(f"s_cselect_b32 s{sT0}, 0, 56")
e(f"s_and_b32 s{sT2}, s{sTILE}, 127")
e(f"s_sub_u32 s{sT0}, s{sT2}, s{sT0}")
e(f"s_lshl_b32 s{sT0}, s{sT0}, 6")
e(f"s_add_u32 s{sT1}, s{sT1}, s{sT0}")
e(f"s_lshl_b32 s{sT2}, s{sSTR}, 4")
e(f"s_sub_u32 s{sT2}, s{sT2}, 1024")
e("s_waitcnt lgkmcnt(0)")
ts(1)
e(f"s_load_dword s{sTAG}, s[{sWS}:{sWS+1}], 0")
e(f"s_cmp_eq_u32 s{sW}, 8")
e("s_cbranch_scc1 L_service")
e(f"s_cmp_ge_u32 s{sID}, 240")
e("s_cbranch_scc1 L_now1")
if opt.get("wprio"): e("s_setprio 2")
e(f"global_load_dwordx4 v[8:11], v13, s[{sX}:{sX+1}]")
e(f"s_cmp_lt_u32 s{sTILE}, 184")
e(f"s_cselect_b64 s[{sB}:{sB+1}], s[{sG}:{sG+1}], s[{sU}:{sU+1}]")
e(f"s_cmp_lt_u32 s{sID}, 128")
e(f"s_cselect_b64 s[{sB}:{sB+1}], s[{sWQ}:{sWQ+1}], s[{sB}:{sB+1}]")
base(sB, sB, f"s{sT1}")
ST = opt.get("st", 0); SW = opt.get("sw", 0); sST = 59
for jj in range(4):
    if SW and jj == SW:
        e(f"s_cmp_lt_u32 s{sID}, 128")
        e(f"s_cselect_b32 s{sST}, {14 if ST & 1 else 0}, {6 if ST & 2 else 0}")
        e(f"s_and_b32 s{sST}, s{sST}, s{sTILE}")
        e(f"s_cmp_eq_u32 s{sST}, 6")
        e("v_mov_b32 v61, v12")
        e(f"v_add_u32 v62, s{sT2}, v12")
        e(f"v_add_u32 v63, s{sT2}, v62")
        e("s_mov_b32 s60, m0")
        e("s_cbranch_scc1 L_now1")
    e(f"global_load_lds_dwordx4 v12, s[{sB}:{sB+1}] offset:{jj*1024}" + ["", " nt", " sc1", " sc0 sc1", " sc1 nt", " sc0"][opt["w1nt"]])
    if jj < 3: e(f"v_add_u32 v12, s{sT2}, v12")
lab("L_now1")
if E3 == 2:
    if opt.get("wprio"): e("s_setprio 0")
    w3addr(); WP = [0, 4, 4, 4, 4]; w3(0); WP = [4]*5
c("KV slice offset: (id>>2)<<20 + 786432 + (id&3)<<16 + wave<<13")
e(f"s_lshr_b32 s{sT0}, s{sA}, 2")
e(f"s_lshl_b32 s{sT0}, s{sT0}, 20")
e(f"s_and_b32 s{sT1}, s{sA}, 3")
e(f"s_lshl_b32 s{sT1}, s{sT1}, 16")
e(f"s_add_u32 s{sT0}, s{sT0}, s{sT1}")
e(f"s_add_u32 s{sT0}, s{sT0}, 786432")
base(sK, sK, f"s{sT0}")
base(sV, sV, f"s{sT0}")
e(f"v_xor_b32 v16, v{vI}, v{vG}")
e("v_lshlrev_b32 v16, 4, v16")
e(f"v_lshl_add_u32 v16, v{vG}, 8, v16")
c("first 4 KB block of this wave: (2w + (w>>2)) ^ r ; the second one is ^1 (spreads the HBM stacks)")
e(f"s_lshr_b32 s{sHB}, s{sW}, 2")
e(f"s_lshl_b32 s{sT1}, s{sW}, 1")
e(f"s_or_b32 s{sHB}, s{sHB}, s{sT1}")
if opt["rot"]:
    e(f"s_bfe_u32 s{sT1}, s{sID}, {0x30000 + opt['rot']:#x}")
    e(f"s_xor_b32 s{sHB}, s{sHB}, s{sT1}")
e(f"s_lshl_b32 s{sHB}, s{sHB}, 12")
RC = opt["rc"]
if RC:
    c("1 KB chunk order ^= c, row in chunk ^= c2 (c = w&3, c2 = (w+id>>3)&3): spreads the channels at any moment")
    e(f"s_and_b32 s{sT0}, s{sW}, 3")
    e(f"s_lshr_b32 s{sT1}, s{sID}, 3")
    e(f"s_add_u32 s{sT1}, s{sT1}, s{sW}")
    e(f"s_and_b32 s{sT1}, s{sT1}, 3")
    e(f"s_lshl2_add_u32 s{sT0}, s{sT0}, s{sT1}")
    e(f"s_lshl_b32 s{sT0}, s{sT0}, 8")
    e(f"s_or_b32 s{sHB}, s{sHB}, s{sT0}")
    e(f"v_xor_b32 v16, s{sHB}, v16")
    for q in range(1, 4):
        e(f"v_xor_b32 v{16+q}, {q*64 + q*1024:#x}, v16")
        e(f"v_subrev_u32 v{16+q}, {q*1024}, v{16+q}")
    for q in range(4): e(f"v_add_u32 v{16+q}, 0x1000, v{16+q}")
    e(f"s_sub_u32 s{sK}, s{sK}, 0x1000")
    e(f"s_subb_u32 s{sK+1}, s{sK+1}, 0")
    e(f"s_bitcmp1_b32 s{sHB}, 12")
    e(f"s_cselect_b32 s{sKS}, -4096, 4096") if False else None
    e(f"s_mov_b32 s{sKS}, 4096")
    e(f"s_cselect_b32 s{sKS}, -4096, s{sKS}")
else:
    e(f"v_or_b32 v16, s{sHB}, v16")
    e("v_xor_b32 v17, 64, v16")
    e("v_xor_b32 v18, 0x80, v16")
    e("v_xor_b32 v19, 0xc0, v16")
e(f"s_mov_b32 m0, s{sKM}")
ts(2)
e(f"s_cmp_ge_u32 s{sID}, 240")
e("s_cbranch_scc1 L_p1skip0")
c("layernorm of row w")
if E3 == 2:
    e(f"s_cmp_lg_u32 s{sROLE}, 0")
    vwait(4, "L_xw")
elif SW:
    e(f"s_cmp_eq_u32 s{sST}, 6")
    e("s_cbranch_scc0 L_sx")
    e(f"s_waitcnt vmcnt({SW})")
    lab("L_sx")
    e("s_waitcnt vmcnt(4)")
else: e(f"s_waitcnt vmcnt(4)")
ts(3)
for k in range(4):
    e(f"v_lshlrev_b32 v{TT+2*k}, 16, v{8+k}")
    e(f"v_and_b32 v{TT+2*k+1}, 0xffff0000, v{8+k}")
e(f"v_pk_add_f32 v[4:5], v[{TT}:{TT+1}], v[{TT+2}:{TT+3}]")
e(f"v_pk_add_f32 v[6:7], v[{TT+4}:{TT+5}], v[{TT+6}:{TT+7}]")
e("v_pk_add_f32 v[4:5], v[4:5], v[6:7]")
e("v_add_f32 v4, v4, v5")
xlane("v_add_f32", 4, 5, full=True)
e("v_mul_f32 v4, 0x3b000000, v4")
e(f"v_sub_f32 v5, v{TT}, v4")
e("v_mul_f32 v6, v5, v5")
for k in range(1, 8):
    e(f"v_sub_f32 v5, v{TT+k}, v4")
    e("v_fmac_f32 v6, v5, v5")
xlane("v_add_f32", 6, 5, full=True)
e("v_mul_f32 v6, 0x3b000000, v6")
rbf(4); rbf(6)
e("v_add_f32 v6, 0x3727c5ac, v6")
rbf(6)
e("v_sqrt_f32 v6, v6")
e("s_nop 0")
rbf(6)
e("v_rcp_f32 v6, v6")
for k in range(8): e(f"v_sub_f32 v{TT+k}, v{TT+k}, v4")
for k in range(4):
    e(f"v_cvt_pk_bf16_f32 v{8+k}, v{TT+2*k}, v{TT+2*k+1}")
    e(f"v_lshlrev_b32 v{TT+2*k}, 16, v{8+k}")
    e(f"v_and_b32 v{TT+2*k+1}, 0xffff0000, v{8+k}")
    e(f"v_mul_f32 v{TT+2*k}, v{TT+2*k}, v6")
    e(f"v_mul_f32 v{TT+2*k+1}, v{TT+2*k+1}, v6")
    e(f"v_cvt_pk_bf16_f32 v{8+k}, v{TT+2*k}, v{TT+2*k+1}")
e(f"s_mul_i32 s{sT0}, s{sW}, 1040")
e(f"s_add_u32 s{sT0}, s{sT0}, {XN}")
e(f"v_lshl_add_u32 v4, v{vL}, 4, s{sT0}")
e("ds_write_b128 v4, v[8:11]")
c("xn operand addresses (v6,v7), W tr-read address (v5), slab address (v4)")
e(f"v_and_b32 v5, 7, v{vI}")
e("v_mul_u32_u24 v4, 1040, v5")
e(f"v_lshl_add_u32 v4, v{vG}, 4, v4")
e(f"s_lshl_b32 s{sT0}, s{sW}, 7")
e(f"s_add_u32 s{sT0}, s{sT0}, {XN}")
e(f"v_add_u32 v4, s{sT0}, v4")
e(f"v_mov_b32 v5, {ZB}")
e(f"v_cmp_gt_u32 vcc, 8, v{vI}")
e(f"s_lshl_b32 s{sT0}, s{sW}, 12")
e(f"s_add_u32 s{sT0}, s{sT0}, {W1}")
e("v_cndmask_b32 v6, v5, v4, vcc")
e("v_cndmask_b32 v7, v4, v5, vcc")
e(f"v_lshrrev_b32 v4, 2, v{vI}")
e(f"v_lshl_add_u32 v4, v{vG}, 3, v4")
e(f"v_and_b32 v5, 3, v{vI}")
e("v_lshlrev_b32 v5, 3, v5")
e("v_lshl_add_u32 v5, v4, 6, v5")
e(f"v_add_u32 v5, s{sT0}, v5")
e(f"s_lshl_b32 s{sT0}, s{sW}, 10")
e(f"s_add_u32 s{sT0}, s{sT0}, {P1S}")
e(f"v_lshl_add_u32 v4, v{vL}, 4, s{sT0}")
e("s_waitcnt lgkmcnt(0)")
e("s_barrier")
for ks in range(2):
    for ct in range(2): e(f"ds_read_b128 v[{DD+8*ks+4*ct}:{DD+8*ks+4*ct+3}], v{6+ct} offset:{ks*64}")
ST = opt.get("st", 0); KM = opt.get("km", 0); sST = 59
def kmask(inv):
    for jj in range(4):
        if jj & 1 == 0:
            m = 0xFF000000 >> (8 * (jj >> 1))
            if inv: e(f"s_mov_b32 exec_lo, {m ^ 0xFFFFFFFF:#x}")
            else: e(f"s_mov_b64 exec, {m:#x}") if m < 0x80000000 else (e(f"s_mov_b32 exec_lo, {m:#x}"), e("s_mov_b32 exec_hi, 0"))
        kdma(jj, jj + 1)
    e("s_mov_b64 exec, -1")
if ST:
    c("tiles whose weight lines sit on the slow 128 B address class get all of K in flight first")
    e(f"s_cmp_lt_u32 s{sID}, 128")
    e(f"s_cselect_b32 s{sST}, {14 if ST & 1 else 0}, {6 if ST & 2 else 0}")
    e(f"s_and_b32 s{sST}, s{sST}, s{sTILE}")
    e(f"s_cmp_eq_u32 s{sST}, 6")
    e("s_cbranch_scc0 L_st0")
    SM = opt.get("sm", 0)
    if SW:
        kdma(0, 8 if SM == 0 else 4)
        e("s_mov_b32 m0, s60")
        e("s_nop 0")
        for jj in range(SW, 4): e(f"global_load_lds_dwordx4 v{61+jj-SW}, s[{sB}:{sB+1}] offset:{jj*1024}")
        e("s_waitcnt vmcnt(0)")
    elif SM == 0: kdma(0, 8); e("s_waitcnt vmcnt(8)")
    if SM >= 1: e("s_waitcnt vmcnt(0)")
    if SM == 2: kdma(0, 4)
    e("s_branch L_st1")
    lab("L_st0")
kmask(1) if KM else kdma(0, K1)
e(f"s_waitcnt vmcnt({K1})")
if KM == 2: kmask(0)
lab("L_st1")
ts(4)
for ks in range(2):
    for ct in range(2):
        for hh in range(2):
            r = TT+8*ks+4*ct+2*hh
            e(f"ds_read_b64_tr_b16 v[{r}:{r+1}], v5 offset:{ks*2048+hh*256+ct*32}")
e("s_waitcnt lgkmcnt(0)")
for n in range(4): mfma(8, TT+4*n, DD+4*n, None if n == 0 else 8)
e("s_nop 7")
e("ds_write_b128 v4, v[8:11]")
e("s_waitcnt lgkmcnt(0)")
e("s_barrier")
if opt.get("b2b"): e("s_barrier")
e("s_branch L_p1skip")
lab("L_p1skip0")
kmask(1) if KM == 1 else kdma(0, K1)
e(f"s_mov_b32 s{sST}, 0")
lab("L_p1skip")
ts(5)
if ST:
    e(f"s_cmp_eq_u32 s{sST}, 6")
    if SM == 0: e("s_cbranch_scc1 L_st2")
    else:
        e("s_cbranch_scc0 L_st3")
        if SM == 1: kdma(0, 4)
        e("s_branch L_st4")
        lab("L_st3")
if KM == 1: kmask(0)
lab("L_st4")
if opt.get("kprio"): e(f"s_setprio {opt['kprio']}")
kdma(K1, 8) if K1 else (kdma(0, 1), kdma(1, 8))
lab("L_st2")
if opt.get("kprio"): e("s_setprio 0")
e(f"v_lshlrev_b32 v59, 10, v{vG}")
e(f"v_lshl_add_u32 v59, v{vI}, 4, v59")
e(f"v_xor_b32 v59, s{sHB}, v59")
e(f"v_xor_b32 v60, 0x1000, v59")
VS = opt["vs"]; VP = [opt["va"], opt["vb"], opt["vc"], 8]
def vload(lo, hi):
    for j in range(lo, hi):
        if RC:
            if j: e(f"v_xor_b32 v{60+(j&1)}, {(j&3)*256 + (j>>2)*4096:#x}, v59")
            e(f"global_load_dwordx4 v[{VR+4*j}:{VR+4*j+3}], v{60+(j&1) if j else 59}, s[{sV}:{sV+1}]{NT}")
            continue
        e(f"global_load_dwordx4 v[{VR+4*j}:{VR+4*j+3}], v{59+(j>>2)}, s[{sV}:{sV+1}] offset:{(j&3)*256}" + (NT if (opt["vnt"] >> j) & 1 else ""))
if E3 < 2: w3addr()
if E3 == 1: WP = [0, 4, 4, 4, 4]; w3(0); WP = [4]*5
V0 = opt["v0"] if opt["hold"] else VS
vload(0, V0)
if not opt["hold"]: ts(6)
c("address precompute")
e(f"s_mov_b32 s{sPL}, 0x05040100")
e(f"s_mov_b32 s{sPH}, 0x07060302")
e("s_waitcnt lgkmcnt(0)")
tagfix()
locinit()
e(f"s_and_b32 s{sT1}, s{sU_}, 3")
e(f"s_lshl_b32 s{sT1}, s{sT1}, 15")
e(f"s_add_u32 s{sSP}, s{sSP}, s{sT1}")
e(f"s_lshr_b32 s{sT1}, s{sW}, 1")
e(f"s_lshl_b32 s{sT1}, s{sT1}, 13")
e(f"s_add_u32 s{sSP}, s{sSP}, s{sT1}")
e(f"s_and_b32 s{sT1}, s{sW}, 1")
e(f"s_lshl_b32 s{sT1}, s{sT1}, 7")
e(f"s_add_u32 s{sSP}, s{sSP}, s{sT1}")
e(f"v_and_b32 v4, 7, v{vI}")
e(f"v_lshl_add_u32 v26, v4, 17, s{sSP}")
e(f"v_lshl_add_u32 v26, v{vG}, 5, v26")
e(f"v_lshrrev_b32 v5, 3, v{vI}")
e("v_lshl_add_u32 v26, v5, 4, v26")
e("v_mul_u32_u24 v28, 272, v4")
e(f"v_lshl_add_u32 v28, v{vG}, 4, v28")
e(f"v_add_u32 v28, {OB}, v28")
e(f"v_lshrrev_b32 v4, 2, v{vI}")
e(f"v_bfe_u32 v5, v{vI}, 1, 1")
e(f"s_lshl_b32 s{sT1}, s{sW}, 1")
e(f"v_or_b32 v5, s{sT1}, v5")
e("v_lshlrev_b32 v6, 1, v4")
e("v_xor_b32 v5, v5, v6")
e(f"v_and_b32 v6, 1, v{vG}")
e("v_lshlrev_b32 v6, 3, v6")
e("v_xor_b32 v5, v5, v6")
e(f"v_lshl_add_u32 v4, v{vG}, 3, v4")
e("v_lshlrev_b32 v4, 8, v4")
e("v_lshl_add_u32 v27, v5, 4, v4")
e(f"v_and_b32 v4, 1, v{vI}")
e("v_lshl_add_u32 v27, v4, 3, v27")
e(f"v_add_u32 v27, {W3}, v27")
e(f"v_cmp_lt_u32 s[{sM2}:{sM2+1}], 7, v{vI}")
e(f"v_xor_b32 v16, v{vI}, v{vG}")
e("v_lshlrev_b32 v16, 4, v16")
e(f"v_lshl_add_u32 v16, v{vI}, 8, v16")
e(f"v_add_u32 v16, s{sKM}, v16")
e("v_xor_b32 v17, 64, v16")
e("v_xor_b32 v18, 0x80, v16")
e("v_xor_b32 v19, 0xc0, v16")
e(f"v_and_b32 v22, 3, v{vI}")
e("v_mul_u32_u24 v23, 272, v22")
e(f"v_lshl_add_u32 v23, v{vG}, 4, v23")
e(f"v_add_u32 v23, {QB}, v23")
e(f"v_lshlrev_b32 v4, 5, v22")
e(f"s_lshl_b32 s{sT2}, s{sW}, 2")
e(f"v_add_u32 v24, {MB}, v4")
e(f"v_add_u32 v29, s{sT2}, v24")
e(f"s_lshr_b32 s{sT0}, s{sU_}, 2")
e(f"s_lshl_b32 s{sT0}, s{sT0}, 3")
e(f"s_add_u32 s{sT0}, s{sT0}, s{sW}")
e(f"s_lshl_b32 s{sT1}, s{sT0}, 5")
e(f"s_add_u32 s{sT1}, s{sT1}, {WS_LSE}")
e(f"v_mov_b32 v57, s{sT1}")
remap(57, 61, 1)
e(f"s_lshl_b32 s{sT1}, s{sT0}, 11")
e(f"s_add_u32 s{sT1}, s{sT1}, {WS_OP}")
e(f"v_lshl_add_u32 v56, v{vL}, 3, s{sT1}")
remap(56, 61, 2)
c("obuf write address: b*272 + (16g+4r+2a+e2)*4, lane=(a,g,e2,r)")
e(f"v_bfe_u32 v4, v{vL}, 3, 2")
e("v_lshlrev_b32 v58, 6, v4")
e(f"v_and_b32 v4, 3, v{vL}")
e("v_lshl_add_u32 v58, v4, 4, v58")
e(f"v_lshrrev_b32 v4, 5, v{vL}")
e("v_lshl_add_u32 v58, v4, 3, v58")
e(f"v_and_b32 v4, 4, v{vL}")
e(f"s_mul_i32 s{sT0}, s{sW}, 272")
e(f"s_add_u32 s{sT0}, s{sT0}, {OB}")
e(f"v_add3_u32 v58, v58, v4, s{sT0}")
c("PV slab write v30, read v31, o publish v20")
e(f"s_lshl_b32 s{sT0}, s{sW}, 11")
e(f"s_add_u32 s{sT0}, s{sT0}, {SLAB}")
e(f"v_lshl_add_u32 v30, v{vL}, 4, s{sT0}")
e(f"v_lshlrev_b32 v31, 2, v0")
e(f"v_add_u32 v31, {SLAB}, v31")
e(f"v_bfe_u32 v4, v{vL}, 2, 2")
e("v_lshlrev_b32 v20, 14, v4")
e(f"v_lshrrev_b32 v4, 5, v{vL}")
e("v_lshl_add_u32 v20, v4, 5, v20")
e(f"v_and_b32 v4, 3, v{vL}")
e("v_lshl_add_u32 v20, v4, 3, v20")
e(f"s_bfe_u32 s{sT0}, s{sA}, 0x30002")
e(f"s_lshl_b32 s{sT0}, s{sT0}, 16")
e(f"s_lshr_b32 s{sT1}, s{sA}, 5")
e(f"s_lshl_b32 s{sT1}, s{sT1}, 11")
e(f"s_add_u32 s{sT0}, s{sT0}, s{sT1}")
e(f"s_and_b32 s{sT1}, s{sA}, 3")
e(f"s_lshl_b32 s{sT1}, s{sT1}, 9")
e(f"s_add_u32 s{sT0}, s{sT0}, s{sT1}")
e(f"s_lshl_b32 s{sT1}, s{sW}, 6")
e(f"s_add_u32 s{sT0}, s{sT0}, s{sT1}")
e(f"s_add_u32 s{sT0}, s{sT0}, {WS_OP}")
e(f"v_add_u32 v20, s{sT0}, v20")
remap(20, 61, 2)
if opt["hold"]:
    e("s_barrier")
    vload(V0, VS)
    ts(6)
if E3 == 1:
    e(f"s_cmp_lg_u32 s{sROLE}, 0")
    vwait(VS, "L_kw")
else: e(f"s_waitcnt vmcnt({VS})")
for t in range(2):
    for cc in range(4): e(f"ds_read_b128 v[{TT+16*t+4*cc}:{TT+16*t+4*cc+3}], v{16+cc} offset:{t*4096}")
e(f"s_mov_b32 s{sT0}, 0x3db504f3")
e(f"s_mov_b32 s{sT1}, 0x3fb8aa3b")
e("s_barrier")
ts(7)
for cc in range(4): e(f"ds_read_b128 v[{DD+4*cc}:{DD+4*cc+3}], v23 offset:{cc*64}")
e("s_waitcnt lgkmcnt(0)")
S = DD + 16
for cc in range(4):
    for t in range(2): mfma(S+4*t, TT+16*t+4*cc, DD+4*cc, None if cc == 0 else S+4*t)
vload(VS, VP[0])
w3(0)
e("s_nop 7")
for k in range(4): e(f"v_cvt_pk_bf16_f32 v{8+k}, v{S+2*k}, v{S+2*k+1}")
for k in range(4):
    e(f"v_lshlrev_b32 v{S+2*k}, 16, v{8+k}")
    e(f"v_and_b32 v{S+2*k+1}, 0xffff0000, v{8+k}")
for k in range(8): e(f"v_mul_f32 v{S+k}, s{sT0}, v{S+k}")
for k in range(4): e(f"v_cvt_pk_bf16_f32 v{8+k}, v{S+2*k}, v{S+2*k+1}")
for k in range(4):
    e(f"v_lshlrev_b32 v{S+2*k}, 16, v{8+k}")
    e(f"v_and_b32 v{S+2*k+1}, 0xffff0000, v{8+k}")
e(f"v_max3_f32 v6, v{S}, v{S+1}, v{S+2}")
e(f"v_max3_f32 v7, v{S+3}, v{S+4}, v{S+5}")
e(f"v_max3_f32 v6, v6, v{S+6}, v{S+7}")
e(f"v_max_f32 v6, v6, v7")
xlane("v_max_f32", 6, 7)
e(f"v_mul_f32 v23, s{sT1}, v6")
for k in range(8): e(f"v_fma_f32 v{S+k}, v{S+k}, s{sT1}, -v23")
for k in range(8): e(f"v_exp_f32 v{S+k}, v{S+k}")
e("s_nop 0")
e(f"v_pk_add_f32 v[4:5], v[{S}:{S+1}], v[{S+2}:{S+3}]")
e(f"v_pk_add_f32 v[6:7], v[{S+4}:{S+5}], v[{S+6}:{S+7}]")
e("v_pk_add_f32 v[4:5], v[4:5], v[6:7]")
e("v_add_f32 v7, v4, v5")
xlane("v_add_f32", 7, 8)
e("s_mov_b64 exec, 15")
e("ds_write2_b32 v29, v23, v7 offset0:0 offset1:32")
e("s_mov_b64 exec, -1")
vload(VP[0], VP[1])
w3(1)
e("s_waitcnt lgkmcnt(0)")
e("s_barrier")
vload(VP[1], VP[2])
w3(2)
def mlcomb():
    e("ds_read_b128 v[8:11], v24")
    e("ds_read_b128 v[12:15], v24 offset:16")
    e(f"ds_read_b128 v[{DD}:{DD+3}], v24 offset:128")
    e(f"ds_read_b128 v[{DD+4}:{DD+7}], v24 offset:144")
    e("s_waitcnt lgkmcnt(0)")
    e("v_max3_f32 v6, v8, v9, v10")
    e("v_max3_f32 v7, v11, v12, v13")
    e("v_max3_f32 v6, v6, v14, v15")
    e("v_max_f32 v6, v6, v7")
    for k in range(8): e(f"v_sub_f32 v{8+k}, v{8+k}, v6")
    for k in range(8): e(f"v_exp_f32 v{8+k}, v{8+k}")
    e(f"v_mul_f32 v7, v8, v{DD}")
    for k in range(1, 8): e(f"v_fmac_f32 v7, v{8+k}, v{DD+k}")
mlcomb()
e("v_sub_f32 v23, v23, v6")
e("v_rcp_f32 v8, v7")
e("v_exp_f32 v23, v23")
e(f"v_lshrrev_b32 v4, 2, v{vI}")
e("v_mul_f32 v23, v23, v8")
for k in range(8): e(f"v_mul_f32 v{S+k}, v23, v{S+k}")
for k in range(4): e(f"v_cvt_pk_bf16_f32 v{S+k}, v{S+2*k}, v{S+2*k+1}")
PM = DD + 20
for k in range(16): e(f"v_mov_b32 v{PM+k}, 0")
for cq in range(4):
    m = 0x000F000F << (4*cq)
    e(f"s_mov_b32 exec_lo, {m:#x}")
    e(f"s_mov_b32 exec_hi, {m:#x}")
    for k in range(0, 4, 2): e(f"v_pk_mov_b32 v[{PM+4*cq+k}:{PM+4*cq+k+1}], v[{S+k}:{S+k+1}], v[{S+k}:{S+k+1}] op_sel:[0,1]")
e("s_mov_b64 exec, -1")
e(f"v_mov_b32 v7, s{sTAG}")
ts(8)
vload(VP[2], 8)
WD = opt["wd"]
if not WD: w3(3)
e(f"s_cmp_lg_u32 s{sROLE}, 0")
for j in range(4):
    if WD == 2 and j == 3:
        w3(3); vwait(0, "L_vw3")
    elif E3 or WD: e(f"s_waitcnt vmcnt({6-2*j})")
    else: vwait(6-2*j, f"L_vw{j}")
    if j == 3: ts(9)
    for q in range(4):
        a, b = VR + 8*j + q, VR + 8*j + 4 + q
        e(f"v_perm_b32 v{TT+8*q+j}, v{b}, v{a}, s{sPL}")
        e(f"v_perm_b32 v{TT+8*q+4+j}, v{b}, v{a}, s{sPH}")
for cc in range(8): mfma(DD+4*(cc>>2), TT+4*cc, PM+4*(cc&3), None if (cc&3) == 0 else DD+4*(cc>>2))
e("s_nop 3")
e(f"ds_write_b128 v30, v[{DD}:{DD+3}]")
e("s_nop 2")
e(f"ds_write_b128 v30, v[{DD+4}:{DD+7}] offset:1024")
e("s_waitcnt lgkmcnt(0)")
e("s_barrier")
for k in range(4): e(f"ds_read2st64_b32 v[{8+2*k}:{9+2*k}], v31 offset0:{16*k} offset1:{16*k+8}")
e("s_waitcnt lgkmcnt(0)")
e("v_pk_add_f32 v[8:9], v[8:9], v[10:11]")
e("v_pk_add_f32 v[12:13], v[12:13], v[14:15]")
e("v_pk_add_f32 v[8:9], v[8:9], v[12:13]")
e("v_add_f32 v10, v8, v9")
e("v_add_f32 v11, v8, v9")
e("s_nop 1")
e("v_permlane16_swap_b32 v10, v11")
e("s_mov_b32 exec_lo, 0x0000FFFF")
e("s_mov_b32 exec_hi, 0x0000FFFF")
e("v_cvt_pk_bf16_f32 v6, v10, v11")
def ostoreB():
    e("s_mov_b32 exec_lo, 0x0000FFFF")
    e("s_mov_b32 exec_hi, 0x0000FFFF")
    e(f"global_store_dwordx2 v20, v[6:7], s[{sWS}:{sWS+1}] sc1")
    e("s_mov_b64 exec, -1")
if LOC: e(f"global_store_dwordx2 v20, v[6:7], s[{sWA}:{sWA+1}]")
else: e(f"global_store_dwordx2 v20, v[6:7], s[{sWS}:{sWS+1}] sc1")
e("s_mov_b64 exec, -1")
ts(10)
if WD == 1: w3(3)
def trread():
    for ks in range(4):
        for hh in range(2): e(f"ds_read_b64_tr_b16 v[{TT+4*ks+2*hh}:{TT+4*ks+2*hh+1}], v27 offset:{ks*8192+hh*1024}")
if E3: trread()
O = VR
e(f"s_cmp_lt_u32 s{sID}, 128")
e("s_cbranch_scc1 L_lo")
def lissue():
    for s_ in range(2): e(f"global_load_dwordx4 v[{O+4*s_}:{O+3+4*s_}], v57, s[{sP}:{sP+1}] offset:{s_*16} sc1")
def oissue(j):
    for s_ in range(4): e(f"global_load_dwordx2 v[{WR+8*j+2*s_}:{WR+8*j+2*s_+1}], v56, s[{sP}:{sP+1}] offset:{s_*512} sc1")
def ocont(j):
    R = WR+8*j
    for k in range(4):
        e(f"v_and_b32 v{R+2*k+1}, 0xffff0000, v{R+2*k}")
        e(f"v_lshlrev_b32 v{R+2*k}, 16, v{R+2*k}")
    e(f"v_pk_mul_f32 v[12:13], v[{R}:{R+1}], v[8:9] op_sel_hi:[1,0]")
    e(f"v_pk_mul_f32 v[14:15], v[{R+2}:{R+3}], v[8:9] op_sel:[0,1] op_sel_hi:[1,1]")
    e(f"v_pk_fma_f32 v[12:13], v[{R+4}:{R+5}], v[10:11], v[12:13] op_sel_hi:[1,0,1]")
    e(f"v_pk_fma_f32 v[14:15], v[{R+6}:{R+7}], v[10:11], v[14:15] op_sel:[0,1,0] op_sel_hi:[1,1,1]")
OD = opt["opipe"]
if opt["slse"]:
    PRE = 1
    oissue(0)
    e(f"s_lshl_b32 s{sT0}, s{sW}, 4")
    e(f"s_add_u32 s{sT0}, s{sT0}, {HB}")
    e(f"v_mov_b32 v4, s{sT0}")
    e("ds_read_b128 v[8:11], v4")
    e("s_waitcnt lgkmcnt(0)")
else:
    lab("L_lpoll")
    lissue()
    PRE = opt["opre"]
    if PRE: oissue(0)
    e(f"s_waitcnt vmcnt({4*PRE})")
    tagcheck([O+1+2*k for k in range(4)], 4, 5, "L_lpoll", "L_lp", opt["lsleep"], ostoreB)
    if LOC: e(f"s_mov_b64 s[{sP}:{sP+1}], s[{sWA}:{sWA+1}]")
    if not PRE: oissue(0); PRE = 1
    e(f"v_max3_f32 v4, v{O}, v{O+2}, v{O+4}")
    e(f"v_max_f32 v4, v4, v{O+6}")
    for k in range(4): e(f"v_sub_f32 v{8+k}, v{O+2*k}, v4")
    for k in range(4): e(f"v_exp_f32 v{8+k}, v{8+k}")
    e("s_nop 0")
    e("v_pk_add_f32 v[4:5], v[8:9], v[10:11]")
    e("v_add_f32 v4, v4, v5")
    e("v_rcp_f32 v4, v4")
    e("s_nop 0")
    for k in range(4): e(f"v_mul_f32 v{8+k}, v{8+k}, v4")
ppoll("L_op", OD, 4, oissue, lambda j: [WR+8*j+1+2*k for k in range(4)], ocont, opt["osleep"], PRE, ostoreB)
ts(11)
e("v_pk_add_f32 v[12:13], v[12:13], v[14:15]")
e("v_cvt_pk_bf16_f32 v12, v12, v13")
e("ds_write_b32 v58, v12")
if LOC: ostoreB()
e("s_waitcnt lgkmcnt(0)")
if not E3: lab("L_mf")
e("s_barrier")
if E3: lab("L_mf")
for ks in range(4): e(f"ds_read_b128 v[{DD+4*ks}:{DD+4*ks+3}], v28 offset:{ks*64}")
if not E3: trread()
e(f"v_mov_b32 v13, s{sTAG}")
e(f"v_mov_b32 v15, s{sTAG}")
for ks in range(4):
    e(f"s_waitcnt lgkmcnt({3-ks if E3 else 6-2*ks})")
    mfma(8, TT+4*ks, DD+4*ks, None if ks == 0 else 8)
e("s_nop 7")
e(f"v_cndmask_b32 v12, v8, v10, s[{sM2}:{sM2+1}]")
e(f"v_cndmask_b32 v14, v9, v11, s[{sM2}:{sM2+1}]")
e(f"global_store_dwordx4 v26, v[12:15], s[{sWS}:{sWS+1}] sc1")
e(f"s_cmp_lt_u32 s{sID}, 128")
e("s_cbranch_scc1 L_final")
ts(12)
if DIAG:
    e(f"s_cmp_lg_u32 s{sW}, 0")
    e("s_cbranch_scc1 L_end")
    dump_ts(0, 13)
e("s_endpgm")
lab("L_lo")
if LOC: ostoreB()
e(f"s_cmp_ge_u32 s{sID}, 56")
e("s_cbranch_scc1 L_final")
if not E3: e(f"s_waitcnt vmcnt({1 if WD == 1 else 1+(LOC>0)})")
e("s_branch L_mf")
lab("L_final")
e(f"s_cmp_lg_u32 s{sW}, 0")
e("s_cbranch_scc1 L_end")
e(f"s_lshl_b32 s{sT0}, s{sID}, 13")
e(f"s_add_u32 s{sT0}, s{sT0}, 4096")
e(f"v_lshl_add_u32 v16, v{vL}, 4, s{sT0}")
base(sB, sWS, WS_DP)
base(sB2, sWS, WS_SP)
e(f"s_lshl_b32 s{sT0}, s{sID}, 6")
e(f"v_lshl_add_u32 v17, v{vI}, 2, s{sT0}")
e(f"global_load_dword v18, v17, s[{sX}:{sX+1}]")
def fsum(R, n):
    e(f"v_add_f32 v8, v{R}, v{R+4}")
    e(f"v_add_f32 v9, v{R+2}, v{R+6}")
    e(f"v_add_f32 v10, v{R+8}, v{R+12}")
    e(f"v_add_f32 v11, v{R+10}, v{R+14}")
    for j in range(4, n):
        e(f"v_add_f32 v{8+2*(j&1)}, v{8+2*(j&1)}, v{R+4*j}")
        e(f"v_add_f32 v{9+2*(j&1)}, v{9+2*(j&1)}, v{R+4*j+2}")
def fred():
    e("v_pk_add_f32 v[8:9], v[8:9], v[10:11]")
    e("s_nop 1")
    e("v_permlane32_swap_b32 v8, v9")
    e("s_nop 0")
    e("v_add_f32 v8, v8, v9")
    e("v_mov_b32 v9, v8")
    e("s_nop 1")
    e("v_permlane16_swap_b32 v8, v9")
    e("s_nop 0")
    e("v_add_f32 v8, v8, v9")
    rbf(8)
e(f"v_mov_b32 v{DD+12}, 0")
e(f"v_mov_b32 v{DD+13}, s{sTAG}")
e(f"v_mov_b32 v{DD+14}, 0")
e(f"v_mov_b32 v{DD+15}, s{sTAG}")
if opt["fpre"]:
    c("cheap pre-wait: every workgroup has published its lse")
    e(f"v_lshlrev_b32 v6, 10, v{vG}")
    e(f"v_lshl_add_u32 v6, v{vI}, 4, v6")
    e(f"v_add_u32 v6, {WS_LSE + 4096}, v6")
    lab("L_fpoll")
    for u in range(2): e(f"global_load_dwordx4 v[{WR+4*u}:{WR+4*u+3}], v6, s[{sWS}:{sWS+1}] offset:{u*4096-4096} sc1")
    e("s_waitcnt vmcnt(0)")
    tagcheck([WR+1+2*k for k in range(4)], 4, 5, "L_fpoll", "L_fp", opt["fsleep"])
if opt["fdelay"]: e(f"s_sleep {opt['fdelay']}")
lab("L_dpoll")
for j in range(4):
    if j == 3: e("s_mov_b32 exec_hi, 0")
    e(f"global_load_dwordx4 v[{DD+4*j}:{DD+4*j+3}], v16, s[{sB}:{sB+1}] offset:{j*1024-4096} sc1")
e("s_mov_b32 exec_hi, -1")
def sissue(j):
    for k in range(8): e(f"global_load_dwordx4 v[{WR+32*j+4*k}:{WR+32*j+4*k+3}], v16, s[{sB2}:{sB2+1}] offset:{k*1024-4096} sc1")
if not opt["dsep"]: sissue(0)
e(f"s_waitcnt vmcnt({0 if opt['dsep'] else 8})")
tagcheck([DD+1+2*k for k in range(8)], 4, 5, "L_dpoll", "L_dp")
if opt["dsep"]: sissue(0)
SD = opt["spipe"]
fsum(DD, 4)
fred()
ts(11)
c("g = bf16(silu(d)); x half for this lane")
e("v_mul_f32 v10, 0xbfb8aa3b, v8")
e("v_exp_f32 v10, v10")
e("v_lshlrev_b32 v19, 16, v18")
e("v_add_f32 v10, 1.0, v10")
e("v_rcp_f32 v10, v10")
e("v_and_b32 v18, 0xffff0000, v18")
e("v_mul_f32 v20, v8, v10")
rbf(20)
e("s_mov_b32 exec_hi, 0")
e("v_mov_b32 v18, v19")
e("s_mov_b32 exec_hi, -1")
e(f"v_lshrrev_b32 v4, 5, v{vL}")
e("v_lshl_add_u32 v17, v4, 1, v17")
ppoll("L_sp", SD, 8, sissue, lambda j: [WR+32*j+1+2*k for k in range(16)], lambda j: fsum(WR+32*j, 8), opt["ssleep"], 1)
fred()
e("v_mul_f32 v8, v8, v20")
rbf(8)
e("v_add_f32 v8, v8, v18")
e("v_cvt_pk_bf16_f32 v8, v8, v8")
e("s_mov_b32 exec_lo, 0xffff")
e("s_mov_b32 exec_hi, 0xffff")
e(f"global_store_short v17, v8, s[{sOUT}:{sOUT+1}]" + ["", " sc1", " sc0 sc1", " nt"][opt.get("osc", 0)])
ts(12)
e(f"s_cmp_lg_u32 s{sID}, 0")
e("s_cbranch_scc1 L_fin2")
e("s_mov_b64 exec, 1")
e("v_mov_b32 v4, 0")
e(f"v_mov_b32 v5, s{sTAG}")
e(f"global_store_dword v4, v5, s[{sWS}:{sWS+1}]" + ["", " sc1", " sc0 sc1", " nt"][opt.get("osc", 0)])
lab("L_fin2")
dump_ts(0, 13)
lab("L_end")
e("s_endpgm")
lab("L_service")
if opt["prio"]: e(f"s_setprio {opt['prio']}")
e("v_mov_b32 v8, 0")
e(f"v_and_b32 v4, 31, v{vL}")
e("v_lshlrev_b32 v4, 2, v4")
e(f"v_add_u32 v4, {ZB}, v4")
e("ds_write_b32 v4, v8")
locinit()
if LOC > 1:
    c("bring the lines of the local o / lse copies of this head into L2")
    e(f"s_cmp_lt_u32 s{sID}, 128")
    e("s_cbranch_scc1 L_nopt")
    e(f"s_lshl_b32 s{sT0}, s{sU_}, 12")
    e(f"s_add_u32 s{sT0}, s{sT0}, {WS_OP}")
    e(f"v_lshl_add_u32 v5, v{vL}, 6, s{sT0}")
    e(f"global_load_dword v6, v5, s[{sWA}:{sWA+1}]")
    e(f"s_lshl_b32 s{sT0}, s{sU_}, 6")
    e(f"s_add_u32 s{sT0}, s{sT0}, {WS_LSE}")
    e(f"v_mov_b32 v5, s{sT0}")
    e(f"global_load_dword v7, v5, s[{sWA}:{sWA+1}]")
    lab("L_nopt")
c("q source: Y + b*YROW + hkv*2048 + lane*16 (+1024)")
e(f"s_lshr_b32 s{sT0}, s{sA}, 5")
e(f"s_mul_i32 s{sT0}, s{sT0}, {YROW}")
e(f"s_bfe_u32 s{sT1}, s{sA}, 0x30002")
e(f"s_lshl_b32 s{sT1}, s{sT1}, 11")
e(f"s_add_u32 s{sT0}, s{sT0}, s{sT1}")
e(f"s_add_u32 s{sT0}, s{sT0}, {WS_Y}")
e(f"v_lshl_add_u32 v16, v{vL}, 4, s{sT0}")
remap(16, 61, 0)
base(sB, sWA, f"s{sT0}")
if opt["qpt"]:
    for u in range(2): e(f"global_load_dwordx4 v[{WR+4*u}:{WR+4*u+3}], v16, s[{sWA}:{sWA+1}] offset:{u*1024}")
e(f"v_lshrrev_b32 v4, 5, v{vL}")
e("v_mul_u32_u24 v17, 272, v4")
e(f"v_and_b32 v4, 31, v{vL}")
e("v_lshl_add_u32 v17, v4, 3, v17")
e(f"v_add_u32 v17, {QB}, v17")
c("h source v26..v29, h dest v20")
e(f"s_lshr_b32 s{sT0}, s{sU_}, 2")
e(f"s_lshl_b32 s{sT0}, s{sT0}, 9")
e(f"s_add_u32 s{sT0}, s{sT0}, {WS_Y + 16384 + 3584}")
e(f"v_lshrrev_b32 v5, 5, v{vL}")
e(f"v_mul_u32_u24 v26, {YROW}, v5")
e(f"v_lshl_add_u32 v26, v4, 4, v26")
e(f"v_add_u32 v26, s{sT0}, v26")
remap(26, 61, 0)
for j in range(1, 4): e(f"v_add_u32 v{26+j}, {2*j*YROW}, v26")
e(f"v_add_u32 v20, {OB - QB}, v17")
c("slab read v21, Y publish v22, ml read v24, lse publish v25")
e(f"v_lshlrev_b32 v21, 4, v{vL}")
e(f"v_add_u32 v21, {P1S}, v21")
e(f"v_and_b32 v4, 7, v{vI}")
e(f"v_mul_u32_u24 v22, {YROW}, v4")
e(f"v_lshrrev_b32 v4, 3, v{vI}")
e("v_lshl_add_u32 v22, v4, 6, v22")
e(f"v_lshl_add_u32 v22, v{vG}, 4, v22")
e(f"s_lshl_b32 s{sT0}, s{sTILE}, 7")
e(f"s_add_u32 s{sT0}, s{sT0}, {WS_Y}")
e(f"v_add_u32 v22, s{sT0}, v22")
remap(22, 61, 0)
e(f"v_and_b32 v4, 3, v{vI}")
e("v_lshlrev_b32 v24, 5, v4")
e(f"v_add_u32 v24, {MB}, v24")
e(f"s_bfe_u32 s{sT0}, s{sA}, 0x30002")
e(f"s_lshl_b32 s{sT0}, s{sT0}, 10")
e(f"s_and_b32 s{sT1}, s{sID}, 0xe0")
e(f"s_add_u32 s{sT0}, s{sT0}, s{sT1}")
e(f"s_and_b32 s{sT1}, s{sA}, 3")
e(f"s_lshl_b32 s{sT1}, s{sT1}, 3")
e(f"s_add_u32 s{sT0}, s{sT0}, s{sT1}")
e(f"s_add_u32 s{sT0}, s{sT0}, {WS_LSE}")
e(f"v_lshl_add_u32 v25, v4, 8, s{sT0}")
remap(25, 61, 1)
e("s_waitcnt lgkmcnt(0)")
tagfix()
e(f"v_mov_b32 v13, s{sTAG}")
e(f"v_mov_b32 v15, s{sTAG}")
e(f"s_cmp_ge_u32 s{sID}, 240")
e("s_cbranch_scc1 L_sv1")
e("s_barrier")
e("s_barrier")
for p in range(8): e(f"ds_read_b128 v[{TT+4*p}:{TT+4*p+3}], v21 offset:{p*1024}")
for p in range(4):
    e(f"s_waitcnt lgkmcnt({3-p})")
    for k in (0, 2): e(f"v_pk_add_f32 v[{TT+4*p+k}:{TT+4*p+k+1}], v[{TT+4*p+k}:{TT+4*p+k+1}], v[{TT+16+4*p+k}:{TT+16+4*p+k+1}]")
for p in range(2):
    for k in (0, 2): e(f"v_pk_add_f32 v[{TT+4*p+k}:{TT+4*p+k+1}], v[{TT+4*p+k}:{TT+4*p+k+1}], v[{TT+8+4*p+k}:{TT+8+4*p+k+1}]")
for k in (0, 2): e(f"v_pk_add_f32 v[{TT+k}:{TT+k+1}], v[{TT+k}:{TT+k+1}], v[{TT+4+k}:{TT+4+k+1}]")
e(f"v_cvt_pk_bf16_f32 v12, v{TT}, v{TT+1}")
e(f"v_cvt_pk_bf16_f32 v14, v{TT+2}, v{TT+3}")
QL = LOC and opt["qloc"]
if QL: e(f"global_store_dwordx4 v22, v[12:15], s[{sWA}:{sWA+1}]")
e(f"global_store_dwordx4 v22, v[12:15], s[{sWS}:{sWS+1}] sc1")
if opt.get("b2b"): e("s_barrier")
lab("L_sv1")
ts(2)
D = opt["qpipe"]
def qissue(j):
    for u in range(2): e(f"global_load_dwordx4 v[{WR+8*j+4*u}:{WR+8*j+4*u+3}], v16, s[{sP if QL else sWS}:{(sP if QL else sWS)+1}] offset:{u*1024} sc1")
def qwrite(j):
    e(f"ds_write2_b32 v17, v{WR+8*j}, v{WR+8*j+2} offset0:0 offset1:1")
    e(f"ds_write2_b32 v17, v{WR+8*j+4}, v{WR+8*j+6} offset0:136 offset1:137")
if opt.get("qa", -1) >= 0:
    c("first q poll: producers on the slow address class finish last, so they back off less")
    e(f"s_cmp_lt_u32 s{sID}, 128")
    e(f"s_cselect_b32 s{sT0}, 14, 6")
    e(f"s_and_b32 s{sT0}, s{sT0}, s{sTILE}")
    e(f"s_cmp_ge_u32 s{sID}, 240")
    e(f"s_cselect_b32 s{sT0}, 0, s{sT0}")
    e(f"s_cmp_eq_u32 s{sT0}, 6")
    e("s_cbranch_scc1 L_qa1")
    if opt["qdelay"] > opt["qb"]: e(f"s_sleep {opt['qdelay'] - opt['qb']}")
    e("s_branch L_qa2")
    lab("L_qa1")
    e(f"s_cmp_lt_u32 s{sID}, 128")
    e("s_cbranch_scc1 L_qa3")
    lab("L_qa2")
    if opt["qb"] > opt["qa"]: e(f"s_sleep {opt['qb'] - opt['qa']}")
    lab("L_qa3")
    if opt["qa"]: e(f"s_sleep {opt['qa']}")
else:
    if opt["qdelay"]: e(f"s_sleep {opt['qdelay']}")
if opt["sq"]:
    c("scalar pre-wait: one tag of each of the 16 producers")
    e(f"s_mov_b32 s{sT2}, 40")
    lab("L_sq")
    for p in range(16): e(f"s_load_dword s{4+p}, s[{sB}:{sB+1}], {128*p+4} glc")
    e("s_waitcnt lgkmcnt(0)")
    e(f"s_xor_b32 s{sT0}, s4, s{sTAG}")
    for p in range(1, 16):
        e(f"s_xor_b32 s{sT1}, s{4+p}, s{sTAG}")
        e(f"s_or_b32 s{sT0}, s{sT0}, s{sT1}")
    e("s_cbranch_scc0 L_sqok")
    e(f"s_sub_u32 s{sT2}, s{sT2}, 1")
    if opt["sq"] > 1: e(f"s_sleep {opt['sq']}")
    e(f"s_cmp_gt_i32 s{sT2}, 0")
    e("s_cbranch_scc1 L_sq")
    lab("L_sqok")
    ts(1)
if opt["hold"]:
    qissue(0)
    e("s_barrier")
ppoll("L_qp", D, 2, qissue, lambda j: [WR+8*j+1+2*k for k in range(4)], qwrite, opt["qsleep"], opt["hold"], True)
ts(4)
def hissue():
    for u in range(4):
        e(f"global_load_dwordx4 v[{VR+8*u}:{VR+8*u+3}], v{26+u}, s[{sWS}:{sWS+1}] offset:-3584 sc1")
        e(f"global_load_dwordx4 v[{VR+8*u+4}:{VR+8*u+7}], v{26+u}, s[{sWS}:{sWS+1}] offset:3584 sc1")
e("s_waitcnt lgkmcnt(0)")
e("s_barrier")
e(f"s_cmp_ge_u32 s{sID}, 56")
e("s_cbranch_scc1 L_sv2")
hissue()
lab("L_sv2")
if opt["slse"]:
    c("split weights of this head: lanes 0..31 = (b, split)")
    e(f"s_mov_b64 s[{sP}:{sP+1}], s[{sWA}:{sWA+1}]")
    e(f"s_lshr_b32 s{sT0}, s{sU_}, 2")
    e(f"s_lshl_b32 s{sT0}, s{sT0}, 8")
    e(f"s_add_u32 s{sT0}, s{sT0}, {WS_LSE}")
    e(f"v_and_b32 v6, 31, v{vL}")
    e(f"v_lshl_add_u32 v16, v6, 3, s{sT0}")
    e(f"v_lshlrev_b32 v17, 2, v6")
    e(f"v_add_u32 v17, {HB}, v17")
e("s_barrier")
mlcomb()
e("v_log_f32 v7, v7")
e(f"v_mov_b32 v9, s{sTAG}")
e("v_add_f32 v8, v6, v7")
e("s_mov_b64 exec, 15")
if LOC: e(f"global_store_dwordx2 v25, v[8:9], s[{sWA}:{sWA+1}]")
if opt["slse"]:
    e(f"s_cmp_lt_u32 s{sID}, 128")
    e("s_cbranch_scc1 L_sv6")
    e("s_mov_b64 exec, -1")
    e(f"global_load_dwordx2 v[12:13], v16, s[{sP}:{sP+1}] sc1")
    e("s_mov_b64 exec, 15")
    lab("L_sv6")
e(f"global_store_dwordx2 v25, v[8:9], s[{sWS}:{sWS+1}] sc1")
e("s_mov_b64 exec, -1")
ts(3)
if opt["slse"]:
    e(f"s_cmp_lt_u32 s{sID}, 128")
    e("s_cbranch_scc1 L_sv4")
    e("s_waitcnt vmcnt(1)")
    e("s_branch L_slc")
    lab("L_slp")
    e(f"global_load_dwordx2 v[12:13], v16, s[{sP}:{sP+1}] sc1")
    e("s_waitcnt vmcnt(0)")
    lab("L_slc")
    tagcheck([13, 13], 4, 5, "L_slp", "L_sl", opt["lsleep"], True)
    e("v_mov_b32 v10, v12")
    for m in ["quad_perm:[1,0,3,2]", "quad_perm:[2,3,0,1]"]:
        e("s_nop 1")
        e(f"v_max_f32_dpp v10, v10, v10 {m} row_mask:0xf bank_mask:0xf")
    e("v_sub_f32 v8, v12, v10")
    e("v_exp_f32 v8, v8")
    e("s_nop 0")
    e("v_mov_b32 v10, v8")
    for m in ["quad_perm:[1,0,3,2]", "quad_perm:[2,3,0,1]"]:
        e("s_nop 1")
        e(f"v_add_f32_dpp v10, v10, v10 {m} row_mask:0xf bank_mask:0xf")
    e("v_rcp_f32 v10, v10")
    e("s_nop 0")
    e("v_mul_f32 v8, v8, v10")
    e("ds_write_b32 v17, v8")
    e("s_branch L_sv5")
    lab("L_sv4")
e(f"s_cmp_ge_u32 s{sID}, 56")
e("s_cbranch_scc1 L_sv3")
e(f"s_waitcnt vmcnt({1+(LOC>0)})")
e("s_branch L_hchk")
lab("L_hpoll")
hissue()
e("s_waitcnt vmcnt(0)")
lab("L_hchk")
tagcheck([VR+1+2*k for k in range(16)], 4, 5, "L_hpoll", "L_hp")
for u in range(4):
    for k in range(2):
        g_, u_ = VR+8*u+2*k, VR+8*u+4+2*k
        e(f"v_lshlrev_b32 v4, 16, v{g_}")
        e(f"v_and_b32 v5, 0xffff0000, v{g_}")
        e(f"v_lshlrev_b32 v6, 16, v{u_}")
        e(f"v_and_b32 v7, 0xffff0000, v{u_}")
        e("v_max_f32 v4, 0, v4")
        e("v_max_f32 v5, 0, v5")
        e("v_mul_f32 v4, v4, v6")
        e("v_mul_f32 v5, v5, v7")
        e(f"v_cvt_pk_bf16_f32 v{8+2*u+k}, v4, v5")
for u in range(4): e(f"ds_write_b64 v20, v[{8+2*u}:{9+2*u}] offset:{u*544}")
lab("L_sv5")
ts(5)
e("s_waitcnt lgkmcnt(0)")
e("s_barrier")
lab("L_sv3")
if DIAG:
    e(f"s_mov_b32 s{sTS+12}, s{sCNT}")
    dump_ts(1, 7)
e("s_endpgm")

hdr = open("cdna_kernels/%s.s.ref" % NAME).read().split("; Override launch")[0]
out = hdr + f"; @launch grid=(256,1,1) block=(576,1,1) lds={LDS}\n"
out += f""".amdgcn_target "amdgcn-amd-amdhsa--gfx950"
.text
.globl {NAME}_kernel
.p2align 8
.type {NAME}_kernel,@function
{NAME}_kernel:
""" + "\n".join(L) + f"""
.section .rodata,"a"
.p2align 6
.amdhsa_kernel {NAME}_kernel
  .amdhsa_next_free_vgpr 164
  .amdhsa_next_free_sgpr 96
  .amdhsa_accum_offset 164
  .amdhsa_group_segment_fixed_size 0
  .amdhsa_kernarg_size 96
  .amdhsa_user_sgpr_count 2
  .amdhsa_user_sgpr_kernarg_segment_ptr 1
  .amdhsa_system_sgpr_workgroup_id_x 1
.end_amdhsa_kernel
"""
open(sys.argv[1], "w").write(out)
```
